```python
import torch

def _softmax(x, axis=-1):
    return torch.softmax(x, dim=axis)
def _gelu(x):
    return torch.nn.functional.gelu(x, approximate="tanh")
def _silu(x):
    return torch.nn.functional.silu(x)
def _sigmoid(x):
    return torch.sigmoid(x)
def _layernorm(x, axis=-1, eps=1e-5):
    m = x.mean(dim=axis, keepdim=True)
    v = x.var(dim=axis, keepdim=True, unbiased=False)
    return (x - m) / torch.sqrt(v + eps)
def _scatter_add(tgt, idx, src, axis=0):
    return tgt.clone().index_add_(axis, idx, src)
def _segment_sum(src, seg, n):
    out = torch.zeros((n,) + src.shape[1:], dtype=src.dtype)
    return out.index_add_(0, seg, src)
def _pad(x, pw):
    flat = tuple(v for pair in reversed(pw) for v in pair)
    return torch.nn.functional.pad(x, flat)

kernel_name = 'standalone__sliding_local_fixed_window__prompt'

def setup_inputs():

    _w = (lambda a: (lambda t: t.to(torch.bfloat16) if t.is_floating_point() else t)(torch.as_tensor(a)))
    B, H, S, D = 1, 32, 2048, 128
    return {
        "q": _w((lambda *s: torch.randn(*s, dtype=torch.bfloat16) * 0.8)(B, H, S, D)),
        "k": _w((lambda *s: torch.randn(*s, dtype=torch.bfloat16) * 0.8)(B, H, S, D)),
        "v": _w((lambda *s: torch.randn(*s, dtype=torch.bfloat16) * 0.05)(B, H, S, D)),
    }

def reference(q, k, v):
    B, H, S, D = q.shape
    w = 32
    pos = torch.arange(S)
    rel = pos[:, None] - pos[None, :]
    mask = (rel >= 0) & (rel < w)
    scores = torch.einsum("bhqd,bhkd->bhqk", q, k) * (D ** -0.5)
    scores = torch.where(mask[None, None], scores, (lambda x, dt: x.to(dt))(torch.as_tensor(-1e9), q.dtype))
    p = _softmax(scores, axis=-1)
    return torch.einsum("bhqk,bhkd->bhqd", p, v)
```

```python
import re

REG_RE = re.compile(r'(?<![\w.])([vas])(?:(\d+)(?![\w\[])|\[(\d+):(\d+)\])')
TRANS = ('v_exp_f32', 'v_log_f32', 'v_rcp_f32', 'v_rsq_f32', 'v_sqrt_f32', 'v_sin_f32', 'v_cos_f32')


def regs_of(operand):
    out = set()
    for m in REG_RE.finditer(operand):
        k = m.group(1)
        if m.group(2) is not None:
            out.add((k, int(m.group(2))))
        else:
            for i in range(int(m.group(3)), int(m.group(4)) + 1):
                out.add((k, i))
    if re.search(r'\bvcc\b', operand):
        out.add(('s', 'vcc'))
    if re.search(r'\bm0\b', operand):
        out.add(('s', 'm0'))
    if re.search(r'\bexec\b', operand):
        out.add(('s', 'exec'))
    return out


def split_ops(rest):
    ops, depth, cur = [], 0, ''
    for ch in rest:
        if ch in '[(':
            depth += 1
        if ch in '])':
            depth -= 1
        if ch == ',' and depth == 0:
            ops.append(cur.strip())
            cur = ''
        else:
            cur += ch
    if cur.strip():
        ops.append(cur.strip())
    return ops


class Inst:
    def __init__(self, text):
        self.text = text
        code = text.split(';')[0].strip()
        self.is_label = code.endswith(':')
        self.is_dir = code.startswith('.') and not self.is_label
        self.kind = 'other'
        self.w, self.r = set(), set()
        self.srcC = set()
        self.srcAB = set()
        self.data = set()
        self.passes = 0
        self.states = 1
        self.op = ''
        if not code or self.is_label or self.is_dir:
            self.states = 0
            self.kind = 'none'
            return
        parts = code.split(None, 1)
        self.op = op = parts[0]
        ops = split_ops(parts[1]) if len(parts) > 1 else []
        R = [regs_of(o) for o in ops]
        allr = lambda lst: set().union(*lst) if lst else set()
        if op == 's_nop':
            self.states = int(ops[0], 0) + 1
            self.kind = 'nop'
        elif op.startswith('v_mfma'):
            self.kind = 'mfma'
            self.passes = 8 if '32x32' in op else 4
            self.w = R[0]
            self.srcAB = R[1] | R[2]
            self.srcC = R[3]
            self.r = self.srcAB | self.srcC
        elif op.startswith('v_'):
            self.kind = 'valu'
            if op.startswith('v_permlane'):
                self.w = R[0] | R[1]
                self.r = R[0] | R[1]
            elif re.match(r'v_(add|sub|subrev)_co_', op) or re.match(r'v_(addc|subb)_co', op):
                self.w = R[0] | R[1]
                self.r = allr(R[2:])
            else:
                self.w = R[0]
                self.r = allr(R[1:])
                if op.startswith('v_fmac') or '_dpp' in op or op.startswith('v_writelane'):
                    self.r |= R[0]
        elif op.startswith('buffer_load') or op.startswith('global_load'):
            self.kind = 'vmem'
            if ' lds' in code or op.startswith('global_load_lds'):
                self.r = allr(R) | {('s', 'm0')}
                self.lds = True
            else:
                self.w = R[0]
                self.r = allr(R[1:])
        elif op.startswith('buffer_store'):
            self.kind = 'vmem'
            self.r = allr(R)
            if op.endswith('x4') or op.endswith('x3'):
                self.data = R[0]
        elif op.startswith('global_store'):
            self.kind = 'vmem'
            self.r = allr(R)
            if op.endswith('x4') or op.endswith('x3'):
                self.data = R[1]
        elif op.startswith('buffer_atomic') or op.startswith('global_atomic'):
            self.kind = 'vmem'
            self.r = allr(R)
        elif op.startswith('ds_read') or op.startswith('ds_bpermute') or op.startswith('ds_swizzle'):
            self.kind = 'ds'
            self.w = R[0]
            self.r = allr(R[1:])
        elif op.startswith('ds_'):
            self.kind = 'ds'
            self.r = allr(R)
        elif op.startswith('s_'):
            self.kind = 'salu'
            if op.startswith('s_cmp') or op.startswith('s_cbranch') or op.startswith('s_waitcnt') or \
               op in ('s_branch', 's_barrier', 's_endpgm', 's_setprio', 's_sleep') or op.startswith('s_bitcmp'):
                self.r = allr(R)
            else:
                self.w = R[0] if R else set()
                self.r = allr(R[1:])

    @property
    def is_trans(self):
        return any(self.op.startswith(t) for t in TRANS)


def vec(s):
    return {x for x in s if x[0] in 'va'}


def sca(s):
    return {x for x in s if x[0] == 's'}


def required(p, c):
    n = 0
    if p.kind == 'valu':
        wv, ws = vec(p.w), sca(p.w)
        if c.kind == 'mfma' and wv & c.r:
            n = max(n, 2)
        if c.kind == 'valu':
            if (c.op.startswith('v_permlane') or '_dpp' in c.op) and wv & c.r:
                n = max(n, 2)
            if (c.op.startswith('v_readfirstlane') or c.op.startswith('v_readlane')) and wv & c.r:
                n = max(n, 1)
            if p.is_trans and wv & (c.r | c.w):
                n = max(n, 1)
            if ws & c.r:
                n = max(n, 4 if 'lane' in c.op else 2)
        if c.kind == 'vmem' and ws & c.r:
            n = max(n, 5)
        if c.kind == 'salu' and ws & c.r:
            n = max(n, 1)
    if p.kind == 'mfma':
        big = {4: 8, 8: 12}[p.passes]
        if c.kind == 'mfma':
            if p.w & c.srcAB:
                n = max(n, big)
            if p.w & c.srcC and (p.w != c.srcC or p.op != c.op):
                n = max(n, {4: 6, 8: 10}[p.passes])
        elif c.kind in ('valu', 'vmem', 'ds'):
            if p.w & (c.r | c.w):
                n = max(n, big)
        if c.kind == 'valu' and p.srcC & c.w:
            n = max(n, {4: 3, 8: 7}[p.passes])
    if p.kind == 'vmem' and p.data:
        if p.data & c.w:
            n = max(n, 2)
    if p.kind == 'salu' and ('s', 'm0') in p.w and c.kind == 'vmem' and ('s', 'm0') in c.r:
        n = max(n, 1)
    return n


class Asm:
    def __init__(self):
        self.lines = []

    def __call__(self, text):
        for t in text.split('\n'):
            t = t.strip()
            if t:
                self.lines.append(t)

    def padded(self):
        out = []
        hist = []
        nops = 0
        for t in self.lines:
            c = Inst(t)
            if c.kind != 'none':
                need = 0
                dist = 0
                for p in reversed(hist):
                    if dist >= 20:
                        break
                    need = max(need, required(p, c) - dist)
                    dist += p.states
                if need > 0:
                    nop = Inst('s_nop %d' % (need - 1))
                    out.append(nop)
                    hist.append(nop)
                    nops += need
                hist.append(c)
            out.append(c)
        self.nop_states = nops
        return out

    def text(self):
        res = []
        for i in self.padded():
            res.append(i.text if (i.is_label or i.is_dir) else '    ' + i.text)
        return '\n'.join(res) + '\n'


def check_sequence(lines):
    hist, bad = [], []
    for t in lines:
        c = Inst(t)
        if c.kind == 'none':
            continue
        dist = 0
        for p in reversed(hist):
            if dist >= 20:
                break
            if required(p, c) > dist:
                bad.append((p.text, c.text, required(p, c), dist))
            dist += p.states
        hist.append(c)
    return bad


NAME = 'standalone__sliding_local_fixed_window__prompt'

HEADER = """; Kernarg layout for this problem (48 bytes, ptrs only, base s[0:1]):
; @launch grid=(%(grid)d,1,1) block=(%(block)d,1,1) lds=%(lds)d
%(comment)s.amdgcn_target "amdgcn-amd-amdhsa--gfx950"
.text
.globl %(name)s_kernel
.p2align 8
.type %(name)s_kernel,@function
%(name)s_kernel:
"""

FOOTER = """.section .rodata,"a"
.p2align 6
.amdhsa_kernel %(name)s_kernel
  .amdhsa_next_free_vgpr %(nfv)d
  .amdhsa_next_free_sgpr %(nfs)d
  .amdhsa_accum_offset %(acc)d
  .amdhsa_group_segment_fixed_size 0
  .amdhsa_kernarg_size 48
  .amdhsa_user_sgpr_count 2
  .amdhsa_user_sgpr_kernarg_segment_ptr 1
  .amdhsa_system_sgpr_workgroup_id_x 1
  .amdhsa_float_denorm_mode_32 3
.end_amdhsa_kernel
"""


def finish(a, grid, block, lds, comment='', min_alloc=0):
    body = a.text()
    mv = ma = ms = -1
    for t in a.lines:
        code = t.split(';')[0]
        for k, i in regs_of(code):
            if isinstance(i, str):
                continue
            if k == 'v':
                mv = max(mv, i)
            elif k == 'a':
                ma = max(ma, i)
            else:
                ms = max(ms, i)
    acc = (mv + 1 + 3) // 4 * 4
    nfv = acc + ma + 1 if ma >= 0 else mv + 1
    nfv = max(nfv, min_alloc)
    d = dict(grid=grid, block=block, lds=lds, name=NAME, nfv=nfv, nfs=ms + 1, acc=acc,
             comment=''.join('; ' + l + '\n' for l in comment.strip().split('\n')) if comment else '')
    return HEADER % d + body + FOOTER % d, dict(vgpr=mv + 1, agpr=ma + 1, sgpr=ms + 1, nfv=nfv, nops=a.nop_states,
                                                 ninst=sum(1 for i in a.padded() if i.kind != 'none'))
```

```python
import sys
import math
import struct
from asmlib import Asm, finish

NBYTES = 32 * 2048 * 128 * 2


def f32(x):
    return '0x%08x' % struct.unpack('<I', struct.pack('<f', x))[0]


def gen(NT=4, WPB=4, xcd_map=True, ld_flags='', st_flags='', order='use', min_alloc=0):
    a = Asm()
    NWG = 65536 // (16 * NT * WPB)
    NK = NT + 2
    S_Q, S_K, S_V, S_O, S_KH, S_VH = 12, 16, 20, 24, 28, 32
    S_OFF = 36
    S_MASK = S_OFF + NK + (NK & 1)
    S_SEL0, S_SEL1, S_C = S_MASK + 8, S_MASK + 9, S_MASK + 10
    srd = lambda b: 's[%d:%d]' % (b, b + 3)
    V_QK, V_LIN, V_M0, V_M1 = 1, 2, 3, 4
    V_T0, V_T1, V_T2 = 5, 6, 7
    V_CI = 8
    V_RAW = 12
    V_FR = V_RAW + 16 * NK
    V_O = V_FR + 64
    V_S = V_O + 32
    V_P = V_S + 12
    A_Q, A_K = 0, 16 * NT

    a('s_cmp_ge_u32 s2, %d' % NWG)
    a('s_cbranch_scc1 L_end')
    a('s_load_dwordx4 s[4:7], s[0:1], 0')
    a('s_load_dwordx4 s[8:11], s[0:1], 16')
    a('v_lshrrev_b32 v5, 6, v0')
    a('v_and_b32 v0, 63, v0')
    a('v_readfirstlane_b32 s3, v5')
    if xcd_map:
        a('s_and_b32 s60, s2, 7')
        a('s_lshr_b32 s61, s2, 3')
        a('s_mul_i32 s60, s60, %d' % (NWG // 8))
        a('s_add_u32 s2, s60, s61')
    a('s_mul_i32 s2, s2, %d' % WPB)
    a('s_add_u32 s2, s2, s3')
    a('s_lshl_b32 s2, s2, %d' % int(math.log2(NT * 4096)))
    for j in range(2, NK):
        a('s_add_u32 s%d, s2, %d' % (S_OFF + j, (j - 2) * 4096))
    a('s_sub_u32 s%d, s2, 8192' % (S_OFF + 0))
    a('s_sub_u32 s%d, s2, 4096' % (S_OFF + 1))
    a('s_and_b32 s60, s2, %d' % (2048 * 256 - 1))
    a('s_cmp_eq_u32 s60, 0')
    a('s_cselect_b32 s%d, 0, s%d' % (S_OFF, S_OFF))
    a('s_cselect_b32 s%d, 0, s%d' % (S_OFF + 1, S_OFF + 1))
    a('s_cselect_b32 s%d, 0, %d' % (S_KH + 2, NBYTES))
    a('s_cselect_b32 s%d, 0, %d' % (S_VH + 2, NBYTES))
    a('s_cselect_b32 s61, %s, 0' % f32(-1e30))
    for b in (S_Q, S_K, S_V, S_O):
        a('s_mov_b32 s%d, %d' % (b + 2, NBYTES))
    for b in (S_Q, S_K, S_V, S_O, S_KH, S_VH):
        a('s_mov_b32 s%d, 0x20000' % (b + 3))
    a('v_lshlrev_b32 v%d, 4, v0' % V_LIN)
    a('v_and_b32 v5, 3, v0')
    a('v_bfe_u32 v6, v0, 2, 2')
    a('v_lshl_add_u32 v5, v5, 2, v6')
    a('v_lshrrev_b32 v6, 4, v0')
    a('v_lshlrev_b32 v7, 4, v6')
    a('v_lshl_add_u32 v%d, v5, 8, v7' % V_QK)
    a('s_waitcnt lgkmcnt(0)')
    for b, p in ((S_KH, 6), (S_K, 6), (S_Q, 4), (S_VH, 8), (S_V, 8), (S_O, 10)):
        a('s_mov_b32 s%d, s%d' % (b, p))
        a('s_mov_b32 s%d, s%d' % (b + 1, p + 1))

    loads = []

    def ldK(j):
        for s in range(4):
            a('buffer_load_dwordx4 a[%d:%d], v%d, %s, s%d offen offset:%d%s' % (
                A_K + 16 * j + 4 * s, A_K + 16 * j + 4 * s + 3, V_QK, srd(S_KH if j < 2 else S_K), S_OFF + j, 64 * s, ld_flags))
            loads.append(('K', j))

    def ldQ(t):
        for s in range(4):
            a('buffer_load_dwordx4 a[%d:%d], v%d, %s, s%d offen offset:%d%s' % (
                A_Q + 16 * t + 4 * s, A_Q + 16 * t + 4 * s + 3, V_QK, srd(S_Q), S_OFF + t + 2, 64 * s, ld_flags))
            loads.append(('Q', t))

    def ldV(j):
        for i in range(4):
            a('buffer_load_dwordx4 v[%d:%d], v%d, %s, s%d offen offset:%d%s' % (
                V_RAW + 16 * j + 4 * i, V_RAW + 16 * j + 4 * i + 3, V_LIN, srd(S_VH if j < 2 else S_V), S_OFF + j, 1024 * i, ld_flags))
            loads.append(('V', j))

    if order == 'use':
        ldQ(0); ldK(2); ldK(1); ldK(0); ldV(2); ldV(1); ldV(0)
        for t in range(1, NT):
            ldQ(t); ldK(t + 2); ldV(t + 2)

    for r in range(4):
        a('v_add_u32 v7, %d, v6' % (4 * r))
        a('v_cmp_le_u32 s[%d:%d], v7, v5' % (S_MASK + 2 * r, S_MASK + 2 * r + 1))
    a('s_mov_b32 s%d, 0x05040100' % S_SEL0)
    a('s_mov_b32 s%d, 0x07060302' % S_SEL1)
    a('s_mov_b32 s%d, %s' % (S_C, f32(math.log2(math.e) / math.sqrt(128.0))))
    a('v_mov_b32 v7, 0xffff')
    for w, vm in ((0, V_M0), (1, V_M1)):
        a('v_cndmask_b32 v5, 0, v7, s[%d:%d]' % (S_MASK + 4 * w, S_MASK + 4 * w + 1))
        a('v_cndmask_b32 v6, 0, v7, s[%d:%d]' % (S_MASK + 4 * w + 2, S_MASK + 4 * w + 3))
        a('v_lshl_or_b32 v%d, v6, 16, v5' % vm)
    for r in range(4):
        a('v_mov_b32 v%d, s61' % (V_CI + r))

    issued = [len(loads)]

    def wait_for(items):
        last = max(i for i, x in enumerate(loads) if x in items)
        n = issued[0] - 1 - last
        a('s_waitcnt vmcnt(%d)' % min(n, 63))

    def frag(j, t):
        return V_FR + 32 * ((j // 2) % 2) + 4 * t + 2 * (j & 1)

    def permV(j):
        for t in range(8):
            for w in range(2):
                a('v_perm_b32 v%d, v%d, v%d, s%d' % (frag(j, t) + w, V_RAW + 16 * j + 4 * (2 * w + 1) + (t >> 1),
                                                     V_RAW + 16 * j + 4 * (2 * w) + (t >> 1), S_SEL1 if t & 1 else S_SEL0))

    def xreduce(op):
        for sw in ('v_permlane32_swap_b32', 'v_permlane16_swap_b32'):
            a('v_mov_b32 v%d, v%d' % (V_T1, V_T0))
            a('%s v%d, v%d' % (sw, V_T0, V_T1))
            a('%s v%d, v%d, v%d' % (op, V_T0, V_T0, V_T1))

    for T in range(NT):
        wait_for([('Q', T), ('K', T), ('K', T + 1), ('K', T + 2)])
        for s in range(4):
            for x in range(3):
                j = T + x
                d = 'v[%d:%d]' % (V_S + 4 * x, V_S + 4 * x + 3)
                c = d if s else ('v[%d:%d]' % (V_CI, V_CI + 3) if j < 2 else '0')
                a('v_mfma_f32_16x16x32_bf16 %s, a[%d:%d], a[%d:%d], %s' % (
                    d, A_K + 16 * j + 4 * s, A_K + 16 * j + 4 * s + 3, A_Q + 16 * T + 4 * s, A_Q + 16 * T + 4 * s + 3, c))
        wait_for([('V', T), ('V', T + 1), ('V', T + 2)])
        if T == 0:
            permV(0); permV(1)
        permV(T + 2)
        SA, SB, SC = V_S, V_S + 4, V_S + 8
        for r in range(4):
            a('v_cndmask_b32 v%d, v%d, v%d, s[%d:%d]' % (SA + r, SA + r, SC + r, S_MASK + 2 * r, S_MASK + 2 * r + 1))
        a('v_max3_f32 v%d, v%d, v%d, v%d' % (V_T0, SB, SB + 1, SB + 2))
        a('v_max3_f32 v%d, v%d, v%d, v%d' % (V_T1, SB + 3, SA, SA + 1))
        a('v_max3_f32 v%d, v%d, v%d, v%d' % (V_T0, V_T0, SA + 2, SA + 3))
        a('v_max_f32 v%d, v%d, v%d' % (V_T0, V_T0, V_T1))
        xreduce('v_max_f32')
        a('v_mul_f32 v%d, s%d, v%d' % (V_T0, S_C, V_T0))
        for r in range(8):
            a('v_fma_f32 v%d, v%d, s%d, -v%d' % (SA + r, SA + r, S_C, V_T0))
        for r in range(8):
            a('v_exp_f32 v%d, v%d' % (SA + r, SA + r))
        a('v_add_f32 v%d, v%d, v%d' % (V_T0, SA, SA + 1))
        a('v_add_f32 v%d, v%d, v%d' % (V_T1, SA + 2, SA + 3))
        a('v_add_f32 v%d, v%d, v%d' % (V_T2, SA + 4, SA + 5))
        a('v_add_f32 v%d, v%d, v%d' % (V_T0, V_T0, V_T1))
        a('v_add_f32 v%d, v%d, v%d' % (V_T1, SA + 6, SA + 7))
        a('v_add_f32 v%d, v%d, v%d' % (V_T0, V_T0, V_T2))
        a('v_add_f32 v%d, v%d, v%d' % (V_T0, V_T0, V_T1))
        xreduce('v_add_f32')
        a('v_rcp_f32 v%d, v%d' % (V_T0, V_T0))
        for r in range(8):
            a('v_mul_f32 v%d, v%d, v%d' % (SA + r, SA + r, V_T0))
        PA, PB, PC = V_P, V_P + 2, V_P + 4
        for w in range(2):
            a('v_cvt_pk_bf16_f32 v%d, v%d, v%d' % (PA + w, SA + 2 * w, SA + 2 * w + 1))
        for w in range(2):
            a('v_cvt_pk_bf16_f32 v%d, v%d, v%d' % (PB + w, SB + 2 * w, SB + 2 * w + 1))
        for w, vm in ((0, V_M0), (1, V_M1)):
            a('v_and_b32 v%d, v%d, v%d' % (PC + w, PA + w, vm))
        for w in range(2):
            a('v_xor_b32 v%d, v%d, v%d' % (PA + w, PA + w, PC + w))
        if T % 2 == 0:
            full, fj, half, hj = PA, T, PC, T + 2
        else:
            full, fj, half, hj = PB, T + 1, PA, T
        for t in range(8):
            a('v_mfma_f32_16x16x32_bf16 v[%d:%d], v[%d:%d], v[%d:%d], 0' % (
                V_O + 4 * t, V_O + 4 * t + 3, full, full + 3, frag(fj, t), frag(fj, t) + 3))
        for t in range(8):
            a('v_mfma_f32_16x16x16_bf16 v[%d:%d], v[%d:%d], v[%d:%d], v[%d:%d]' % (
                V_O + 4 * t, V_O + 4 * t + 3, half, half + 1, frag(hj, t), frag(hj, t) + 1, V_O + 4 * t, V_O + 4 * t + 3))
        OUT = V_RAW + 16 * T
        for p in range(4):
            for r in range(4):
                a('v_cvt_pk_bf16_f32 v%d, v%d, v%d' % (OUT + 4 * r + p, V_O + 8 * p + r, V_O + 8 * p + 4 + r))
        for r in range(4):
            a('buffer_store_dwordx4 v[%d:%d], v%d, %s, s%d offen offset:%d%s' % (
                OUT + 4 * r, OUT + 4 * r + 3, V_LIN, srd(S_O), S_OFF + T + 2, 1024 * r, st_flags))
            issued[0] += 1
    a('L_end:')
    a('s_endpgm')
    return finish(a, NWG, 64 * WPB, 0, min_alloc=min_alloc)


if __name__ == '__main__':
    out = sys.argv[1]
    kw = {}
    for x in sys.argv[2:]:
        k, v = x.split('=')
        try:
            v = int(v)
        except ValueError:
            v = v.replace('+', ' ')
        kw[k] = v
    s, info = gen(**kw)
    open(out, 'w').write(s)
    print(out, info)
```

```python
import sys
import math
import struct
from asmlib import Asm, finish

NBYTES = 32 * 2048 * 128 * 2


def f32(x):
    return '0x%08x' % struct.unpack('<I', struct.pack('<f', x))[0]


def gen(NT=4, WPB=4, xcd_map=True, ld_flags='', st_flags='', order='use', min_alloc=0, diag=''):
    a = Asm()
    NWG = 65536 // (16 * NT * WPB)
    NK = NT + 2
    S_Q, S_K, S_V, S_O, S_KH, S_VH = 12, 16, 20, 24, 28, 32
    S_OFF = 36
    S_MASK = S_OFF + NK + (NK & 1)
    S_SEL0, S_SEL1, S_C = S_MASK + 8, S_MASK + 9, S_MASK + 10
    srd = lambda b: 's[%d:%d]' % (b, b + 3)
    V_QK, V_LIN, V_M0, V_M1 = 1, 2, 3, 4
    V_T0, V_T1, V_T2 = 5, 6, 7
    V_CI = 8
    V_RAW = 12
    V_FR = V_RAW + 16 * NK
    V_O = V_FR + 64
    V_S = V_O + 32
    V_P = V_S + 12
    A_Q, A_K = 0, 16 * NT

    nst = [0]

    def stamp():
        if diag == 'stamp':
            a('s_memrealtime s[%d:%d]' % (64 + 2 * nst[0], 65 + 2 * nst[0]))
            nst[0] += 1

    stamp()
    a('s_cmp_ge_u32 s2, %d' % NWG)
    a('s_cbranch_scc1 L_end')
    if diag == 'stamp':
        a('s_load_dwordx2 s[62:63], s[0:1], 40')
    elif diag:
        a('s_memrealtime s[70:71]')
        a('s_memtime s[76:77]')
    a('s_load_dwordx4 s[4:7], s[0:1], 0')
    a('s_load_dwordx4 s[8:11], s[0:1], 16')
    a('v_lshrrev_b32 v5, 6, v0')
    a('v_and_b32 v0, 63, v0')
    a('v_readfirstlane_b32 s3, v5')
    if xcd_map:
        a('s_and_b32 s60, s2, 7')
        a('s_lshr_b32 s61, s2, 3')
        a('s_mul_i32 s60, s60, %d' % (NWG // 8))
        a('s_add_u32 s2, s60, s61')
    a('s_mul_i32 s2, s2, %d' % WPB)
    a('s_add_u32 s2, s2, s3')
    a('s_lshl_b32 s2, s2, %d' % int(math.log2(NT * 4096)))
    for j in range(2, NK):
        a('s_add_u32 s%d, s2, %d' % (S_OFF + j, (j - 2) * 4096))
    a('s_sub_u32 s%d, s2, 8192' % (S_OFF + 0))
    a('s_sub_u32 s%d, s2, 4096' % (S_OFF + 1))
    a('s_and_b32 s60, s2, %d' % (2048 * 256 - 1))
    a('s_cmp_eq_u32 s60, 0')
    a('s_cselect_b32 s%d, 0, s%d' % (S_OFF, S_OFF))
    a('s_cselect_b32 s%d, 0, s%d' % (S_OFF + 1, S_OFF + 1))
    a('s_cselect_b32 s%d, 0, %d' % (S_KH + 2, NBYTES))
    a('s_cselect_b32 s%d, 0, %d' % (S_VH + 2, NBYTES))
    a('s_cselect_b32 s61, %s, 0' % f32(-1e30))
    for b in (S_Q, S_K, S_V, S_O):
        a('s_mov_b32 s%d, %d' % (b + 2, NBYTES))
    for b in (S_Q, S_K, S_V, S_O, S_KH, S_VH):
        a('s_mov_b32 s%d, 0x20000' % (b + 3))
    a('v_lshlrev_b32 v%d, 4, v0' % V_LIN)
    a('v_and_b32 v5, 3, v0')
    a('v_bfe_u32 v6, v0, 2, 2')
    a('v_lshl_add_u32 v5, v5, 2, v6')
    a('v_lshrrev_b32 v6, 4, v0')
    a('v_lshlrev_b32 v7, 4, v6')
    a('v_lshl_add_u32 v%d, v5, 8, v7' % V_QK)
    a('s_waitcnt lgkmcnt(0)')
    stamp()
    for b, p in ((S_KH, 6), (S_K, 6), (S_Q, 4), (S_VH, 8), (S_V, 8), (S_O, 10)):
        a('s_mov_b32 s%d, s%d' % (b, p))
        a('s_mov_b32 s%d, s%d' % (b + 1, p + 1))

    if diag == 'fixedmin':
        a('s_load_dwordx2 s[62:63], s[0:1], 32')
        a('s_waitcnt lgkmcnt(0)')
        a('s_not_b32 s78, s70')
        a('v_mov_b32 v8, s78')
        a('v_mov_b32 v9, 0')
        a('s_mov_b64 exec, 1')
        a('global_atomic_umax v9, v8, s[62:63]')
        a('s_mov_b64 exec, -1')
    loads = []

    def ldK(j):
        for s in range(4):
            a('buffer_load_dwordx4 a[%d:%d], v%d, %s, s%d offen offset:%d%s' % (
                A_K + 16 * j + 4 * s, A_K + 16 * j + 4 * s + 3, V_QK, srd(S_KH if j < 2 else S_K), S_OFF + j, 64 * s, ld_flags))
            loads.append(('K', j))

    def ldQ(t):
        for s in range(4):
            a('buffer_load_dwordx4 a[%d:%d], v%d, %s, s%d offen offset:%d%s' % (
                A_Q + 16 * t + 4 * s, A_Q + 16 * t + 4 * s + 3, V_QK, srd(S_Q), S_OFF + t + 2, 64 * s, ld_flags))
            loads.append(('Q', t))

    def ldV(j):
        for i in range(4):
            a('buffer_load_dwordx4 v[%d:%d], v%d, %s, s%d offen offset:%d%s' % (
                V_RAW + 16 * j + 4 * i, V_RAW + 16 * j + 4 * i + 3, V_LIN, srd(S_VH if j < 2 else S_V), S_OFF + j, 1024 * i, ld_flags))
            loads.append(('V', j))

    if order == 'use':
        ldQ(0); ldK(2); ldK(1); ldK(0); ldV(2); ldV(1); ldV(0)
        for t in range(1, NT):
            ldQ(t); ldK(t + 2); ldV(t + 2)

    stamp()
    for r in range(4):
        a('v_add_u32 v7, %d, v6' % (4 * r))
        a('v_cmp_le_u32 s[%d:%d], v7, v5' % (S_MASK + 2 * r, S_MASK + 2 * r + 1))
    a('s_mov_b32 s%d, 0x05040100' % S_SEL0)
    a('s_mov_b32 s%d, 0x07060302' % S_SEL1)
    a('s_mov_b32 s%d, %s' % (S_C, f32(math.log2(math.e) / math.sqrt(128.0))))
    a('v_mov_b32 v7, 0xffff')
    for w, vm in ((0, V_M0), (1, V_M1)):
        a('v_cndmask_b32 v5, 0, v7, s[%d:%d]' % (S_MASK + 4 * w, S_MASK + 4 * w + 1))
        a('v_cndmask_b32 v6, 0, v7, s[%d:%d]' % (S_MASK + 4 * w + 2, S_MASK + 4 * w + 3))
        a('v_lshl_or_b32 v%d, v6, 16, v5' % vm)
    for r in range(4):
        a('v_mov_b32 v%d, s61' % (V_CI + r))

    issued = [len(loads)]

    def wait_for(items):
        last = max(i for i, x in enumerate(loads) if x in items)
        n = issued[0] - 1 - last
        a('s_waitcnt vmcnt(%d)' % min(n, 63))

    def frag(j, t):
        return V_FR + 32 * ((j // 2) % 2) + 4 * t + 2 * (j & 1)

    def permV(j):
        for t in range(8):
            for w in range(2):
                a('v_perm_b32 v%d, v%d, v%d, s%d' % (frag(j, t) + w, V_RAW + 16 * j + 4 * (2 * w + 1) + (t >> 1),
                                                     V_RAW + 16 * j + 4 * (2 * w) + (t >> 1), S_SEL1 if t & 1 else S_SEL0))

    def xreduce(op):
        for sw in ('v_permlane32_swap_b32', 'v_permlane16_swap_b32'):
            a('v_mov_b32 v%d, v%d' % (V_T1, V_T0))
            a('%s v%d, v%d' % (sw, V_T0, V_T1))
            a('%s v%d, v%d, v%d' % (op, V_T0, V_T0, V_T1))

    for T in range(NT):
        wait_for([('Q', T), ('K', T), ('K', T + 1), ('K', T + 2)])
        stamp()
        for s in range(4):
            for x in range(3):
                j = T + x
                d = 'v[%d:%d]' % (V_S + 4 * x, V_S + 4 * x + 3)
                c = d if s else ('v[%d:%d]' % (V_CI, V_CI + 3) if j < 2 else '0')
                a('v_mfma_f32_16x16x32_bf16 %s, a[%d:%d], a[%d:%d], %s' % (
                    d, A_K + 16 * j + 4 * s, A_K + 16 * j + 4 * s + 3, A_Q + 16 * T + 4 * s, A_Q + 16 * T + 4 * s + 3, c))
        wait_for([('V', T), ('V', T + 1), ('V', T + 2)])
        stamp()
        if T == 0:
            permV(0); permV(1)
        permV(T + 2)
        SA, SB, SC = V_S, V_S + 4, V_S + 8
        for r in range(4):
            a('v_cndmask_b32 v%d, v%d, v%d, s[%d:%d]' % (SA + r, SA + r, SC + r, S_MASK + 2 * r, S_MASK + 2 * r + 1))
        a('v_max3_f32 v%d, v%d, v%d, v%d' % (V_T0, SB, SB + 1, SB + 2))
        a('v_max3_f32 v%d, v%d, v%d, v%d' % (V_T1, SB + 3, SA, SA + 1))
        a('v_max3_f32 v%d, v%d, v%d, v%d' % (V_T0, V_T0, SA + 2, SA + 3))
        a('v_max_f32 v%d, v%d, v%d' % (V_T0, V_T0, V_T1))
        xreduce('v_max_f32')
        a('v_mul_f32 v%d, s%d, v%d' % (V_T0, S_C, V_T0))
        for r in range(8):
            a('v_fma_f32 v%d, v%d, s%d, -v%d' % (SA + r, SA + r, S_C, V_T0))
        for r in range(8):
            a('v_exp_f32 v%d, v%d' % (SA + r, SA + r))
        a('v_add_f32 v%d, v%d, v%d' % (V_T0, SA, SA + 1))
        a('v_add_f32 v%d, v%d, v%d' % (V_T1, SA + 2, SA + 3))
        a('v_add_f32 v%d, v%d, v%d' % (V_T2, SA + 4, SA + 5))
        a('v_add_f32 v%d, v%d, v%d' % (V_T0, V_T0, V_T1))
        a('v_add_f32 v%d, v%d, v%d' % (V_T1, SA + 6, SA + 7))
        a('v_add_f32 v%d, v%d, v%d' % (V_T0, V_T0, V_T2))
        a('v_add_f32 v%d, v%d, v%d' % (V_T0, V_T0, V_T1))
        xreduce('v_add_f32')
        a('v_rcp_f32 v%d, v%d' % (V_T0, V_T0))
        for r in range(8):
            a('v_mul_f32 v%d, v%d, v%d' % (SA + r, SA + r, V_T0))
        PA, PB, PC = V_P, V_P + 2, V_P + 4
        for w in range(2):
            a('v_cvt_pk_bf16_f32 v%d, v%d, v%d' % (PA + w, SA + 2 * w, SA + 2 * w + 1))
        for w in range(2):
            a('v_cvt_pk_bf16_f32 v%d, v%d, v%d' % (PB + w, SB + 2 * w, SB + 2 * w + 1))
        for w, vm in ((0, V_M0), (1, V_M1)):
            a('v_and_b32 v%d, v%d, v%d' % (PC + w, PA + w, vm))
        for w in range(2):
            a('v_xor_b32 v%d, v%d, v%d' % (PA + w, PA + w, PC + w))
        if T % 2 == 0:
            full, fj, half, hj = PA, T, PC, T + 2
        else:
            full, fj, half, hj = PB, T + 1, PA, T
        for t in range(8):
            a('v_mfma_f32_16x16x32_bf16 v[%d:%d], v[%d:%d], v[%d:%d], 0' % (
                V_O + 4 * t, V_O + 4 * t + 3, full, full + 3, frag(fj, t), frag(fj, t) + 3))
        for t in range(8):
            a('v_mfma_f32_16x16x16_bf16 v[%d:%d], v[%d:%d], v[%d:%d], v[%d:%d]' % (
                V_O + 4 * t, V_O + 4 * t + 3, half, half + 1, frag(hj, t), frag(hj, t) + 1, V_O + 4 * t, V_O + 4 * t + 3))
        OUT = V_RAW + 16 * T
        for p in range(4):
            for r in range(4):
                a('v_cvt_pk_bf16_f32 v%d, v%d, v%d' % (OUT + 4 * r + p, V_O + 8 * p + r, V_O + 8 * p + 4 + r))
        for r in range(4):
            a('buffer_store_dwordx4 v[%d:%d], v%d, %s, s%d offen offset:%d%s' % (
                OUT + 4 * r, OUT + 4 * r + 3, V_LIN, srd(S_O), S_OFF + T + 2, 1024 * r, st_flags))
            issued[0] += 1
    if diag == 'stamp':
        stamp()
        a('s_waitcnt vmcnt(0)')
        stamp()
        a('s_getreg_b32 s3, hwreg(HW_REG_XCC_ID)')
        a('s_getreg_b32 s60, hwreg(HW_REG_HW_ID)')
        a('s_waitcnt lgkmcnt(0)')
        a('v_mov_b32 v5, 0')
        for i in range(nst[0]):
            a('v_writelane_b32 v5, s%d, %d' % (64 + 2 * i, i))
        a('v_writelane_b32 v5, s3, 30')
        a('v_writelane_b32 v5, s60, 31')
        a('s_lshr_b32 s2, s2, %d' % (int(math.log2(NT * 4096)) - 8))
        a('v_lshl_add_u32 v6, v0, 2, s2')
        a('global_store_dword v6, v5, s[62:63]')
    elif diag:
        a('s_waitcnt vmcnt(0)')
        a('s_memrealtime s[72:73]')
        a('s_waitcnt lgkmcnt(0)')
        if diag == 'fixedmin':
            a('v_mov_b32 v9, 0')
            a('global_load_dword v8, v9, s[62:63] sc1')
            a('s_waitcnt vmcnt(0)')
            a('v_readfirstlane_b32 s70, v8')
            a('s_not_b32 s70, s70')
        if diag in ('fixed', 'fixedmin'):
            a('s_mov_b32 s74, 5000')
        elif diag == 'amp':
            a('s_sub_u32 s74, s72, s70')
            a('s_mul_i32 s74, s74, 10')
        if diag == 'clk':
            a('L_spin:')
            a('s_memtime s[72:73]')
            a('s_waitcnt lgkmcnt(0)')
            a('s_sub_u32 s75, s72, s76')
            a('s_cmp_lt_u32 s75, 200000')
            a('s_cbranch_scc1 L_spin')
        else:
            a('L_spin:')
            a('s_memrealtime s[72:73]')
            a('s_waitcnt lgkmcnt(0)')
            a('s_sub_u32 s75, s72, s70')
            a('s_cmp_lt_u32 s75, s74')
            a('s_cbranch_scc1 L_spin')
    a('L_end:')
    a('s_endpgm')
    return finish(a, NWG, 64 * WPB, 0, min_alloc=min_alloc)


if __name__ == '__main__':
    out = sys.argv[1]
    kw = {}
    for x in sys.argv[2:]:
        k, v = x.split('=')
        try:
            v = int(v)
        except ValueError:
            v = v.replace('+', ' ')
        kw[k] = v
    s, info = gen(**kw)
    open(out, 'w').write(s)
    print(out, info)
```

```python
import sys
import math
import struct
from asmlib import Asm, finish

NBYTES = 32 * 2048 * 128 * 2


def f32(x):
    return '0x%08x' % struct.unpack('<I', struct.pack('<f', x))[0]


def gen(D=32, G=4, xmap=1, alt=1, ld=' nt', ld_first=None, ld_last=None, st=' sc1', hold=13, diag='', prio=3,
        interleave=0, safe=1, storer=0, W=16, nst_tiles=16):
    a = Asm()
    NWG = 256
    NC = 4
    NSLOT = 11
    KV0 = 65536
    FLAG = KV0 + NSLOT * 8192
    LDS = FLAG + 256
    if ld_first is None:
        ld_first = ld
    if ld_last is None:
        ld_last = ld
    S_Q, S_K, S_V, S_O, S_KH, S_VH = 12, 16, 20, 24, 28, 32
    srd = lambda b: 's[%d:%d]' % (b, b + 3)
    S_W, S_BASE, S_STR, S_KVO, S_QO, S_POS = 3, 36, 37, 38, 39, 40
    nst = [0]

    def stamp():
        if diag == 'stamp':
            a('s_memrealtime s[%d:%d]' % (64 + 2 * nst[0], 65 + 2 * nst[0]))
            nst[0] += 1

    def dump():
        if diag != 'stamp':
            return
        a('s_waitcnt vmcnt(0)')
        stamp()
        a('s_getreg_b32 s60, hwreg(HW_REG_XCC_ID)')
        a('s_waitcnt lgkmcnt(0)')
        a('v_mov_b32 v5, 0')
        for i in range(nst[0]):
            a('v_writelane_b32 v5, s%d, %d' % (64 + 2 * i, i))
        a('v_writelane_b32 v5, s60, 30')
        a('v_writelane_b32 v5, s%d, 31' % S_W)
        a('s_lshl_b32 s61, s2, 3')
        a('s_add_u32 s61, s61, s%d' % S_W)
        a('s_lshl_b32 s61, s61, 8')
        a('v_lshl_add_u32 v6, v0, 2, s61')
        a('global_store_dword v6, v5, s[62:63]')

    stamp()
    a('s_cmp_ge_u32 s2, %d' % NWG)
    a('s_cbranch_scc1 L_end')
    a('s_load_dwordx4 s[4:7], s[0:1], 0')
    a('s_load_dwordx4 s[8:11], s[0:1], 16')
    if diag == 'stamp':
        a('s_load_dwordx2 s[62:63], s[0:1], 40')
    a('v_lshrrev_b32 v5, 6, v0')
    a('v_and_b32 v0, 63, v0')
    a('v_readfirstlane_b32 s%d, v5' % S_W)
    if xmap == 1:
        a('s_and_b32 s60, s2, 7')
        a('s_lshr_b32 s61, s2, 3')
        a('s_lshl_b32 s60, s60, 5')
        a('s_add_u32 s2, s60, s61')
    elif xmap == 2:
        a('s_and_b32 s60, s2, 7')
        a('s_lshr_b32 s61, s2, 3')
        a('s_and_b32 s58, s61, 3')
        a('s_lshr_b32 s61, s61, 2')
        a('s_lshl_b32 s61, s61, 3')
        a('s_and_b32 s59, s60, 1')
        a('s_lshl_b32 s59, s59, 2')
        a('s_lshr_b32 s60, s60, 1')
        a('s_lshl_b32 s60, s60, 6')
        a('s_add_u32 s61, s61, s60')
        a('s_add_u32 s61, s61, s59')
        a('s_add_u32 s2, s61, s58')
    elif xmap == 3:
        a('s_bfe_u32 s60, s2, 0x40003')
        a('s_and_b32 s61, s2, 1')
        a('s_lshl_b32 s61, s61, 4')
        a('s_or_b32 s60, s60, s61')
        a('s_lshr_b32 s61, s2, 7')
        a('s_lshl_b32 s61, s61, 5')
        a('s_or_b32 s60, s60, s61')
        a('s_and_b32 s61, s2, 6')
        a('s_lshl_b32 s61, s61, 5')
        a('s_or_b32 s2, s60, s61')
    a('s_lshl_b32 s%d, s2, 16' % S_BASE)
    a('s_and_b32 s%d, s2, 7' % S_POS)
    a('s_movk_i32 s%d, 4096' % S_STR)
    a('s_movk_i32 s61, -8192')
    a('s_and_b32 s60, s2, %d' % (1 if alt else 0))
    a('s_cselect_b32 s%d, -4096, s%d' % (S_STR, S_STR))
    a('s_cselect_b32 s60, %d, 0' % (15 * 4096))
    a('s_cselect_b32 s61, s60, s61')
    a('s_cselect_b64 s[42:43], -1, 0')
    a('s_add_u32 s%d, s%d, s60' % (S_QO, S_BASE))
    a('s_add_u32 s%d, s%d, s61' % (S_KVO, S_BASE))
    a('v_lshrrev_b32 v6, 4, v0')
    a('v_and_b32 v7, 15, v0')
    a('s_cmp_lg_u32 s%d, 0' % S_W)
    a('s_cbranch_scc1 L_consumer')

    if prio:
        a('s_setprio %d' % prio)
    a('v_lshlrev_b32 v5, 1, v6')
    a('v_xor_b32 v5, v5, v7')
    a('v_lshlrev_b32 v5, 4, v5')
    a('v_lshl_add_u32 v1, v6, 8, v5')
    a('v_xor_b32 v2, 128, v1')
    a('v_mov_b32 v3, %d' % FLAG)
    a('s_add_u32 s45, s%d, s%d' % (S_KVO, S_STR))
    a('s_add_u32 s46, s45, s%d' % S_STR)
    a('s_cmp_eq_u32 s%d, 0' % S_POS)
    a('s_cselect_b32 s44, 0, s%d' % S_KVO)
    a('s_cselect_b32 s45, 0, s45')
    a('s_cselect_b32 s%d, 0, %d' % (S_KH + 2, NBYTES))
    a('s_cselect_b32 s%d, 0, %d' % (S_VH + 2, NBYTES))
    for b in (S_Q, S_K, S_V):
        a('s_mov_b32 s%d, %d' % (b + 2, NBYTES))
    for b in (S_Q, S_K, S_V, S_KH, S_VH):
        a('s_mov_b32 s%d, 0x20000' % (b + 3))
    a('s_mov_b32 m0, %d' % KV0)
    a('s_waitcnt lgkmcnt(0)')
    stamp()
    for b, p in ((S_KH, 6), (S_VH, 8), (S_Q, 4), (S_K, 6), (S_V, 8)):
        a('s_mov_b32 s%d, s%d' % (b, p))
        a('s_mov_b32 s%d, s%d' % (b + 1, p + 1))
    groups = []
    for e in range(18):
        if e >= 2:
            groups.append(('Q', e))
        groups.append(('K', e))
        groups.append(('V', e))
    insts = [(arr, e, i) for arr, e in groups for i in range(4)]
    last_of = {e: max(n for n, x in enumerate(insts) if x[1] == e) for e in range(18)}
    published = [1]
    barrier0 = [False]

    def publish(landed):
        e = max([1] + [e for e in range(2, 18) if last_of[e] < landed])
        if e > published[0]:
            a('v_mov_b32 v4, %d' % e)
            a('ds_write_b32 v3, v4')
            published[0] = e
            if diag == 'stamp' and e in (2, 5, 9, 13, 17):
                stamp()

    for n, (arr, e, i) in enumerate(insts):
        if n >= D and n % G == 0:
            if not barrier0[0]:
                a('s_barrier')
                barrier0[0] = True
            a('s_waitcnt vmcnt(%d)' % (D - G))
            publish(n - (D - G))
        if i == 0:
            if arr == 'K' and e in (11, 15):
                lab = 'L_free%d' % e
                if safe:
                    a('s_mov_b32 s56, 0')
                a('%s:' % lab)
                a('ds_read_b128 v[8:11], v3 offset:16')
                if safe:
                    a('s_add_u32 s56, s56, 1')
                    a('s_cmp_ge_u32 s56, 0x8000')
                    a('s_cbranch_scc1 %s_x' % lab)
                a('s_waitcnt lgkmcnt(0)')
                a('v_min_u32 v8, v8, v9')
                a('v_min3_u32 v8, v8, v10, v11')
                a('v_readfirstlane_b32 s50, v8')
                a('s_cmp_lt_u32 s50, %d' % (e - 9))
                a('s_cbranch_scc1 %s' % lab)
                if safe:
                    a('%s_x:' % lab)
            m0 = (e - 2) * 4096 if arr == 'Q' else KV0 + (e % NSLOT) * 8192 + (4096 if arr == 'V' else 0)
            if n:
                a('s_mov_b32 m0, %d' % m0)
            if arr == 'Q' and e > 2:
                a('s_add_u32 s%d, s%d, s%d' % (S_QO, S_QO, S_STR))
            if arr == 'K' and e > 2:
                a('s_add_u32 s46, s46, s%d' % S_STR)
        if arr == 'Q':
            r, so, fl = S_Q, S_QO, ld
        else:
            r = {('K', 0): S_K, ('K', 1): S_KH, ('V', 0): S_V, ('V', 1): S_VH}[(arr, int(e < 2))]
            so = 44 + min(e, 2)
            fl = ld_first if e < 2 else (ld_last if e >= 16 else ld)
        a('buffer_load_dwordx4 v%d, %s, s%d offen offset:%d%s lds' % (1 + (i & 1), srd(r), so, i * 1024, fl))
    stamp()
    for e in range(published[0] + 1, 18):
        a('s_waitcnt vmcnt(%d)' % (len(insts) - 1 - last_of[e]))
        publish(last_of[e] + 1)
    a('s_waitcnt lgkmcnt(0)')
    dump()
    a('s_endpgm')

    nst[0] = 1
    a('L_consumer:')
    DONE = FLAG + 16
    S_STEP, S_X, S_Y, S_Z, S_QS, S_R, S_F, S_C, S_NEG = 44, 45, 46, 47, 48, 49, 50, 51, 52
    S_MASK = 28
    S_HQ, S_HG, S_STR4 = 53, 54, 55
    V_FLAG, V_LIN, V_ST0, V_ST1, V_M0, V_M1, V_T0, V_T1, V_T2 = 1, 2, 3, 4, 8, 9, 10, 11, 12
    C_K, C_V, C_O = 16, 20, 28
    A_Q, A_K, A_V, A_O = 32, 36, 48, 72
    R_Q, R_K, R_V = 76, 92, 140
    V_S, V_P, V_O = 188, 200, 208
    R_OUT = R_Q
    a('v_mov_b32 v%d, %d' % (V_FLAG, FLAG))
    a('v_mov_b32 v5, 0')
    a('ds_write_b32 v%d, v5' % V_FLAG)
    a('s_lshl_b32 s60, s%d, 2' % S_W)
    a('s_add_u32 s60, s60, %d' % (DONE - 4))
    a('v_mov_b32 v15, s60')
    a('ds_write_b32 v15, v5')
    a('v_lshlrev_b32 v%d, 4, v0' % V_LIN)
    a('v_xor_b32 v5, v7, v6')
    a('v_lshlrev_b32 v5, 4, v5')
    a('v_lshl_add_u32 v%d, v6, 8, v5' % V_ST0)
    a('v_xor_b32 v%d, 64, v%d' % (V_ST1, V_ST0))
    a('v_and_b32 v13, 7, v7')
    a('v_lshlrev_b32 v5, 1, v13')
    a('v_xor_b32 v5, v5, v6')
    a('v_lshlrev_b32 v5, 4, v5')
    a('v_lshl_add_u32 v%d, v7, 8, v5' % C_K)
    for s in range(1, 4):
        a('v_xor_b32 v%d, %d, v%d' % (C_K + s, 64 * s, C_K))
    a('v_lshrrev_b32 v14, 2, v0')
    a('v_and_b32 v5, 7, v14')
    a('v_lshlrev_b32 v5, 5, v5')
    a('v_lshl_add_u32 v5, v14, 8, v5')
    a('v_and_b32 v14, 3, v0')
    a('v_lshl_add_u32 v%d, v14, 3, v5' % C_V)
    for t in range(1, 8):
        a('v_xor_b32 v%d, %d, v%d' % (C_V + t, 32 * t, C_V))
    a('v_lshrrev_b32 v5, 1, v6')
    a('v_xor_b32 v5, v5, v13')
    a('v_lshlrev_b32 v5, 4, v5')
    a('v_lshl_add_u32 v5, v7, 8, v5')
    a('v_and_b32 v14, 1, v6')
    a('v_lshl_add_u32 v%d, v14, 3, v5' % C_O)
    for t in range(1, 4):
        a('v_xor_b32 v%d, %d, v%d' % (C_O + t, 32 * t, C_O))
    a('v_lshlrev_b32 v13, 2, v6')
    for r in range(4):
        a('v_add_u32 v5, %d, v13' % r)
        a('v_cmp_le_u32 vcc, v5, v7')
        a('s_xor_b64 s[%d:%d], vcc, s[42:43]' % (S_MASK + 2 * r, S_MASK + 2 * r + 1))
    a('v_mov_b32 v13, 0xffff')
    for w, vm in ((0, V_M0), (1, V_M1)):
        a('v_cndmask_b32 v5, 0, v13, s[%d:%d]' % (S_MASK + 4 * w, S_MASK + 4 * w + 1))
        a('v_cndmask_b32 v14, 0, v13, s[%d:%d]' % (S_MASK + 4 * w + 2, S_MASK + 4 * w + 3))
        a('v_lshl_or_b32 v%d, v14, 16, v5' % vm)
    a('s_mov_b32 s%d, %s' % (S_C, f32(math.log2(math.e) / math.sqrt(128.0))))
    a('s_cmp_eq_u32 s%d, 0' % S_POS)
    a('s_cselect_b32 s%d, %s, 0' % (S_NEG, f32(-1e30)))
    a('s_sub_u32 s60, s%d, 1' % S_W)
    a('s_add_u32 s%d, s60, 2' % S_STEP)
    a('s_lshl_b32 s%d, s60, 12' % S_QS)
    a('s_lshl_b32 s61, s60, 13')
    a('s_add_u32 s%d, s61, %d' % (S_X, KV0))
    a('s_add_u32 s%d, s61, %d' % (S_Y, KV0 + 8192))
    a('s_add_u32 s%d, s61, %d' % (S_Z, KV0 + 16384))
    a('s_mul_i32 s61, s60, s%d' % S_STR)
    a('s_add_u32 s%d, s%d, s61' % (S_HG, S_QO))
    a('s_mov_b32 s%d, s%d' % (S_HQ, S_QS))
    a('s_lshl_b32 s%d, s%d, 2' % (S_STR4, S_STR))
    a('s_mov_b32 s%d, 0' % S_R)
    a('s_mov_b32 s%d, %d' % (S_O + 2, NBYTES))
    a('s_mov_b32 s%d, 0x20000' % (S_O + 3))
    a('s_waitcnt lgkmcnt(0)')
    a('s_mov_b32 s%d, s10' % S_O)
    a('s_mov_b32 s%d, s11' % (S_O + 1))
    a('s_barrier')

    def poll(label, need, off=0):
        if safe:
            a('s_mov_b32 s56, 0')
        a('%s:' % label)
        a('ds_read_b32 v%d, v%d offset:%d' % (V_T0, V_FLAG, off))
        if safe:
            a('s_add_u32 s56, s56, 1')
            a('s_cmp_ge_u32 s56, 0x8000')
            a('s_cbranch_scc1 %s_x' % label)
        a('s_waitcnt lgkmcnt(0)')
        a('v_readfirstlane_b32 s%d, v%d' % (S_F, V_T0))
        a('s_cmp_lt_u32 s%d, %s' % (S_F, need))
        a('s_cbranch_scc1 %s' % label)
        if safe:
            a('%s_x:' % label)

    def store_tiles(n, regs):
        for k in range(n):
            a('v_add_u32 v%d, s%d, v%d' % (V_T1, S_HQ, V_LIN))
            for i in range(4):
                a('ds_read_b128 v[%d:%d], v%d offset:%d' % (regs + 16 * k + 4 * i, regs + 16 * k + 4 * i + 3, V_T1, 1024 * i))
            a('s_add_u32 s%d, s%d, %d' % (S_HQ, S_HQ, NC * 4096))
        for k in range(n):
            for i in range(4):
                a('s_waitcnt lgkmcnt(%d)' % (4 * n - 1 - (4 * k + i)))
                a('buffer_store_dwordx4 v[%d:%d], v%d, %s, s%d offen offset:%d%s' % (
                    regs + 16 * k + 4 * i, regs + 16 * k + 4 * i + 3, V_ST0 + (i & 1), srd(S_O), S_HG, 1024 * i, st))
            a('s_add_u32 s%d, s%d, s%d' % (S_HG, S_HG, S_STR4))

    def xreduce(op):
        for sw in ('v_permlane32_swap_b32', 'v_permlane16_swap_b32'):
            a('v_mov_b32 v%d, v%d' % (V_T1, V_T0))
            a('%s v%d, v%d' % (sw, V_T0, V_T1))
            a('%s v%d, v%d, v%d' % (op, V_T0, V_T0, V_T1))

    if storer:
        a('s_cmp_gt_u32 s%d, %d' % (S_W, NC))
        a('s_cbranch_scc1 L_storer')
    a('L_round:')
    if not interleave and not storer:
        a('s_cmp_lg_u32 s%d, 3' % S_R)
        a('s_cbranch_scc1 L_nohold')
        poll('L_pollh', '%d' % hold)
        stamp()
        store_tiles(3, R_V)
        stamp()
        a('L_nohold:')
    for s in range(4):
        a('v_add_u32 v%d, s%d, v%d' % (A_Q + s, S_QS, C_K + s))
        for x in range(3):
            a('v_add_u32 v%d, s%d, v%d' % (A_K + 4 * x + s, S_X + x, C_K + s))
    for t in range(8):
        for x in range(3):
            a('v_add_u32 v%d, s%d, v%d' % (A_V + 8 * x + t, S_X + x, C_V + t))
    for t in range(4):
        a('v_add_u32 v%d, s%d, v%d' % (A_O + t, S_QS, C_O + t))
    a('s_cmp_lt_u32 s%d, 4' % S_STEP)
    a('s_cselect_b32 s60, s%d, 0' % S_NEG)
    a('s_cmp_lt_u32 s%d, 3' % S_STEP)
    a('s_cselect_b32 s61, s%d, 0' % S_NEG)
    for r in range(4):
        a('v_mov_b32 v%d, s60' % (V_S + r))
        a('v_mov_b32 v%d, s61' % (V_S + 4 + r))
    poll('L_poll', 's%d' % S_STEP)
    if diag == 'stamp':
        a('s_memrealtime s[90:91]')
        a('s_waitcnt lgkmcnt(0)')
    for s in range(4):
        a('ds_read_b128 v[%d:%d], v%d' % (R_Q + 4 * s, R_Q + 4 * s + 3, A_Q + s))
        for x in range(3):
            if s == 3 and x == 2:
                a('s_waitcnt lgkmcnt(11)')
            a('ds_read_b128 v[%d:%d], v%d' % (R_K + 16 * x + 4 * s, R_K + 16 * x + 4 * s + 3, A_K + 4 * x + s))
    vreads = [(t, x) for t in range(8) for x in range(3)]

    def vread(n):
        for _ in range(n):
            t, x = vreads.pop(0)
            a('ds_read_b64_tr_b16 v[%d:%d], v%d offset:4096' % (R_V + 6 * t + 2 * x, R_V + 6 * t + 2 * x + 1, A_V + 8 * x + t))

    for s in range(4):
        if s:
            a('s_waitcnt lgkmcnt(%d)' % (12 - 4 * s + 3 * s))
        for x in range(3):
            d = 'v[%d:%d]' % (V_S + 4 * x, V_S + 4 * x + 3)
            c = '0' if (s == 0 and x == 2) else d
            a('v_mfma_f32_16x16x32_bf16 %s, v[%d:%d], v[%d:%d], %s' % (
                d, R_K + 16 * x + 4 * s, R_K + 16 * x + 4 * s + 3, R_Q + 4 * s, R_Q + 4 * s + 3, c))
            vread(1)
    a('s_waitcnt lgkmcnt(3)')
    vread(12)
    SA, SB, SC = V_S, V_S + 4, V_S + 8
    for r in range(4):
        a('v_cndmask_b32 v%d, v%d, v%d, s[%d:%d]' % (SA + r, SA + r, SC + r, S_MASK + 2 * r, S_MASK + 2 * r + 1))
    a('v_max3_f32 v%d, v%d, v%d, v%d' % (V_T0, SB, SB + 1, SB + 2))
    a('v_max3_f32 v%d, v%d, v%d, v%d' % (V_T1, SB + 3, SA, SA + 1))
    a('v_max3_f32 v%d, v%d, v%d, v%d' % (V_T0, V_T0, SA + 2, SA + 3))
    a('v_max_f32 v%d, v%d, v%d' % (V_T0, V_T0, V_T1))
    xreduce('v_max_f32')
    a('v_mul_f32 v%d, s%d, v%d' % (V_T0, S_C, V_T0))
    for r in range(8):
        a('v_fma_f32 v%d, v%d, s%d, -v%d' % (SA + r, SA + r, S_C, V_T0))
    for r in range(8):
        a('v_exp_f32 v%d, v%d' % (SA + r, SA + r))
    a('v_add_f32 v%d, v%d, v%d' % (V_T0, SA, SA + 1))
    a('v_add_f32 v%d, v%d, v%d' % (V_T1, SA + 2, SA + 3))
    a('v_add_f32 v%d, v%d, v%d' % (V_T2, SA + 4, SA + 5))
    a('v_add_f32 v%d, v%d, v%d' % (V_T0, V_T0, V_T1))
    a('v_add_f32 v%d, v%d, v%d' % (V_T1, SA + 6, SA + 7))
    a('v_add_f32 v%d, v%d, v%d' % (V_T0, V_T0, V_T2))
    a('v_add_f32 v%d, v%d, v%d' % (V_T0, V_T0, V_T1))
    xreduce('v_add_f32')
    a('v_rcp_f32 v%d, v%d' % (V_T0, V_T0))
    for r in range(8):
        a('v_mul_f32 v%d, v%d, v%d' % (SA + r, SA + r, V_T0))
    PA, PB, PC = V_P, V_P + 2, V_P + 4
    for w in range(2):
        a('v_cvt_pk_bf16_f32 v%d, v%d, v%d' % (PA + w, SA + 2 * w, SA + 2 * w + 1))
    for w in range(2):
        a('v_cvt_pk_bf16_f32 v%d, v%d, v%d' % (PB + w, SB + 2 * w, SB + 2 * w + 1))
    for w, vm in ((0, V_M0), (1, V_M1)):
        a('v_and_b32 v%d, v%d, v%d' % (PC + w, PA + w, vm))
    for w in range(2):
        a('v_xor_b32 v%d, v%d, v%d' % (PA + w, PA + w, PC + w))
    a('s_waitcnt lgkmcnt(0)')
    for t in range(8):
        a('v_mfma_f32_16x16x32_bf16 v[%d:%d], v[%d:%d], v[%d:%d], 0' % (
            V_O + 4 * t, V_O + 4 * t + 3, R_V + 6 * t, R_V + 6 * t + 3, PA, PA + 3))

    def opack(t):
        a('v_cvt_pk_bf16_f32 v%d, v%d, v%d' % (R_OUT + 2 * t, V_O + 4 * t, V_O + 4 * t + 1))
        a('v_cvt_pk_bf16_f32 v%d, v%d, v%d' % (R_OUT + 2 * t + 1, V_O + 4 * t + 2, V_O + 4 * t + 3))
        a('ds_write_b64 v%d, v[%d:%d] offset:%d' % (A_O + (t & 3), R_OUT + 2 * t, R_OUT + 2 * t + 1, 128 * (t >> 2)))

    for t in range(8):
        a('v_mfma_f32_16x16x16_bf16 v[%d:%d], v[%d:%d], v[%d:%d], v[%d:%d]' % (
            V_O + 4 * t, V_O + 4 * t + 3, R_V + 6 * t + 4, R_V + 6 * t + 5, PC, PC + 1, V_O + 4 * t, V_O + 4 * t + 3))
    for t in range(8):
        opack(t)
    a('v_mov_b32 v%d, s%d' % (V_T0, S_STEP))
    a('ds_write_b32 v15, v%d' % V_T0)
    if interleave:
        store_tiles(1, R_K)
    a('s_add_u32 s%d, s%d, %d' % (S_STEP, S_STEP, NC))
    a('s_add_u32 s%d, s%d, %d' % (S_QS, S_QS, NC * 4096))
    for x in range(3):
        a('s_add_u32 s%d, s%d, %d' % (S_X + x, S_X + x, NC * 8192))
        a('s_cmp_ge_u32 s%d, %d' % (S_X + x, FLAG))
        a('s_cselect_b32 s60, %d, 0' % (NSLOT * 8192))
        a('s_sub_u32 s%d, s%d, s60' % (S_X + x, S_X + x))
    a('s_add_u32 s%d, s%d, 1' % (S_R, S_R))
    a('s_cmp_lt_u32 s%d, 4' % S_R)
    a('s_cbranch_scc1 L_round')
    if diag == 'stamp':
        a('s_mov_b32 s%d, s90' % (64 + 2 * nst[0]))
        nst[0] += 1
    stamp()
    if diag == 'stamp':
        a('s_waitcnt lgkmcnt(0)')
    if storer and nst_tiles < 16:
        a('s_mul_i32 s60, s%d, 3' % S_STR4)
        a('s_add_u32 s%d, s%d, s60' % (S_HG, S_HG))
        a('s_add_u32 s%d, s%d, %d' % (S_HQ, S_HQ, 3 * NC * 4096))
    if not interleave and (not storer or nst_tiles < 16):
        store_tiles(1, R_K)
    stamp()
    a('s_waitcnt lgkmcnt(0)')
    dump()
    if storer:
        a('s_endpgm')
        nst[0] = 1
        a('L_storer:')
        poll('L_polls', '%d' % hold)
        stamp()
        n = 0
        for k in range(nst_tiles):
            poll('L_pd%d' % k, '%d' % (k + 2), off=16 + 4 * (k % NC))
            b = R_Q + 16 * (k & 1)
            for i in range(4):
                a('ds_read_b128 v[%d:%d], v%d offset:%d' % (b + 4 * i, b + 4 * i + 3, V_LIN, 4096 * k + 1024 * i))
            for i in range(4):
                a('s_waitcnt lgkmcnt(%d)%s' % (3 - i, ' vmcnt(%d)' % (W - 1) if n >= W else ''))
                a('buffer_store_dwordx4 v[%d:%d], v%d, %s, s%d offen offset:%d%s' % (
                    b + 4 * i, b + 4 * i + 3, V_ST0 + (i & 1), srd(S_O), S_QO, 1024 * i, st))
                n += 1
            a('s_add_u32 s%d, s%d, s%d' % (S_QO, S_QO, S_STR))
            if k % 4 == 3:
                stamp()
        dump()
    a('L_end:')
    a('s_endpgm')
    return finish(a, NWG, 64 * (NC + 1 + storer), LDS)


if __name__ == '__main__':
    out = sys.argv[1]
    kw = {}
    for x in sys.argv[2:]:
        k, v = x.split('=')
        try:
            v = int(v)
        except ValueError:
            v = v.replace('+', ' ')
        kw[k] = v
    s, info = gen(**kw)
    open(out, 'w').write(s)
    print(out, info)
```

```python
import sys
import math
import struct
from asmlib import Asm, finish

NBYTES = 32 * 2048 * 128 * 2


def f32(x):
    return '0x%08x' % struct.unpack('<I', struct.pack('<f', x))[0]


def gen(D=32, G=4, xmap=1, alt=1, ld=' nt', ld_first=None, ld_last=None, st=' sc1', hold=13, diag='', prio=3,
        interleave=0, safe=1, storer=0, W=16, nst_tiles=16, arole='L', aidx=0, aop='max'):
    a = Asm()
    NWG = 256
    NC = 4
    NSLOT = 11
    KV0 = 65536
    FLAG = KV0 + NSLOT * 8192
    LDS = FLAG + 256
    if ld_first is None:
        ld_first = ld
    if ld_last is None:
        ld_last = ld
    S_Q, S_K, S_V, S_O, S_KH, S_VH = 12, 16, 20, 24, 28, 32
    srd = lambda b: 's[%d:%d]' % (b, b + 3)
    S_W, S_BASE, S_STR, S_KVO, S_QO, S_POS = 3, 36, 37, 38, 39, 40
    nst = [0]

    role = ['L']

    def stamp():
        if diag == 'stamp' or (diag == 'amp' and (nst[0] == 0 or (role[0] == arole and nst[0] == aidx))):
            a('s_memrealtime s[%d:%d]' % (64 + 2 * nst[0], 65 + 2 * nst[0]))
        nst[0] += 1

    def spin(lab, ref, lim):
        a('%s:' % lab)
        a('s_memrealtime s[94:95]')
        a('s_waitcnt lgkmcnt(0)')
        a('s_sub_u32 s96, s94, %s' % ref)
        a('s_cmp_lt_u32 s96, %s' % lim)
        a('s_cbranch_scc1 %s' % lab)

    def dump():
        if diag == 'amp' and role[0] == arole:
            a('s_waitcnt vmcnt(0)')
            stamp()
            a('s_load_dwordx2 s[62:63], s[0:1], 32')
            a('s_waitcnt lgkmcnt(0)')
            spin('L_sp0', 's64', '2000')
            a('s_not_b32 s93, s64')
            a('s_and_b32 s92, s%d, 0xfffff' % (64 + 2 * aidx))
            a('v_mov_b32 v8, s93')
            a('v_mov_b32 v9, s%d' % (64 + 2 * aidx))
            a('v_mov_b32 v10, s92')
            a('v_not_b32 v11, v9')
            a('v_mov_b32 v12, 0')
            a('s_mov_b64 exec, 1')
            a('global_atomic_umax v12, v8, s[62:63]')
            a('global_atomic_umax v12, v9, s[62:63] offset:4')
            a('global_atomic_add v12, v10, s[62:63] offset:8')
            a('global_atomic_umax v12, v11, s[62:63] offset:12')
            a('s_mov_b64 exec, -1')
            a('s_waitcnt vmcnt(0)')
            spin('L_sp1', 's64', '4500')
            a('global_load_dwordx4 v[8:11], v12, s[62:63] sc1')
            a('s_waitcnt vmcnt(0)')
            a('v_readfirstlane_b32 s93, v8')
            a('v_readfirstlane_b32 s97, v9')
            a('v_readfirstlane_b32 s98, v10')
            a('v_readfirstlane_b32 s99, v11')
            a('s_not_b32 s93, s93')
            if aop == 'max':
                a('s_sub_u32 s97, s97, s93')
            elif aop == 'min':
                a('s_not_b32 s99, s99')
                a('s_sub_u32 s97, s99, s93')
            else:
                a('s_lshr_b32 s98, s98, 8')
                a('s_and_b32 s97, s93, 0xfffff')
                a('s_sub_u32 s97, s98, s97')
            a('s_min_u32 s97, s97, 3000')
            a('s_mul_i32 s97, s97, 10')
            a('s_add_u32 s97, s97, 5000')
            spin('L_sp2', 's93', 's97')
            return
        if diag != 'stamp':
            return
        a('s_waitcnt vmcnt(0)')
        stamp()
        a('s_getreg_b32 s60, hwreg(HW_REG_XCC_ID)')
        a('s_waitcnt lgkmcnt(0)')
        a('v_mov_b32 v5, 0')
        for i in range(nst[0]):
            a('v_writelane_b32 v5, s%d, %d' % (64 + 2 * i, i))
        a('v_writelane_b32 v5, s60, 30')
        a('v_writelane_b32 v5, s%d, 31' % S_W)
        a('s_lshl_b32 s61, s2, 3')
        a('s_add_u32 s61, s61, s%d' % S_W)
        a('s_lshl_b32 s61, s61, 8')
        a('v_lshl_add_u32 v6, v0, 2, s61')
        a('global_store_dword v6, v5, s[62:63]')

    stamp()
    a('s_cmp_ge_u32 s2, %d' % NWG)
    a('s_cbranch_scc1 L_end')
    a('s_load_dwordx4 s[4:7], s[0:1], 0')
    a('s_load_dwordx4 s[8:11], s[0:1], 16')
    if diag == 'stamp':
        a('s_load_dwordx2 s[62:63], s[0:1], 40')
    a('v_lshrrev_b32 v5, 6, v0')
    a('v_and_b32 v0, 63, v0')
    a('v_readfirstlane_b32 s%d, v5' % S_W)
    if xmap == 1:
        a('s_and_b32 s60, s2, 7')
        a('s_lshr_b32 s61, s2, 3')
        a('s_lshl_b32 s60, s60, 5')
        a('s_add_u32 s2, s60, s61')
    elif xmap == 2:
        a('s_and_b32 s60, s2, 7')
        a('s_lshr_b32 s61, s2, 3')
        a('s_and_b32 s58, s61, 3')
        a('s_lshr_b32 s61, s61, 2')
        a('s_lshl_b32 s61, s61, 3')
        a('s_and_b32 s59, s60, 1')
        a('s_lshl_b32 s59, s59, 2')
        a('s_lshr_b32 s60, s60, 1')
        a('s_lshl_b32 s60, s60, 6')
        a('s_add_u32 s61, s61, s60')
        a('s_add_u32 s61, s61, s59')
        a('s_add_u32 s2, s61, s58')
    elif xmap == 3:
        a('s_bfe_u32 s60, s2, 0x40003')
        a('s_and_b32 s61, s2, 1')
        a('s_lshl_b32 s61, s61, 4')
        a('s_or_b32 s60, s60, s61')
        a('s_lshr_b32 s61, s2, 7')
        a('s_lshl_b32 s61, s61, 5')
        a('s_or_b32 s60, s60, s61')
        a('s_and_b32 s61, s2, 6')
        a('s_lshl_b32 s61, s61, 5')
        a('s_or_b32 s2, s60, s61')
    a('s_lshl_b32 s%d, s2, 16' % S_BASE)
    a('s_and_b32 s%d, s2, 7' % S_POS)
    a('s_movk_i32 s%d, 4096' % S_STR)
    a('s_movk_i32 s61, -8192')
    a('s_and_b32 s60, s2, %d' % (1 if alt else 0))
    a('s_cselect_b32 s%d, -4096, s%d' % (S_STR, S_STR))
    a('s_cselect_b32 s60, %d, 0' % (15 * 4096))
    a('s_cselect_b32 s61, s60, s61')
    a('s_cselect_b64 s[42:43], -1, 0')
    a('s_add_u32 s%d, s%d, s60' % (S_QO, S_BASE))
    a('s_add_u32 s%d, s%d, s61' % (S_KVO, S_BASE))
    a('v_lshrrev_b32 v6, 4, v0')
    a('v_and_b32 v7, 15, v0')
    a('s_cmp_lg_u32 s%d, 0' % S_W)
    a('s_cbranch_scc1 L_consumer')

    if prio:
        a('s_setprio %d' % prio)
    a('v_lshlrev_b32 v5, 1, v6')
    a('v_xor_b32 v5, v5, v7')
    a('v_lshlrev_b32 v5, 4, v5')
    a('v_lshl_add_u32 v1, v6, 8, v5')
    a('v_xor_b32 v2, 128, v1')
    a('v_mov_b32 v3, %d' % FLAG)
    a('s_add_u32 s45, s%d, s%d' % (S_KVO, S_STR))
    a('s_add_u32 s46, s45, s%d' % S_STR)
    a('s_cmp_eq_u32 s%d, 0' % S_POS)
    a('s_cselect_b32 s44, 0, s%d' % S_KVO)
    a('s_cselect_b32 s45, 0, s45')
    a('s_cselect_b32 s%d, 0, %d' % (S_KH + 2, NBYTES))
    a('s_cselect_b32 s%d, 0, %d' % (S_VH + 2, NBYTES))
    for b in (S_Q, S_K, S_V):
        a('s_mov_b32 s%d, %d' % (b + 2, NBYTES))
    for b in (S_Q, S_K, S_V, S_KH, S_VH):
        a('s_mov_b32 s%d, 0x20000' % (b + 3))
    a('s_mov_b32 m0, %d' % KV0)
    a('s_waitcnt lgkmcnt(0)')
    stamp()
    for b, p in ((S_KH, 6), (S_VH, 8), (S_Q, 4), (S_K, 6), (S_V, 8)):
        a('s_mov_b32 s%d, s%d' % (b, p))
        a('s_mov_b32 s%d, s%d' % (b + 1, p + 1))
    groups = []
    for e in range(18):
        if e >= 2:
            groups.append(('Q', e))
        groups.append(('K', e))
        groups.append(('V', e))
    insts = [(arr, e, i) for arr, e in groups for i in range(4)]
    last_of = {e: max(n for n, x in enumerate(insts) if x[1] == e) for e in range(18)}
    published = [1]
    barrier0 = [False]

    def publish(landed):
        e = max([1] + [e for e in range(2, 18) if last_of[e] < landed])
        if e > published[0]:
            a('v_mov_b32 v4, %d' % e)
            a('ds_write_b32 v3, v4')
            published[0] = e
            if e in (2, 5, 9, 13, 17):
                stamp()

    for n, (arr, e, i) in enumerate(insts):
        if n >= D and n % G == 0:
            if not barrier0[0]:
                a('s_barrier')
                barrier0[0] = True
            a('s_waitcnt vmcnt(%d)' % (D - G))
            publish(n - (D - G))
        if i == 0:
            if arr == 'K' and e in (11, 15):
                lab = 'L_free%d' % e
                if safe:
                    a('s_mov_b32 s56, 0')
                a('%s:' % lab)
                a('ds_read_b128 v[8:11], v3 offset:16')
                if safe:
                    a('s_add_u32 s56, s56, 1')
                    a('s_cmp_ge_u32 s56, 0x8000')
                    a('s_cbranch_scc1 %s_x' % lab)
                a('s_waitcnt lgkmcnt(0)')
                a('v_min_u32 v8, v8, v9')
                a('v_min3_u32 v8, v8, v10, v11')
                a('v_readfirstlane_b32 s50, v8')
                a('s_cmp_lt_u32 s50, %d' % (e - 9))
                a('s_cbranch_scc1 %s' % lab)
                if safe:
                    a('%s_x:' % lab)
            m0 = (e - 2) * 4096 if arr == 'Q' else KV0 + (e % NSLOT) * 8192 + (4096 if arr == 'V' else 0)
            if n:
                a('s_mov_b32 m0, %d' % m0)
            if arr == 'Q' and e > 2:
                a('s_add_u32 s%d, s%d, s%d' % (S_QO, S_QO, S_STR))
            if arr == 'K' and e > 2:
                a('s_add_u32 s46, s46, s%d' % S_STR)
        if arr == 'Q':
            r, so, fl = S_Q, S_QO, ld
        else:
            r = {('K', 0): S_K, ('K', 1): S_KH, ('V', 0): S_V, ('V', 1): S_VH}[(arr, int(e < 2))]
            so = 44 + min(e, 2)
            fl = ld_first if e < 2 else (ld_last if e >= 16 else ld)
        a('buffer_load_dwordx4 v%d, %s, s%d offen offset:%d%s lds' % (1 + (i & 1), srd(r), so, i * 1024, fl))
    stamp()
    for e in range(published[0] + 1, 18):
        a('s_waitcnt vmcnt(%d)' % (len(insts) - 1 - last_of[e]))
        publish(last_of[e] + 1)
    a('s_waitcnt lgkmcnt(0)')
    dump()
    a('s_endpgm')

    nst[0] = 1
    role[0] = 'C'
    a('L_consumer:')
    DONE = FLAG + 16
    S_STEP, S_X, S_Y, S_Z, S_QS, S_R, S_F, S_C, S_NEG = 44, 45, 46, 47, 48, 49, 50, 51, 52
    S_MASK = 28
    S_HQ, S_HG, S_STR4 = 53, 54, 55
    V_FLAG, V_LIN, V_ST0, V_ST1, V_M0, V_M1, V_T0, V_T1, V_T2 = 1, 2, 3, 4, 8, 9, 10, 11, 12
    C_K, C_V, C_O = 16, 20, 28
    A_Q, A_K, A_V, A_O = 32, 36, 48, 72
    R_Q, R_K, R_V = 76, 92, 140
    V_S, V_P, V_O = 188, 200, 208
    R_OUT = R_Q
    a('v_mov_b32 v%d, %d' % (V_FLAG, FLAG))
    a('v_mov_b32 v5, 0')
    a('ds_write_b32 v%d, v5' % V_FLAG)
    a('s_lshl_b32 s60, s%d, 2' % S_W)
    a('s_add_u32 s60, s60, %d' % (DONE - 4))
    a('v_mov_b32 v15, s60')
    a('ds_write_b32 v15, v5')
    a('v_lshlrev_b32 v%d, 4, v0' % V_LIN)
    a('v_xor_b32 v5, v7, v6')
    a('v_lshlrev_b32 v5, 4, v5')
    a('v_lshl_add_u32 v%d, v6, 8, v5' % V_ST0)
    a('v_xor_b32 v%d, 64, v%d' % (V_ST1, V_ST0))
    a('v_and_b32 v13, 7, v7')
    a('v_lshlrev_b32 v5, 1, v13')
    a('v_xor_b32 v5, v5, v6')
    a('v_lshlrev_b32 v5, 4, v5')
    a('v_lshl_add_u32 v%d, v7, 8, v5' % C_K)
    for s in range(1, 4):
        a('v_xor_b32 v%d, %d, v%d' % (C_K + s, 64 * s, C_K))
    a('v_lshrrev_b32 v14, 2, v0')
    a('v_and_b32 v5, 7, v14')
    a('v_lshlrev_b32 v5, 5, v5')
    a('v_lshl_add_u32 v5, v14, 8, v5')
    a('v_and_b32 v14, 3, v0')
    a('v_lshl_add_u32 v%d, v14, 3, v5' % C_V)
    for t in range(1, 8):
        a('v_xor_b32 v%d, %d, v%d' % (C_V + t, 32 * t, C_V))
    a('v_lshrrev_b32 v5, 1, v6')
    a('v_xor_b32 v5, v5, v13')
    a('v_lshlrev_b32 v5, 4, v5')
    a('v_lshl_add_u32 v5, v7, 8, v5')
    a('v_and_b32 v14, 1, v6')
    a('v_lshl_add_u32 v%d, v14, 3, v5' % C_O)
    for t in range(1, 4):
        a('v_xor_b32 v%d, %d, v%d' % (C_O + t, 32 * t, C_O))
    a('v_lshlrev_b32 v13, 2, v6')
    for r in range(4):
        a('v_add_u32 v5, %d, v13' % r)
        a('v_cmp_le_u32 vcc, v5, v7')
        a('s_xor_b64 s[%d:%d], vcc, s[42:43]' % (S_MASK + 2 * r, S_MASK + 2 * r + 1))
    a('v_mov_b32 v13, 0xffff')
    for w, vm in ((0, V_M0), (1, V_M1)):
        a('v_cndmask_b32 v5, 0, v13, s[%d:%d]' % (S_MASK + 4 * w, S_MASK + 4 * w + 1))
        a('v_cndmask_b32 v14, 0, v13, s[%d:%d]' % (S_MASK + 4 * w + 2, S_MASK + 4 * w + 3))
        a('v_lshl_or_b32 v%d, v14, 16, v5' % vm)
    a('s_mov_b32 s%d, %s' % (S_C, f32(math.log2(math.e) / math.sqrt(128.0))))
    a('s_cmp_eq_u32 s%d, 0' % S_POS)
    a('s_cselect_b32 s%d, %s, 0' % (S_NEG, f32(-1e30)))
    a('s_sub_u32 s60, s%d, 1' % S_W)
    a('s_add_u32 s%d, s60, 2' % S_STEP)
    a('s_lshl_b32 s%d, s60, 12' % S_QS)
    a('s_lshl_b32 s61, s60, 13')
    a('s_add_u32 s%d, s61, %d' % (S_X, KV0))
    a('s_add_u32 s%d, s61, %d' % (S_Y, KV0 + 8192))
    a('s_add_u32 s%d, s61, %d' % (S_Z, KV0 + 16384))
    a('s_mul_i32 s61, s60, s%d' % S_STR)
    a('s_add_u32 s%d, s%d, s61' % (S_HG, S_QO))
    a('s_mov_b32 s%d, s%d' % (S_HQ, S_QS))
    a('s_lshl_b32 s%d, s%d, 2' % (S_STR4, S_STR))
    a('s_mov_b32 s%d, 0' % S_R)
    a('s_mov_b32 s%d, %d' % (S_O + 2, NBYTES))
    a('s_mov_b32 s%d, 0x20000' % (S_O + 3))
    a('s_waitcnt lgkmcnt(0)')
    a('s_mov_b32 s%d, s10' % S_O)
    a('s_mov_b32 s%d, s11' % (S_O + 1))
    a('s_barrier')

    def poll(label, need, off=0):
        if safe:
            a('s_mov_b32 s56, 0')
        a('%s:' % label)
        a('ds_read_b32 v%d, v%d offset:%d' % (V_T0, V_FLAG, off))
        if safe:
            a('s_add_u32 s56, s56, 1')
            a('s_cmp_ge_u32 s56, 0x8000')
            a('s_cbranch_scc1 %s_x' % label)
        a('s_waitcnt lgkmcnt(0)')
        a('v_readfirstlane_b32 s%d, v%d' % (S_F, V_T0))
        a('s_cmp_lt_u32 s%d, %s' % (S_F, need))
        a('s_cbranch_scc1 %s' % label)
        if safe:
            a('%s_x:' % label)

    def store_tiles(n, regs):
        for k in range(n):
            a('v_add_u32 v%d, s%d, v%d' % (V_T1, S_HQ, V_LIN))
            for i in range(4):
                a('ds_read_b128 v[%d:%d], v%d offset:%d' % (regs + 16 * k + 4 * i, regs + 16 * k + 4 * i + 3, V_T1, 1024 * i))
            a('s_add_u32 s%d, s%d, %d' % (S_HQ, S_HQ, NC * 4096))
        for k in range(n):
            for i in range(4):
                a('s_waitcnt lgkmcnt(%d)' % (4 * n - 1 - (4 * k + i)))
                a('buffer_store_dwordx4 v[%d:%d], v%d, %s, s%d offen offset:%d%s' % (
                    regs + 16 * k + 4 * i, regs + 16 * k + 4 * i + 3, V_ST0 + (i & 1), srd(S_O), S_HG, 1024 * i, st))
            a('s_add_u32 s%d, s%d, s%d' % (S_HG, S_HG, S_STR4))

    def xreduce(op):
        for sw in ('v_permlane32_swap_b32', 'v_permlane16_swap_b32'):
            a('v_mov_b32 v%d, v%d' % (V_T1, V_T0))
            a('%s v%d, v%d' % (sw, V_T0, V_T1))
            a('%s v%d, v%d, v%d' % (op, V_T0, V_T0, V_T1))

    if storer:
        a('s_cmp_gt_u32 s%d, %d' % (S_W, NC))
        a('s_cbranch_scc1 L_storer')
    a('L_round:')
    if not interleave and not storer:
        a('s_cmp_lg_u32 s%d, 3' % S_R)
        a('s_cbranch_scc1 L_nohold')
        poll('L_pollh', '%d' % hold)
        stamp()
        store_tiles(3, R_V)
        stamp()
        a('L_nohold:')
    for s in range(4):
        a('v_add_u32 v%d, s%d, v%d' % (A_Q + s, S_QS, C_K + s))
        for x in range(3):
            a('v_add_u32 v%d, s%d, v%d' % (A_K + 4 * x + s, S_X + x, C_K + s))
    for t in range(8):
        for x in range(3):
            a('v_add_u32 v%d, s%d, v%d' % (A_V + 8 * x + t, S_X + x, C_V + t))
    for t in range(4):
        a('v_add_u32 v%d, s%d, v%d' % (A_O + t, S_QS, C_O + t))
    a('s_cmp_lt_u32 s%d, 4' % S_STEP)
    a('s_cselect_b32 s60, s%d, 0' % S_NEG)
    a('s_cmp_lt_u32 s%d, 3' % S_STEP)
    a('s_cselect_b32 s61, s%d, 0' % S_NEG)
    for r in range(4):
        a('v_mov_b32 v%d, s60' % (V_S + r))
        a('v_mov_b32 v%d, s61' % (V_S + 4 + r))
    poll('L_poll', 's%d' % S_STEP)
    if diag == 'stamp':
        a('s_memrealtime s[90:91]')
        a('s_waitcnt lgkmcnt(0)')
    for s in range(4):
        a('ds_read_b128 v[%d:%d], v%d' % (R_Q + 4 * s, R_Q + 4 * s + 3, A_Q + s))
        for x in range(3):
            if s == 3 and x == 2:
                a('s_waitcnt lgkmcnt(11)')
            a('ds_read_b128 v[%d:%d], v%d' % (R_K + 16 * x + 4 * s, R_K + 16 * x + 4 * s + 3, A_K + 4 * x + s))
    vreads = [(t, x) for t in range(8) for x in range(3)]

    def vread(n):
        for _ in range(n):
            t, x = vreads.pop(0)
            a('ds_read_b64_tr_b16 v[%d:%d], v%d offset:4096' % (R_V + 6 * t + 2 * x, R_V + 6 * t + 2 * x + 1, A_V + 8 * x + t))

    for s in range(4):
        if s:
            a('s_waitcnt lgkmcnt(%d)' % (12 - 4 * s + 3 * s))
        for x in range(3):
            d = 'v[%d:%d]' % (V_S + 4 * x, V_S + 4 * x + 3)
            c = '0' if (s == 0 and x == 2) else d
            a('v_mfma_f32_16x16x32_bf16 %s, v[%d:%d], v[%d:%d], %s' % (
                d, R_K + 16 * x + 4 * s, R_K + 16 * x + 4 * s + 3, R_Q + 4 * s, R_Q + 4 * s + 3, c))
            vread(1)
    a('s_waitcnt lgkmcnt(3)')
    vread(12)
    SA, SB, SC = V_S, V_S + 4, V_S + 8
    for r in range(4):
        a('v_cndmask_b32 v%d, v%d, v%d, s[%d:%d]' % (SA + r, SA + r, SC + r, S_MASK + 2 * r, S_MASK + 2 * r + 1))
    a('v_max3_f32 v%d, v%d, v%d, v%d' % (V_T0, SB, SB + 1, SB + 2))
    a('v_max3_f32 v%d, v%d, v%d, v%d' % (V_T1, SB + 3, SA, SA + 1))
    a('v_max3_f32 v%d, v%d, v%d, v%d' % (V_T0, V_T0, SA + 2, SA + 3))
    a('v_max_f32 v%d, v%d, v%d' % (V_T0, V_T0, V_T1))
    xreduce('v_max_f32')
    a('v_mul_f32 v%d, s%d, v%d' % (V_T0, S_C, V_T0))
    for r in range(8):
        a('v_fma_f32 v%d, v%d, s%d, -v%d' % (SA + r, SA + r, S_C, V_T0))
    for r in range(8):
        a('v_exp_f32 v%d, v%d' % (SA + r, SA + r))
    a('v_add_f32 v%d, v%d, v%d' % (V_T0, SA, SA + 1))
    a('v_add_f32 v%d, v%d, v%d' % (V_T1, SA + 2, SA + 3))
    a('v_add_f32 v%d, v%d, v%d' % (V_T2, SA + 4, SA + 5))
    a('v_add_f32 v%d, v%d, v%d' % (V_T0, V_T0, V_T1))
    a('v_add_f32 v%d, v%d, v%d' % (V_T1, SA + 6, SA + 7))
    a('v_add_f32 v%d, v%d, v%d' % (V_T0, V_T0, V_T2))
    a('v_add_f32 v%d, v%d, v%d' % (V_T0, V_T0, V_T1))
    xreduce('v_add_f32')
    a('v_rcp_f32 v%d, v%d' % (V_T0, V_T0))
    for r in range(8):
        a('v_mul_f32 v%d, v%d, v%d' % (SA + r, SA + r, V_T0))
    PA, PB, PC = V_P, V_P + 2, V_P + 4
    for w in range(2):
        a('v_cvt_pk_bf16_f32 v%d, v%d, v%d' % (PA + w, SA + 2 * w, SA + 2 * w + 1))
    for w in range(2):
        a('v_cvt_pk_bf16_f32 v%d, v%d, v%d' % (PB + w, SB + 2 * w, SB + 2 * w + 1))
    for w, vm in ((0, V_M0), (1, V_M1)):
        a('v_and_b32 v%d, v%d, v%d' % (PC + w, PA + w, vm))
    for w in range(2):
        a('v_xor_b32 v%d, v%d, v%d' % (PA + w, PA + w, PC + w))
    a('s_waitcnt lgkmcnt(0)')
    for t in range(8):
        a('v_mfma_f32_16x16x32_bf16 v[%d:%d], v[%d:%d], v[%d:%d], 0' % (
            V_O + 4 * t, V_O + 4 * t + 3, R_V + 6 * t, R_V + 6 * t + 3, PA, PA + 3))

    def opack(t):
        a('v_cvt_pk_bf16_f32 v%d, v%d, v%d' % (R_OUT + 2 * t, V_O + 4 * t, V_O + 4 * t + 1))
        a('v_cvt_pk_bf16_f32 v%d, v%d, v%d' % (R_OUT + 2 * t + 1, V_O + 4 * t + 2, V_O + 4 * t + 3))
        a('ds_write_b64 v%d, v[%d:%d] offset:%d' % (A_O + (t & 3), R_OUT + 2 * t, R_OUT + 2 * t + 1, 128 * (t >> 2)))

    for t in range(8):
        a('v_mfma_f32_16x16x16_bf16 v[%d:%d], v[%d:%d], v[%d:%d], v[%d:%d]' % (
            V_O + 4 * t, V_O + 4 * t + 3, R_V + 6 * t + 4, R_V + 6 * t + 5, PC, PC + 1, V_O + 4 * t, V_O + 4 * t + 3))
    for t in range(8):
        opack(t)
    a('v_mov_b32 v%d, s%d' % (V_T0, S_STEP))
    a('ds_write_b32 v15, v%d' % V_T0)
    if interleave:
        store_tiles(1, R_K)
    a('s_add_u32 s%d, s%d, %d' % (S_STEP, S_STEP, NC))
    a('s_add_u32 s%d, s%d, %d' % (S_QS, S_QS, NC * 4096))
    for x in range(3):
        a('s_add_u32 s%d, s%d, %d' % (S_X + x, S_X + x, NC * 8192))
        a('s_cmp_ge_u32 s%d, %d' % (S_X + x, FLAG))
        a('s_cselect_b32 s60, %d, 0' % (NSLOT * 8192))
        a('s_sub_u32 s%d, s%d, s60' % (S_X + x, S_X + x))
    a('s_add_u32 s%d, s%d, 1' % (S_R, S_R))
    a('s_cmp_lt_u32 s%d, 4' % S_R)
    a('s_cbranch_scc1 L_round')
    if diag == 'stamp':
        a('s_mov_b32 s%d, s90' % (64 + 2 * nst[0]))
        nst[0] += 1
    stamp()
    if diag == 'stamp':
        a('s_waitcnt lgkmcnt(0)')
    if storer and nst_tiles < 16:
        a('s_mul_i32 s60, s%d, 3' % S_STR4)
        a('s_add_u32 s%d, s%d, s60' % (S_HG, S_HG))
        a('s_add_u32 s%d, s%d, %d' % (S_HQ, S_HQ, 3 * NC * 4096))
    if not interleave and (not storer or nst_tiles < 16):
        store_tiles(1, R_K)
    stamp()
    a('s_waitcnt lgkmcnt(0)')
    dump()
    if storer:
        a('s_endpgm')
        nst[0] = 1
        role[0] = 'S'
        a('L_storer:')
        poll('L_polls', '%d' % hold)
        stamp()
        n = 0
        for k in range(nst_tiles):
            poll('L_pd%d' % k, '%d' % (k + 2), off=16 + 4 * (k % NC))
            b = R_Q + 16 * (k & 1)
            for i in range(4):
                a('ds_read_b128 v[%d:%d], v%d offset:%d' % (b + 4 * i, b + 4 * i + 3, V_LIN, 4096 * k + 1024 * i))
            for i in range(4):
                a('s_waitcnt lgkmcnt(%d)%s' % (3 - i, ' vmcnt(%d)' % (W - 1) if n >= W else ''))
                a('buffer_store_dwordx4 v[%d:%d], v%d, %s, s%d offen offset:%d%s' % (
                    b + 4 * i, b + 4 * i + 3, V_ST0 + (i & 1), srd(S_O), S_QO, 1024 * i, st))
                n += 1
            a('s_add_u32 s%d, s%d, s%d' % (S_QO, S_QO, S_STR))
            if k % 4 == 3:
                stamp()
        dump()
    a('L_end:')
    a('s_endpgm')
    return finish(a, NWG, 64 * (NC + 1 + storer), LDS)


if __name__ == '__main__':
    out = sys.argv[1]
    kw = {}
    for x in sys.argv[2:]:
        k, v = x.split('=')
        try:
            v = int(v)
        except ValueError:
            v = v.replace('+', ' ')
        kw[k] = v
    s, info = gen(**kw)
    open(out, 'w').write(s)
    print(out, info)
```

```python
import sys
import math
import struct
from asmlib import Asm, finish

NBYTES = 32 * 2048 * 128 * 2


def f32(x):
    return '0x%08x' % struct.unpack('<I', struct.pack('<f', x))[0]


def gen(D=32, G=4, xmap=1, alt=1, ld=' nt', ld_first=None, ld_last=None, st=' sc1', hold=13, diag='', prio=3,
        interleave=0, safe=1, storer=0, W=16, nst_tiles=16, arole='L', aidx=0, aop='max', aref=-1, early=0):
    a = Asm()
    NWG = 256
    NC = 4
    NSLOT = 11
    KV0 = 65536
    FLAG = KV0 + NSLOT * 8192
    LDS = FLAG + 256
    if ld_first is None:
        ld_first = ld
    if ld_last is None:
        ld_last = ld
    S_Q, S_K, S_V, S_O, S_KH, S_VH = 12, 16, 20, 24, 28, 32
    srd = lambda b: 's[%d:%d]' % (b, b + 3)
    S_W, S_BASE, S_STR, S_KVO, S_QO, S_POS = 3, 36, 37, 38, 39, 40
    nst = [0]

    role = ['L']

    def stamp():
        if diag == 'stamp' or (diag == 'amp' and (nst[0] == 0 or (role[0] == arole and nst[0] in (aidx, aref)))):
            a('s_memrealtime s[%d:%d]' % (64 + 2 * nst[0], 65 + 2 * nst[0]))
        nst[0] += 1

    def spin(lab, ref, lim):
        a('%s:' % lab)
        a('s_memrealtime s[94:95]')
        a('s_waitcnt lgkmcnt(0)')
        a('s_sub_u32 s96, s94, %s' % ref)
        a('s_cmp_lt_u32 s96, %s' % lim)
        a('s_cbranch_scc1 %s' % lab)

    def dump():
        if diag == 'amp' and role[0] == arole:
            a('s_waitcnt vmcnt(0)')
            stamp()
            a('s_load_dwordx2 s[62:63], s[0:1], 32')
            a('s_waitcnt lgkmcnt(0)')
            spin('L_sp0', 's64', '2000')
            a('s_not_b32 s93, s64')
            if aref >= 0:
                a('s_sub_u32 s%d, s%d, s%d' % (64 + 2 * aidx, 64 + 2 * aidx, 64 + 2 * aref))
            a('s_and_b32 s92, s%d, 0xfffff' % (64 + 2 * aidx))
            a('v_mov_b32 v8, s93')
            a('v_mov_b32 v9, s%d' % (64 + 2 * aidx))
            a('v_mov_b32 v10, s92')
            a('v_not_b32 v11, v9')
            a('v_mov_b32 v12, 0')
            a('s_mov_b64 exec, 1')
            a('global_atomic_umax v12, v8, s[62:63]')
            a('global_atomic_umax v12, v9, s[62:63] offset:4')
            a('global_atomic_add v12, v10, s[62:63] offset:8')
            a('global_atomic_umax v12, v11, s[62:63] offset:12')
            a('s_mov_b64 exec, -1')
            a('s_waitcnt vmcnt(0)')
            spin('L_sp1', 's64', '4500')
            a('global_load_dwordx4 v[8:11], v12, s[62:63] sc1')
            a('s_waitcnt vmcnt(0)')
            a('v_readfirstlane_b32 s93, v8')
            a('v_readfirstlane_b32 s97, v9')
            a('v_readfirstlane_b32 s98, v10')
            a('v_readfirstlane_b32 s99, v11')
            a('s_not_b32 s93, s93')
            if aref >= 0:
                if aop == 'avg':
                    a('s_lshr_b32 s97, s98, 8')
                elif aop == 'min':
                    a('s_not_b32 s97, s99')
            elif aop == 'max':
                a('s_sub_u32 s97, s97, s93')
            elif aop == 'min':
                a('s_not_b32 s99, s99')
                a('s_sub_u32 s97, s99, s93')
            else:
                a('s_lshr_b32 s98, s98, 8')
                a('s_and_b32 s97, s93, 0xfffff')
                a('s_sub_u32 s97, s98, s97')
            a('s_min_u32 s97, s97, 3000')
            a('s_mul_i32 s97, s97, 10')
            a('s_add_u32 s97, s97, 5000')
            spin('L_sp2', 's93', 's97')
            return
        if diag != 'stamp':
            return
        a('s_waitcnt vmcnt(0)')
        stamp()
        a('s_getreg_b32 s60, hwreg(HW_REG_XCC_ID)')
        a('s_waitcnt lgkmcnt(0)')
        a('v_mov_b32 v5, 0')
        for i in range(nst[0]):
            a('v_writelane_b32 v5, s%d, %d' % (64 + 2 * i, i))
        a('v_writelane_b32 v5, s60, 30')
        a('v_writelane_b32 v5, s%d, 31' % S_W)
        a('s_lshl_b32 s61, s2, 3')
        a('s_add_u32 s61, s61, s%d' % S_W)
        a('s_lshl_b32 s61, s61, 8')
        a('v_lshl_add_u32 v6, v0, 2, s61')
        a('global_store_dword v6, v5, s[62:63]')

    stamp()
    a('s_cmp_ge_u32 s2, %d' % NWG)
    a('s_cbranch_scc1 L_end')
    a('s_load_dwordx4 s[4:7], s[0:1], 0')
    a('s_load_dwordx4 s[8:11], s[0:1], 16')
    if diag == 'stamp':
        a('s_load_dwordx2 s[62:63], s[0:1], 40')
    a('v_lshrrev_b32 v5, 6, v0')
    a('v_and_b32 v0, 63, v0')
    a('v_readfirstlane_b32 s%d, v5' % S_W)
    if xmap == 1:
        a('s_and_b32 s60, s2, 7')
        a('s_lshr_b32 s61, s2, 3')
        a('s_lshl_b32 s60, s60, 5')
        a('s_add_u32 s2, s60, s61')
    elif xmap == 2:
        a('s_and_b32 s60, s2, 7')
        a('s_lshr_b32 s61, s2, 3')
        a('s_and_b32 s58, s61, 3')
        a('s_lshr_b32 s61, s61, 2')
        a('s_lshl_b32 s61, s61, 3')
        a('s_and_b32 s59, s60, 1')
        a('s_lshl_b32 s59, s59, 2')
        a('s_lshr_b32 s60, s60, 1')
        a('s_lshl_b32 s60, s60, 6')
        a('s_add_u32 s61, s61, s60')
        a('s_add_u32 s61, s61, s59')
        a('s_add_u32 s2, s61, s58')
    elif xmap == 3:
        a('s_bfe_u32 s60, s2, 0x40003')
        a('s_and_b32 s61, s2, 1')
        a('s_lshl_b32 s61, s61, 4')
        a('s_or_b32 s60, s60, s61')
        a('s_lshr_b32 s61, s2, 7')
        a('s_lshl_b32 s61, s61, 5')
        a('s_or_b32 s60, s60, s61')
        a('s_and_b32 s61, s2, 6')
        a('s_lshl_b32 s61, s61, 5')
        a('s_or_b32 s2, s60, s61')
    a('s_lshl_b32 s%d, s2, 16' % S_BASE)
    a('s_and_b32 s%d, s2, 7' % S_POS)
    a('s_movk_i32 s%d, 4096' % S_STR)
    a('s_movk_i32 s61, -8192')
    a('s_and_b32 s60, s2, %d' % (1 if alt else 0))
    a('s_cselect_b32 s%d, -4096, s%d' % (S_STR, S_STR))
    a('s_cselect_b32 s60, %d, 0' % (15 * 4096))
    a('s_cselect_b32 s61, s60, s61')
    a('s_cselect_b64 s[42:43], -1, 0')
    a('s_add_u32 s%d, s%d, s60' % (S_QO, S_BASE))
    a('s_add_u32 s%d, s%d, s61' % (S_KVO, S_BASE))
    a('v_lshrrev_b32 v6, 4, v0')
    a('v_and_b32 v7, 15, v0')
    a('s_cmp_lg_u32 s%d, 0' % S_W)
    a('s_cbranch_scc1 L_consumer')

    if prio:
        a('s_setprio %d' % prio)
    a('v_lshlrev_b32 v5, 1, v6')
    a('v_xor_b32 v5, v5, v7')
    a('v_lshlrev_b32 v5, 4, v5')
    a('v_lshl_add_u32 v1, v6, 8, v5')
    a('v_xor_b32 v2, 128, v1')
    a('v_mov_b32 v3, %d' % FLAG)
    a('s_add_u32 s45, s%d, s%d' % (S_KVO, S_STR))
    a('s_add_u32 s46, s45, s%d' % S_STR)
    a('s_cmp_eq_u32 s%d, 0' % S_POS)
    a('s_cselect_b32 s44, 0, s%d' % S_KVO)
    a('s_cselect_b32 s45, 0, s45')
    a('s_cselect_b32 s%d, 0, %d' % (S_KH + 2, NBYTES))
    a('s_cselect_b32 s%d, 0, %d' % (S_VH + 2, NBYTES))
    for b in (S_Q, S_K, S_V):
        a('s_mov_b32 s%d, %d' % (b + 2, NBYTES))
    for b in (S_Q, S_K, S_V, S_KH, S_VH):
        a('s_mov_b32 s%d, 0x20000' % (b + 3))
    a('s_mov_b32 m0, %d' % KV0)
    a('s_waitcnt lgkmcnt(0)')
    stamp()
    for b, p in ((S_KH, 6), (S_VH, 8), (S_Q, 4), (S_K, 6), (S_V, 8)):
        a('s_mov_b32 s%d, s%d' % (b, p))
        a('s_mov_b32 s%d, s%d' % (b + 1, p + 1))
    groups = []
    for e in range(18):
        if e >= 2:
            groups.append(('Q', e))
        groups.append(('K', e))
        groups.append(('V', e))
    insts = [(arr, e, i) for arr, e in groups for i in range(4)]
    last_of = {e: max(n for n, x in enumerate(insts) if x[1] == e) for e in range(18)}
    published = [1]
    barrier0 = [False]

    def publish(landed):
        e = max([1] + [e for e in range(2, 18) if last_of[e] < landed])
        if e > published[0]:
            a('v_mov_b32 v4, %d' % e)
            a('ds_write_b32 v3, v4')
            published[0] = e
            if e in (2, 5, 9, 13, 17):
                stamp()

    for n, (arr, e, i) in enumerate(insts):
        if n >= D and n % G == 0:
            if not barrier0[0]:
                a('s_barrier')
                barrier0[0] = True
            a('s_waitcnt vmcnt(%d)' % (D - G))
            publish(n - (D - G))
        if i == 0:
            if arr == 'K' and e in (11, 15):
                lab = 'L_free%d' % e
                if safe:
                    a('s_mov_b32 s56, 0')
                a('%s:' % lab)
                a('ds_read_b128 v[8:11], v3 offset:16')
                if safe:
                    a('s_add_u32 s56, s56, 1')
                    a('s_cmp_ge_u32 s56, 0x8000')
                    a('s_cbranch_scc1 %s_x' % lab)
                a('s_waitcnt lgkmcnt(0)')
                a('v_min_u32 v8, v8, v9')
                a('v_min3_u32 v8, v8, v10, v11')
                a('v_readfirstlane_b32 s50, v8')
                a('s_cmp_lt_u32 s50, %d' % (e - 9))
                a('s_cbranch_scc1 %s' % lab)
                if safe:
                    a('%s_x:' % lab)
            m0 = (e - 2) * 4096 if arr == 'Q' else KV0 + (e % NSLOT) * 8192 + (4096 if arr == 'V' else 0)
            if n:
                a('s_mov_b32 m0, %d' % m0)
            if arr == 'Q' and e > 2:
                a('s_add_u32 s%d, s%d, s%d' % (S_QO, S_QO, S_STR))
            if arr == 'K' and e > 2:
                a('s_add_u32 s46, s46, s%d' % S_STR)
        if arr == 'Q':
            r, so, fl = S_Q, S_QO, ld
        else:
            r = {('K', 0): S_K, ('K', 1): S_KH, ('V', 0): S_V, ('V', 1): S_VH}[(arr, int(e < 2))]
            so = 44 + min(e, 2)
            fl = ld_first if e < 2 else (ld_last if e >= 16 else ld)
        a('buffer_load_dwordx4 v%d, %s, s%d offen offset:%d%s lds' % (1 + (i & 1), srd(r), so, i * 1024, fl))
    stamp()
    for e in range(published[0] + 1, 18):
        a('s_waitcnt vmcnt(%d)' % (len(insts) - 1 - last_of[e]))
        publish(last_of[e] + 1)
    a('s_waitcnt lgkmcnt(0)')
    dump()
    a('s_endpgm')

    nst[0] = 1
    role[0] = 'C'
    a('L_consumer:')
    DONE = FLAG + 16
    S_STEP, S_X, S_Y, S_Z, S_QS, S_R, S_F, S_C, S_NEG = 44, 45, 46, 47, 48, 49, 50, 51, 52
    S_MASK = 28
    S_HQ, S_HG, S_STR4 = 53, 54, 55
    V_FLAG, V_LIN, V_ST0, V_ST1, V_M0, V_M1, V_T0, V_T1, V_T2 = 1, 2, 3, 4, 8, 9, 10, 11, 12
    C_K, C_V, C_O = 16, 20, 28
    A_Q, A_K, A_V, A_O = 32, 36, 48, 72
    R_Q, R_K, R_V = 76, 92, 140
    V_S, V_P, V_O = 188, 200, 208
    R_OUT = R_Q
    a('v_mov_b32 v%d, %d' % (V_FLAG, FLAG))
    a('v_mov_b32 v5, 0')
    a('ds_write_b32 v%d, v5' % V_FLAG)
    a('s_lshl_b32 s60, s%d, 2' % S_W)
    a('s_add_u32 s60, s60, %d' % (DONE - 4))
    a('v_mov_b32 v15, s60')
    a('ds_write_b32 v15, v5')
    a('v_lshlrev_b32 v%d, 4, v0' % V_LIN)
    a('v_xor_b32 v5, v7, v6')
    a('v_lshlrev_b32 v5, 4, v5')
    a('v_lshl_add_u32 v%d, v6, 8, v5' % V_ST0)
    a('v_xor_b32 v%d, 64, v%d' % (V_ST1, V_ST0))
    a('v_and_b32 v13, 7, v7')
    a('v_lshlrev_b32 v5, 1, v13')
    a('v_xor_b32 v5, v5, v6')
    a('v_lshlrev_b32 v5, 4, v5')
    a('v_lshl_add_u32 v%d, v7, 8, v5' % C_K)
    for s in range(1, 4):
        a('v_xor_b32 v%d, %d, v%d' % (C_K + s, 64 * s, C_K))
    a('v_lshrrev_b32 v14, 2, v0')
    a('v_and_b32 v5, 7, v14')
    a('v_lshlrev_b32 v5, 5, v5')
    a('v_lshl_add_u32 v5, v14, 8, v5')
    a('v_and_b32 v14, 3, v0')
    a('v_lshl_add_u32 v%d, v14, 3, v5' % C_V)
    for t in range(1, 8):
        a('v_xor_b32 v%d, %d, v%d' % (C_V + t, 32 * t, C_V))
    a('v_lshrrev_b32 v5, 1, v6')
    a('v_xor_b32 v5, v5, v13')
    a('v_lshlrev_b32 v5, 4, v5')
    a('v_lshl_add_u32 v5, v7, 8, v5')
    a('v_and_b32 v14, 1, v6')
    a('v_lshl_add_u32 v%d, v14, 3, v5' % C_O)
    for t in range(1, 4):
        a('v_xor_b32 v%d, %d, v%d' % (C_O + t, 32 * t, C_O))
    a('v_lshlrev_b32 v13, 2, v6')
    for r in range(4):
        a('v_add_u32 v5, %d, v13' % r)
        a('v_cmp_le_u32 vcc, v5, v7')
        a('s_xor_b64 s[%d:%d], vcc, s[42:43]' % (S_MASK + 2 * r, S_MASK + 2 * r + 1))
    a('v_mov_b32 v13, 0xffff')
    for w, vm in ((0, V_M0), (1, V_M1)):
        a('v_cndmask_b32 v5, 0, v13, s[%d:%d]' % (S_MASK + 4 * w, S_MASK + 4 * w + 1))
        a('v_cndmask_b32 v14, 0, v13, s[%d:%d]' % (S_MASK + 4 * w + 2, S_MASK + 4 * w + 3))
        a('v_lshl_or_b32 v%d, v14, 16, v5' % vm)
    a('s_mov_b32 s%d, %s' % (S_C, f32(math.log2(math.e) / math.sqrt(128.0))))
    a('s_cmp_eq_u32 s%d, 0' % S_POS)
    a('s_cselect_b32 s%d, %s, 0' % (S_NEG, f32(-1e30)))
    a('s_sub_u32 s60, s%d, 1' % S_W)
    a('s_add_u32 s%d, s60, 2' % S_STEP)
    a('s_lshl_b32 s%d, s60, 12' % S_QS)
    a('s_lshl_b32 s61, s60, 13')
    a('s_add_u32 s%d, s61, %d' % (S_X, KV0))
    a('s_add_u32 s%d, s61, %d' % (S_Y, KV0 + 8192))
    a('s_add_u32 s%d, s61, %d' % (S_Z, KV0 + 16384))
    a('s_mul_i32 s61, s60, s%d' % S_STR)
    a('s_add_u32 s%d, s%d, s61' % (S_HG, S_QO))
    a('s_mov_b32 s%d, s%d' % (S_HQ, S_QS))
    a('s_lshl_b32 s%d, s%d, 2' % (S_STR4, S_STR))
    a('s_mov_b32 s%d, 0' % S_R)
    a('s_mov_b32 s%d, %d' % (S_O + 2, NBYTES))
    a('s_mov_b32 s%d, 0x20000' % (S_O + 3))
    a('s_waitcnt lgkmcnt(0)')
    a('s_mov_b32 s%d, s10' % S_O)
    a('s_mov_b32 s%d, s11' % (S_O + 1))
    a('s_barrier')

    def poll(label, need, off=0):
        if safe:
            a('s_mov_b32 s56, 0')
        a('%s:' % label)
        a('ds_read_b32 v%d, v%d offset:%d' % (V_T0, V_FLAG, off))
        if safe:
            a('s_add_u32 s56, s56, 1')
            a('s_cmp_ge_u32 s56, 0x8000')
            a('s_cbranch_scc1 %s_x' % label)
        a('s_waitcnt lgkmcnt(0)')
        a('v_readfirstlane_b32 s%d, v%d' % (S_F, V_T0))
        a('s_cmp_lt_u32 s%d, %s' % (S_F, need))
        a('s_cbranch_scc1 %s' % label)
        if safe:
            a('%s_x:' % label)

    def store_tiles(n, regs):
        for k in range(n):
            a('v_add_u32 v%d, s%d, v%d' % (V_T1, S_HQ, V_LIN))
            for i in range(4):
                a('ds_read_b128 v[%d:%d], v%d offset:%d' % (regs + 16 * k + 4 * i, regs + 16 * k + 4 * i + 3, V_T1, 1024 * i))
            a('s_add_u32 s%d, s%d, %d' % (S_HQ, S_HQ, NC * 4096))
        for k in range(n):
            for i in range(4):
                a('s_waitcnt lgkmcnt(%d)' % (4 * n - 1 - (4 * k + i)))
                a('buffer_store_dwordx4 v[%d:%d], v%d, %s, s%d offen offset:%d%s' % (
                    regs + 16 * k + 4 * i, regs + 16 * k + 4 * i + 3, V_ST0 + (i & 1), srd(S_O), S_HG, 1024 * i, st))
            a('s_add_u32 s%d, s%d, s%d' % (S_HG, S_HG, S_STR4))

    def xreduce(op):
        for sw in ('v_permlane32_swap_b32', 'v_permlane16_swap_b32'):
            a('v_mov_b32 v%d, v%d' % (V_T1, V_T0))
            a('%s v%d, v%d' % (sw, V_T0, V_T1))
            a('%s v%d, v%d, v%d' % (op, V_T0, V_T0, V_T1))

    if storer:
        a('s_cmp_gt_u32 s%d, %d' % (S_W, NC))
        a('s_cbranch_scc1 L_storer')
    a('L_round:')
    if not interleave and not storer:
        a('s_cmp_lg_u32 s%d, 3' % S_R)
        a('s_cbranch_scc1 L_nohold')
        poll('L_pollh', '%d' % hold)
        stamp()
        store_tiles(3, R_V)
        stamp()
        a('L_nohold:')
    for s in range(4):
        a('v_add_u32 v%d, s%d, v%d' % (A_Q + s, S_QS, C_K + s))
        for x in range(3):
            a('v_add_u32 v%d, s%d, v%d' % (A_K + 4 * x + s, S_X + x, C_K + s))
    for t in range(8):
        for x in range(3):
            a('v_add_u32 v%d, s%d, v%d' % (A_V + 8 * x + t, S_X + x, C_V + t))
    for t in range(4):
        a('v_add_u32 v%d, s%d, v%d' % (A_O + t, S_QS, C_O + t))
    a('s_cmp_lt_u32 s%d, 4' % S_STEP)
    a('s_cselect_b32 s60, s%d, 0' % S_NEG)
    a('s_cmp_lt_u32 s%d, 3' % S_STEP)
    a('s_cselect_b32 s61, s%d, 0' % S_NEG)
    for r in range(4):
        a('v_mov_b32 v%d, s60' % (V_S + r))
        a('v_mov_b32 v%d, s61' % (V_S + 4 + r))
    poll('L_poll', 's%d' % S_STEP)
    if diag == 'stamp':
        a('s_memrealtime s[90:91]')
        a('s_waitcnt lgkmcnt(0)')
    for s in range(4):
        a('ds_read_b128 v[%d:%d], v%d' % (R_Q + 4 * s, R_Q + 4 * s + 3, A_Q + s))
        for x in range(3):
            if s == 3 and x == 2:
                a('s_waitcnt lgkmcnt(11)')
            a('ds_read_b128 v[%d:%d], v%d' % (R_K + 16 * x + 4 * s, R_K + 16 * x + 4 * s + 3, A_K + 4 * x + s))
    vreads = [(t, x) for t in range(8) for x in range(3)]

    def vread(n):
        for _ in range(n):
            t, x = vreads.pop(0)
            a('ds_read_b64_tr_b16 v[%d:%d], v%d offset:4096' % (R_V + 6 * t + 2 * x, R_V + 6 * t + 2 * x + 1, A_V + 8 * x + t))

    for s in range(4):
        if s:
            a('s_waitcnt lgkmcnt(%d)' % (12 - 4 * s + 3 * s))
        for x in range(3):
            d = 'v[%d:%d]' % (V_S + 4 * x, V_S + 4 * x + 3)
            c = '0' if (s == 0 and x == 2) else d
            a('v_mfma_f32_16x16x32_bf16 %s, v[%d:%d], v[%d:%d], %s' % (
                d, R_K + 16 * x + 4 * s, R_K + 16 * x + 4 * s + 3, R_Q + 4 * s, R_Q + 4 * s + 3, c))
            vread(1)
    a('s_waitcnt lgkmcnt(3)')
    vread(12)
    SA, SB, SC = V_S, V_S + 4, V_S + 8
    for r in range(4):
        a('v_cndmask_b32 v%d, v%d, v%d, s[%d:%d]' % (SA + r, SA + r, SC + r, S_MASK + 2 * r, S_MASK + 2 * r + 1))
    a('v_max3_f32 v%d, v%d, v%d, v%d' % (V_T0, SB, SB + 1, SB + 2))
    a('v_max3_f32 v%d, v%d, v%d, v%d' % (V_T1, SB + 3, SA, SA + 1))
    a('v_max3_f32 v%d, v%d, v%d, v%d' % (V_T0, V_T0, SA + 2, SA + 3))
    a('v_max_f32 v%d, v%d, v%d' % (V_T0, V_T0, V_T1))
    xreduce('v_max_f32')
    a('v_mul_f32 v%d, s%d, v%d' % (V_T0, S_C, V_T0))
    for r in range(8):
        a('v_fma_f32 v%d, v%d, s%d, -v%d' % (SA + r, SA + r, S_C, V_T0))
    for r in range(8):
        a('v_exp_f32 v%d, v%d' % (SA + r, SA + r))
    a('v_add_f32 v%d, v%d, v%d' % (V_T0, SA, SA + 1))
    a('v_add_f32 v%d, v%d, v%d' % (V_T1, SA + 2, SA + 3))
    a('v_add_f32 v%d, v%d, v%d' % (V_T2, SA + 4, SA + 5))
    a('v_add_f32 v%d, v%d, v%d' % (V_T0, V_T0, V_T1))
    a('v_add_f32 v%d, v%d, v%d' % (V_T1, SA + 6, SA + 7))
    a('v_add_f32 v%d, v%d, v%d' % (V_T0, V_T0, V_T2))
    a('v_add_f32 v%d, v%d, v%d' % (V_T0, V_T0, V_T1))
    xreduce('v_add_f32')
    a('v_rcp_f32 v%d, v%d' % (V_T0, V_T0))
    for r in range(8):
        a('v_mul_f32 v%d, v%d, v%d' % (SA + r, SA + r, V_T0))
    PA, PB, PC = V_P, V_P + 2, V_P + 4
    for w in range(2):
        a('v_cvt_pk_bf16_f32 v%d, v%d, v%d' % (PA + w, SA + 2 * w, SA + 2 * w + 1))
    for w in range(2):
        a('v_cvt_pk_bf16_f32 v%d, v%d, v%d' % (PB + w, SB + 2 * w, SB + 2 * w + 1))
    for w, vm in ((0, V_M0), (1, V_M1)):
        a('v_and_b32 v%d, v%d, v%d' % (PC + w, PA + w, vm))
    for w in range(2):
        a('v_xor_b32 v%d, v%d, v%d' % (PA + w, PA + w, PC + w))
    a('s_waitcnt lgkmcnt(0)')
    for t in range(8):
        a('v_mfma_f32_16x16x32_bf16 v[%d:%d], v[%d:%d], v[%d:%d], 0' % (
            V_O + 4 * t, V_O + 4 * t + 3, R_V + 6 * t, R_V + 6 * t + 3, PA, PA + 3))

    def opack(t):
        a('v_cvt_pk_bf16_f32 v%d, v%d, v%d' % (R_OUT + 2 * t, V_O + 4 * t, V_O + 4 * t + 1))
        a('v_cvt_pk_bf16_f32 v%d, v%d, v%d' % (R_OUT + 2 * t + 1, V_O + 4 * t + 2, V_O + 4 * t + 3))
        a('ds_write_b64 v%d, v[%d:%d] offset:%d' % (A_O + (t & 3), R_OUT + 2 * t, R_OUT + 2 * t + 1, 128 * (t >> 2)))

    for t in range(8):
        a('v_mfma_f32_16x16x16_bf16 v[%d:%d], v[%d:%d], v[%d:%d], v[%d:%d]' % (
            V_O + 4 * t, V_O + 4 * t + 3, R_V + 6 * t + 4, R_V + 6 * t + 5, PC, PC + 1, V_O + 4 * t, V_O + 4 * t + 3))
    for t in range(8):
        opack(t)
    a('v_mov_b32 v%d, s%d' % (V_T0, S_STEP))
    a('ds_write_b32 v15, v%d' % V_T0)
    if interleave:
        store_tiles(1, R_K)
    a('s_add_u32 s%d, s%d, %d' % (S_STEP, S_STEP, NC))
    a('s_add_u32 s%d, s%d, %d' % (S_QS, S_QS, NC * 4096))
    for x in range(3):
        a('s_add_u32 s%d, s%d, %d' % (S_X + x, S_X + x, NC * 8192))
        a('s_cmp_ge_u32 s%d, %d' % (S_X + x, FLAG))
        a('s_cselect_b32 s60, %d, 0' % (NSLOT * 8192))
        a('s_sub_u32 s%d, s%d, s60' % (S_X + x, S_X + x))
    a('s_add_u32 s%d, s%d, 1' % (S_R, S_R))
    a('s_cmp_lt_u32 s%d, 4' % S_R)
    a('s_cbranch_scc1 L_round')
    if diag == 'stamp':
        a('s_mov_b32 s%d, s90' % (64 + 2 * nst[0]))
        nst[0] += 1
    stamp()
    if diag == 'stamp':
        a('s_waitcnt lgkmcnt(0)')
    if storer and nst_tiles < 16:
        a('s_mul_i32 s60, s%d, 3' % S_STR4)
        a('s_add_u32 s%d, s%d, s60' % (S_HG, S_HG))
        a('s_add_u32 s%d, s%d, %d' % (S_HQ, S_HQ, 3 * NC * 4096))
    if not interleave and (not storer or nst_tiles < 16):
        store_tiles(1, R_K)
    stamp()
    a('s_waitcnt lgkmcnt(0)')
    dump()
    if storer:
        a('s_endpgm')
        nst[0] = 1
        role[0] = 'S'
        a('L_storer:')
        n = 0
        for k in range(nst_tiles):
            if k == early:
                poll('L_polls', '%d' % hold)
                if early:
                    nst[0] = 1
                stamp()
                nst[0] = 2 + k // 4
            poll('L_pd%d' % k, '%d' % (k + 2), off=16 + 4 * (k % NC))
            b = R_Q + 16 * (k & 1)
            for i in range(4):
                a('ds_read_b128 v[%d:%d], v%d offset:%d' % (b + 4 * i, b + 4 * i + 3, V_LIN, 4096 * k + 1024 * i))
            for i in range(4):
                a('s_waitcnt lgkmcnt(%d)%s' % (3 - i, ' vmcnt(%d)' % (W - 1) if n >= W else ''))
                a('buffer_store_dwordx4 v[%d:%d], v%d, %s, s%d offen offset:%d%s' % (
                    b + 4 * i, b + 4 * i + 3, V_ST0 + (i & 1), srd(S_O), S_QO, 1024 * i, st))
                n += 1
            a('s_add_u32 s%d, s%d, s%d' % (S_QO, S_QO, S_STR))
            if k % 4 == 3:
                stamp()
        dump()
    a('L_end:')
    a('s_endpgm')
    return finish(a, NWG, 64 * (NC + 1 + storer), LDS)


if __name__ == '__main__':
    out = sys.argv[1]
    kw = {}
    for x in sys.argv[2:]:
        k, v = x.split('=')
        try:
            v = int(v)
        except ValueError:
            v = v.replace('+', ' ')
        kw[k] = v
    s, info = gen(**kw)
    open(out, 'w').write(s)
    print(out, info)
```

```python
import sys
import math
import struct
from asmlib import Asm, finish

NBYTES = 32 * 2048 * 128 * 2


def f32(x):
    return '0x%08x' % struct.unpack('<I', struct.pack('<f', x))[0]


def gen(D=32, G=4, xmap=1, alt=1, ld=' nt', ld_first=None, ld_last=None, st=' sc1', hold=13, diag='', prio=3,
        interleave=0, safe=1, storer=0, W=16, nst_tiles=16, arole='L', aidx=0, aop='max', aref=-1, early=0, wb=-1, wb_at=17, wb_mask=31, st_last=None, axcc=0):
    a = Asm()
    NWG = 256
    NC = 4
    NSLOT = 11
    KV0 = 65536
    FLAG = KV0 + NSLOT * 8192
    LDS = FLAG + 256
    if ld_first is None:
        ld_first = ld
    if ld_last is None:
        ld_last = ld
    S_Q, S_K, S_V, S_O, S_KH, S_VH = 12, 16, 20, 24, 28, 32
    srd = lambda b: 's[%d:%d]' % (b, b + 3)
    S_W, S_BASE, S_STR, S_KVO, S_QO, S_POS = 3, 36, 37, 38, 39, 40
    nst = [0]

    role = ['L']

    def stamp():
        if diag == 'stamp' or (diag == 'amp' and (nst[0] == 0 or (role[0] == arole and nst[0] in (aidx, aref)))):
            a('s_memrealtime s[%d:%d]' % (64 + 2 * nst[0], 65 + 2 * nst[0]))
        nst[0] += 1

    def spin(lab, ref, lim):
        a('%s:' % lab)
        a('s_memrealtime s[94:95]')
        a('s_waitcnt lgkmcnt(0)')
        a('s_sub_u32 s96, s94, %s' % ref)
        a('s_cmp_lt_u32 s96, %s' % lim)
        a('s_cbranch_scc1 %s' % lab)

    def dump():
        if diag == 'amp' and role[0] == arole:
            a('s_waitcnt vmcnt(0)')
            stamp()
            a('s_load_dwordx2 s[62:63], s[0:1], 32')
            a('s_waitcnt lgkmcnt(0)')
            spin('L_sp0', 's64', '2000')
            a('s_not_b32 s93, s64')
            if aref >= 0:
                a('s_sub_u32 s%d, s%d, s%d' % (64 + 2 * aidx, 64 + 2 * aidx, 64 + 2 * aref))
            if axcc:
                a('s_mov_b32 s%d, s57' % (64 + 2 * aidx))
            a('s_and_b32 s92, s%d, 0xfffff' % (64 + 2 * aidx))
            a('v_mov_b32 v8, s93')
            a('v_mov_b32 v9, s%d' % (64 + 2 * aidx))
            a('v_mov_b32 v10, s92')
            a('v_not_b32 v11, v9')
            a('v_mov_b32 v12, 0')
            a('s_mov_b64 exec, 1')
            a('global_atomic_umax v12, v8, s[62:63]')
            a('global_atomic_umax v12, v9, s[62:63] offset:4')
            a('global_atomic_add v12, v10, s[62:63] offset:8')
            a('global_atomic_umax v12, v11, s[62:63] offset:12')
            a('s_mov_b64 exec, -1')
            a('s_waitcnt vmcnt(0)')
            spin('L_sp1', 's64', '4500')
            a('global_load_dwordx4 v[8:11], v12, s[62:63] sc1')
            a('s_waitcnt vmcnt(0)')
            a('v_readfirstlane_b32 s93, v8')
            a('v_readfirstlane_b32 s97, v9')
            a('v_readfirstlane_b32 s98, v10')
            a('v_readfirstlane_b32 s99, v11')
            a('s_not_b32 s93, s93')
            if aref >= 0:
                if aop == 'avg':
                    a('s_lshr_b32 s97, s98, 8')
                elif aop == 'min':
                    a('s_not_b32 s97, s99')
            elif aop == 'max':
                a('s_sub_u32 s97, s97, s93')
            elif aop == 'min':
                a('s_not_b32 s99, s99')
                a('s_sub_u32 s97, s99, s93')
            else:
                a('s_lshr_b32 s98, s98, 8')
                a('s_and_b32 s97, s93, 0xfffff')
                a('s_sub_u32 s97, s98, s97')
            a('s_min_u32 s97, s97, 3000')
            a('s_mul_i32 s97, s97, 10')
            a('s_add_u32 s97, s97, 5000')
            spin('L_sp2', 's93', 's97')
            return
        if diag != 'stamp':
            return
        a('s_waitcnt vmcnt(0)')
        stamp()
        a('s_getreg_b32 s60, hwreg(HW_REG_XCC_ID)')
        a('s_waitcnt lgkmcnt(0)')
        a('v_mov_b32 v5, 0')
        for i in range(nst[0]):
            a('v_writelane_b32 v5, s%d, %d' % (64 + 2 * i, i))
        a('v_writelane_b32 v5, s60, 30')
        a('v_writelane_b32 v5, s%d, 31' % S_W)
        a('s_lshl_b32 s61, s2, 3')
        a('s_add_u32 s61, s61, s%d' % S_W)
        a('s_lshl_b32 s61, s61, 8')
        a('v_lshl_add_u32 v6, v0, 2, s61')
        a('global_store_dword v6, v5, s[62:63]')

    stamp()
    a('s_cmp_ge_u32 s2, %d' % NWG)
    a('s_cbranch_scc1 L_end')
    a('s_load_dwordx4 s[4:7], s[0:1], 0')
    a('s_load_dwordx4 s[8:11], s[0:1], 16')
    if diag == 'stamp':
        a('s_load_dwordx2 s[62:63], s[0:1], 40')
    if wb >= 0:
        a('s_lshr_b32 s57, s2, 3')
        a('s_and_b32 s57, s57, %d' % wb_mask)
    if axcc:
        a('s_getreg_b32 s57, hwreg(HW_REG_XCC_ID)')
        a('s_sub_u32 s57, s57, s2')
        a('s_and_b32 s57, s57, 7')
        a('s_mul_i32 s57, s57, 100')
    a('v_lshrrev_b32 v5, 6, v0')
    a('v_and_b32 v0, 63, v0')
    a('v_readfirstlane_b32 s%d, v5' % S_W)
    if xmap == 1:
        a('s_and_b32 s60, s2, 7')
        a('s_lshr_b32 s61, s2, 3')
        a('s_lshl_b32 s60, s60, 5')
        a('s_add_u32 s2, s60, s61')
    elif xmap == 2:
        a('s_and_b32 s60, s2, 7')
        a('s_lshr_b32 s61, s2, 3')
        a('s_and_b32 s58, s61, 3')
        a('s_lshr_b32 s61, s61, 2')
        a('s_lshl_b32 s61, s61, 3')
        a('s_and_b32 s59, s60, 1')
        a('s_lshl_b32 s59, s59, 2')
        a('s_lshr_b32 s60, s60, 1')
        a('s_lshl_b32 s60, s60, 6')
        a('s_add_u32 s61, s61, s60')
        a('s_add_u32 s61, s61, s59')
        a('s_add_u32 s2, s61, s58')
    elif xmap == 3:
        a('s_bfe_u32 s60, s2, 0x40003')
        a('s_and_b32 s61, s2, 1')
        a('s_lshl_b32 s61, s61, 4')
        a('s_or_b32 s60, s60, s61')
        a('s_lshr_b32 s61, s2, 7')
        a('s_lshl_b32 s61, s61, 5')
        a('s_or_b32 s60, s60, s61')
        a('s_and_b32 s61, s2, 6')
        a('s_lshl_b32 s61, s61, 5')
        a('s_or_b32 s2, s60, s61')
    a('s_lshl_b32 s%d, s2, 16' % S_BASE)
    a('s_and_b32 s%d, s2, 7' % S_POS)
    a('s_movk_i32 s%d, 4096' % S_STR)
    a('s_movk_i32 s61, -8192')
    a('s_and_b32 s60, s2, %d' % (1 if alt else 0))
    a('s_cselect_b32 s%d, -4096, s%d' % (S_STR, S_STR))
    a('s_cselect_b32 s60, %d, 0' % (15 * 4096))
    a('s_cselect_b32 s61, s60, s61')
    a('s_cselect_b64 s[42:43], -1, 0')
    a('s_add_u32 s%d, s%d, s60' % (S_QO, S_BASE))
    a('s_add_u32 s%d, s%d, s61' % (S_KVO, S_BASE))
    a('v_lshrrev_b32 v6, 4, v0')
    a('v_and_b32 v7, 15, v0')
    a('s_cmp_lg_u32 s%d, 0' % S_W)
    a('s_cbranch_scc1 L_consumer')

    if prio:
        a('s_setprio %d' % prio)
    a('v_lshlrev_b32 v5, 1, v6')
    a('v_xor_b32 v5, v5, v7')
    a('v_lshlrev_b32 v5, 4, v5')
    a('v_lshl_add_u32 v1, v6, 8, v5')
    a('v_xor_b32 v2, 128, v1')
    a('v_mov_b32 v3, %d' % FLAG)
    a('s_add_u32 s45, s%d, s%d' % (S_KVO, S_STR))
    a('s_add_u32 s46, s45, s%d' % S_STR)
    a('s_cmp_eq_u32 s%d, 0' % S_POS)
    a('s_cselect_b32 s44, 0, s%d' % S_KVO)
    a('s_cselect_b32 s45, 0, s45')
    a('s_cselect_b32 s%d, 0, %d' % (S_KH + 2, NBYTES))
    a('s_cselect_b32 s%d, 0, %d' % (S_VH + 2, NBYTES))
    for b in (S_Q, S_K, S_V):
        a('s_mov_b32 s%d, %d' % (b + 2, NBYTES))
    for b in (S_Q, S_K, S_V, S_KH, S_VH):
        a('s_mov_b32 s%d, 0x20000' % (b + 3))
    a('s_mov_b32 m0, %d' % KV0)
    a('s_waitcnt lgkmcnt(0)')
    stamp()
    for b, p in ((S_KH, 6), (S_VH, 8), (S_Q, 4), (S_K, 6), (S_V, 8)):
        a('s_mov_b32 s%d, s%d' % (b, p))
        a('s_mov_b32 s%d, s%d' % (b + 1, p + 1))
    groups = []
    for e in range(18):
        if e >= 2:
            groups.append(('Q', e))
        groups.append(('K', e))
        groups.append(('V', e))
    insts = [(arr, e, i) for arr, e in groups for i in range(4)]
    last_of = {e: max(n for n, x in enumerate(insts) if x[1] == e) for e in range(18)}
    published = [1]
    barrier0 = [False]
    wbdone = []

    def publish(landed):
        e = max([1] + [e for e in range(2, 18) if last_of[e] < landed])
        if e > published[0]:
            a('v_mov_b32 v4, %d' % e)
            a('ds_write_b32 v3, v4')
            published[0] = e
            if wb >= 0 and e >= wb_at and not wbdone:
                wbdone.append(1)
                a('s_cmp_lg_u32 s57, %d' % wb)
                a('s_cbranch_scc1 L_nowb')
                a('buffer_wbl2 sc1')
                a('s_waitcnt vmcnt(0)')
                a('L_nowb:')
            if e in (2, 5, 9, 13, 17):
                stamp()

    for n, (arr, e, i) in enumerate(insts):
        if n >= D and n % G == 0:
            if not barrier0[0]:
                a('s_barrier')
                barrier0[0] = True
            a('s_waitcnt vmcnt(%d)' % (D - G))
            publish(n - (D - G))
        if i == 0:
            if arr == 'K' and e in (11, 15):
                lab = 'L_free%d' % e
                if safe:
                    a('s_mov_b32 s56, 0')
                a('%s:' % lab)
                a('ds_read_b128 v[8:11], v3 offset:16')
                if safe:
                    a('s_add_u32 s56, s56, 1')
                    a('s_cmp_ge_u32 s56, 0x8000')
                    a('s_cbranch_scc1 %s_x' % lab)
                a('s_waitcnt lgkmcnt(0)')
                a('v_min_u32 v8, v8, v9')
                a('v_min3_u32 v8, v8, v10, v11')
                a('v_readfirstlane_b32 s50, v8')
                a('s_cmp_lt_u32 s50, %d' % (e - 9))
                a('s_cbranch_scc1 %s' % lab)
                if safe:
                    a('%s_x:' % lab)
            m0 = (e - 2) * 4096 if arr == 'Q' else KV0 + (e % NSLOT) * 8192 + (4096 if arr == 'V' else 0)
            if n:
                a('s_mov_b32 m0, %d' % m0)
            if arr == 'Q' and e > 2:
                a('s_add_u32 s%d, s%d, s%d' % (S_QO, S_QO, S_STR))
            if arr == 'K' and e > 2:
                a('s_add_u32 s46, s46, s%d' % S_STR)
        if arr == 'Q':
            r, so, fl = S_Q, S_QO, ld
        else:
            r = {('K', 0): S_K, ('K', 1): S_KH, ('V', 0): S_V, ('V', 1): S_VH}[(arr, int(e < 2))]
            so = 44 + min(e, 2)
            fl = ld_first if e < 2 else (ld_last if e >= 16 else ld)
        a('buffer_load_dwordx4 v%d, %s, s%d offen offset:%d%s lds' % (1 + (i & 1), srd(r), so, i * 1024, fl))
    stamp()
    for e in range(published[0] + 1, 18):
        a('s_waitcnt vmcnt(%d)' % (len(insts) - 1 - last_of[e]))
        publish(last_of[e] + 1)
    a('s_waitcnt lgkmcnt(0)')
    dump()
    a('s_endpgm')

    nst[0] = 1
    role[0] = 'C'
    a('L_consumer:')
    DONE = FLAG + 16
    S_STEP, S_X, S_Y, S_Z, S_QS, S_R, S_F, S_C, S_NEG = 44, 45, 46, 47, 48, 49, 50, 51, 52
    S_MASK = 28
    S_HQ, S_HG, S_STR4 = 53, 54, 55
    V_FLAG, V_LIN, V_ST0, V_ST1, V_M0, V_M1, V_T0, V_T1, V_T2 = 1, 2, 3, 4, 8, 9, 10, 11, 12
    C_K, C_V, C_O = 16, 20, 28
    A_Q, A_K, A_V, A_O = 32, 36, 48, 72
    R_Q, R_K, R_V = 76, 92, 140
    V_S, V_P, V_O = 188, 200, 208
    R_OUT = R_Q
    a('v_mov_b32 v%d, %d' % (V_FLAG, FLAG))
    a('v_mov_b32 v5, 0')
    a('ds_write_b32 v%d, v5' % V_FLAG)
    a('s_lshl_b32 s60, s%d, 2' % S_W)
    a('s_add_u32 s60, s60, %d' % (DONE - 4))
    a('v_mov_b32 v15, s60')
    a('ds_write_b32 v15, v5')
    a('v_lshlrev_b32 v%d, 4, v0' % V_LIN)
    a('v_xor_b32 v5, v7, v6')
    a('v_lshlrev_b32 v5, 4, v5')
    a('v_lshl_add_u32 v%d, v6, 8, v5' % V_ST0)
    a('v_xor_b32 v%d, 64, v%d' % (V_ST1, V_ST0))
    a('v_and_b32 v13, 7, v7')
    a('v_lshlrev_b32 v5, 1, v13')
    a('v_xor_b32 v5, v5, v6')
    a('v_lshlrev_b32 v5, 4, v5')
    a('v_lshl_add_u32 v%d, v7, 8, v5' % C_K)
    for s in range(1, 4):
        a('v_xor_b32 v%d, %d, v%d' % (C_K + s, 64 * s, C_K))
    a('v_lshrrev_b32 v14, 2, v0')
    a('v_and_b32 v5, 7, v14')
    a('v_lshlrev_b32 v5, 5, v5')
    a('v_lshl_add_u32 v5, v14, 8, v5')
    a('v_and_b32 v14, 3, v0')
    a('v_lshl_add_u32 v%d, v14, 3, v5' % C_V)
    for t in range(1, 8):
        a('v_xor_b32 v%d, %d, v%d' % (C_V + t, 32 * t, C_V))
    a('v_lshrrev_b32 v5, 1, v6')
    a('v_xor_b32 v5, v5, v13')
    a('v_lshlrev_b32 v5, 4, v5')
    a('v_lshl_add_u32 v5, v7, 8, v5')
    a('v_and_b32 v14, 1, v6')
    a('v_lshl_add_u32 v%d, v14, 3, v5' % C_O)
    for t in range(1, 4):
        a('v_xor_b32 v%d, %d, v%d' % (C_O + t, 32 * t, C_O))
    a('v_lshlrev_b32 v13, 2, v6')
    for r in range(4):
        a('v_add_u32 v5, %d, v13' % r)
        a('v_cmp_le_u32 vcc, v5, v7')
        a('s_xor_b64 s[%d:%d], vcc, s[42:43]' % (S_MASK + 2 * r, S_MASK + 2 * r + 1))
    a('v_mov_b32 v13, 0xffff')
    for w, vm in ((0, V_M0), (1, V_M1)):
        a('v_cndmask_b32 v5, 0, v13, s[%d:%d]' % (S_MASK + 4 * w, S_MASK + 4 * w + 1))
        a('v_cndmask_b32 v14, 0, v13, s[%d:%d]' % (S_MASK + 4 * w + 2, S_MASK + 4 * w + 3))
        a('v_lshl_or_b32 v%d, v14, 16, v5' % vm)
    a('s_mov_b32 s%d, %s' % (S_C, f32(math.log2(math.e) / math.sqrt(128.0))))
    a('s_cmp_eq_u32 s%d, 0' % S_POS)
    a('s_cselect_b32 s%d, %s, 0' % (S_NEG, f32(-1e30)))
    a('s_sub_u32 s60, s%d, 1' % S_W)
    a('s_add_u32 s%d, s60, 2' % S_STEP)
    a('s_lshl_b32 s%d, s60, 12' % S_QS)
    a('s_lshl_b32 s61, s60, 13')
    a('s_add_u32 s%d, s61, %d' % (S_X, KV0))
    a('s_add_u32 s%d, s61, %d' % (S_Y, KV0 + 8192))
    a('s_add_u32 s%d, s61, %d' % (S_Z, KV0 + 16384))
    a('s_mul_i32 s61, s60, s%d' % S_STR)
    a('s_add_u32 s%d, s%d, s61' % (S_HG, S_QO))
    a('s_mov_b32 s%d, s%d' % (S_HQ, S_QS))
    a('s_lshl_b32 s%d, s%d, 2' % (S_STR4, S_STR))
    a('s_mov_b32 s%d, 0' % S_R)
    a('s_mov_b32 s%d, %d' % (S_O + 2, NBYTES))
    a('s_mov_b32 s%d, 0x20000' % (S_O + 3))
    a('s_waitcnt lgkmcnt(0)')
    a('s_mov_b32 s%d, s10' % S_O)
    a('s_mov_b32 s%d, s11' % (S_O + 1))
    a('s_barrier')

    def poll(label, need, off=0):
        if safe:
            a('s_mov_b32 s56, 0')
        a('%s:' % label)
        a('ds_read_b32 v%d, v%d offset:%d' % (V_T0, V_FLAG, off))
        if safe:
            a('s_add_u32 s56, s56, 1')
            a('s_cmp_ge_u32 s56, 0x8000')
            a('s_cbranch_scc1 %s_x' % label)
        a('s_waitcnt lgkmcnt(0)')
        a('v_readfirstlane_b32 s%d, v%d' % (S_F, V_T0))
        a('s_cmp_lt_u32 s%d, %s' % (S_F, need))
        a('s_cbranch_scc1 %s' % label)
        if safe:
            a('%s_x:' % label)

    def store_tiles(n, regs, st=st):
        for k in range(n):
            a('v_add_u32 v%d, s%d, v%d' % (V_T1, S_HQ, V_LIN))
            for i in range(4):
                a('ds_read_b128 v[%d:%d], v%d offset:%d' % (regs + 16 * k + 4 * i, regs + 16 * k + 4 * i + 3, V_T1, 1024 * i))
            a('s_add_u32 s%d, s%d, %d' % (S_HQ, S_HQ, NC * 4096))
        for k in range(n):
            for i in range(4):
                a('s_waitcnt lgkmcnt(%d)' % (4 * n - 1 - (4 * k + i)))
                a('buffer_store_dwordx4 v[%d:%d], v%d, %s, s%d offen offset:%d%s' % (
                    regs + 16 * k + 4 * i, regs + 16 * k + 4 * i + 3, V_ST0 + (i & 1), srd(S_O), S_HG, 1024 * i, st))
            a('s_add_u32 s%d, s%d, s%d' % (S_HG, S_HG, S_STR4))

    def xreduce(op):
        for sw in ('v_permlane32_swap_b32', 'v_permlane16_swap_b32'):
            a('v_mov_b32 v%d, v%d' % (V_T1, V_T0))
            a('%s v%d, v%d' % (sw, V_T0, V_T1))
            a('%s v%d, v%d, v%d' % (op, V_T0, V_T0, V_T1))

    if storer:
        a('s_cmp_gt_u32 s%d, %d' % (S_W, NC))
        a('s_cbranch_scc1 L_storer')
    a('L_round:')
    if not interleave and not storer:
        a('s_cmp_lg_u32 s%d, 3' % S_R)
        a('s_cbranch_scc1 L_nohold')
        poll('L_pollh', '%d' % hold)
        stamp()
        store_tiles(3, R_V)
        stamp()
        a('L_nohold:')
    for s in range(4):
        a('v_add_u32 v%d, s%d, v%d' % (A_Q + s, S_QS, C_K + s))
        for x in range(3):
            a('v_add_u32 v%d, s%d, v%d' % (A_K + 4 * x + s, S_X + x, C_K + s))
    for t in range(8):
        for x in range(3):
            a('v_add_u32 v%d, s%d, v%d' % (A_V + 8 * x + t, S_X + x, C_V + t))
    for t in range(4):
        a('v_add_u32 v%d, s%d, v%d' % (A_O + t, S_QS, C_O + t))
    a('s_cmp_lt_u32 s%d, 4' % S_STEP)
    a('s_cselect_b32 s60, s%d, 0' % S_NEG)
    a('s_cmp_lt_u32 s%d, 3' % S_STEP)
    a('s_cselect_b32 s61, s%d, 0' % S_NEG)
    for r in range(4):
        a('v_mov_b32 v%d, s60' % (V_S + r))
        a('v_mov_b32 v%d, s61' % (V_S + 4 + r))
    poll('L_poll', 's%d' % S_STEP)
    if diag == 'stamp':
        a('s_memrealtime s[90:91]')
        a('s_waitcnt lgkmcnt(0)')
    for s in range(4):
        a('ds_read_b128 v[%d:%d], v%d' % (R_Q + 4 * s, R_Q + 4 * s + 3, A_Q + s))
        for x in range(3):
            if s == 3 and x == 2:
                a('s_waitcnt lgkmcnt(11)')
            a('ds_read_b128 v[%d:%d], v%d' % (R_K + 16 * x + 4 * s, R_K + 16 * x + 4 * s + 3, A_K + 4 * x + s))
    vreads = [(t, x) for t in range(8) for x in range(3)]

    def vread(n):
        for _ in range(n):
            t, x = vreads.pop(0)
            a('ds_read_b64_tr_b16 v[%d:%d], v%d offset:4096' % (R_V + 6 * t + 2 * x, R_V + 6 * t + 2 * x + 1, A_V + 8 * x + t))

    for s in range(4):
        if s:
            a('s_waitcnt lgkmcnt(%d)' % (12 - 4 * s + 3 * s))
        for x in range(3):
            d = 'v[%d:%d]' % (V_S + 4 * x, V_S + 4 * x + 3)
            c = '0' if (s == 0 and x == 2) else d
            a('v_mfma_f32_16x16x32_bf16 %s, v[%d:%d], v[%d:%d], %s' % (
                d, R_K + 16 * x + 4 * s, R_K + 16 * x + 4 * s + 3, R_Q + 4 * s, R_Q + 4 * s + 3, c))
            vread(1)
    a('s_waitcnt lgkmcnt(3)')
    vread(12)
    SA, SB, SC = V_S, V_S + 4, V_S + 8
    for r in range(4):
        a('v_cndmask_b32 v%d, v%d, v%d, s[%d:%d]' % (SA + r, SA + r, SC + r, S_MASK + 2 * r, S_MASK + 2 * r + 1))
    a('v_max3_f32 v%d, v%d, v%d, v%d' % (V_T0, SB, SB + 1, SB + 2))
    a('v_max3_f32 v%d, v%d, v%d, v%d' % (V_T1, SB + 3, SA, SA + 1))
    a('v_max3_f32 v%d, v%d, v%d, v%d' % (V_T0, V_T0, SA + 2, SA + 3))
    a('v_max_f32 v%d, v%d, v%d' % (V_T0, V_T0, V_T1))
    xreduce('v_max_f32')
    a('v_mul_f32 v%d, s%d, v%d' % (V_T0, S_C, V_T0))
    for r in range(8):
        a('v_fma_f32 v%d, v%d, s%d, -v%d' % (SA + r, SA + r, S_C, V_T0))
    for r in range(8):
        a('v_exp_f32 v%d, v%d' % (SA + r, SA + r))
    a('v_add_f32 v%d, v%d, v%d' % (V_T0, SA, SA + 1))
    a('v_add_f32 v%d, v%d, v%d' % (V_T1, SA + 2, SA + 3))
    a('v_add_f32 v%d, v%d, v%d' % (V_T2, SA + 4, SA + 5))
    a('v_add_f32 v%d, v%d, v%d' % (V_T0, V_T0, V_T1))
    a('v_add_f32 v%d, v%d, v%d' % (V_T1, SA + 6, SA + 7))
    a('v_add_f32 v%d, v%d, v%d' % (V_T0, V_T0, V_T2))
    a('v_add_f32 v%d, v%d, v%d' % (V_T0, V_T0, V_T1))
    xreduce('v_add_f32')
    a('v_rcp_f32 v%d, v%d' % (V_T0, V_T0))
    for r in range(8):
        a('v_mul_f32 v%d, v%d, v%d' % (SA + r, SA + r, V_T0))
    PA, PB, PC = V_P, V_P + 2, V_P + 4
    for w in range(2):
        a('v_cvt_pk_bf16_f32 v%d, v%d, v%d' % (PA + w, SA + 2 * w, SA + 2 * w + 1))
    for w in range(2):
        a('v_cvt_pk_bf16_f32 v%d, v%d, v%d' % (PB + w, SB + 2 * w, SB + 2 * w + 1))
    for w, vm in ((0, V_M0), (1, V_M1)):
        a('v_and_b32 v%d, v%d, v%d' % (PC + w, PA + w, vm))
    for w in range(2):
        a('v_xor_b32 v%d, v%d, v%d' % (PA + w, PA + w, PC + w))
    a('s_waitcnt lgkmcnt(0)')
    for t in range(8):
        a('v_mfma_f32_16x16x32_bf16 v[%d:%d], v[%d:%d], v[%d:%d], 0' % (
            V_O + 4 * t, V_O + 4 * t + 3, R_V + 6 * t, R_V + 6 * t + 3, PA, PA + 3))

    def opack(t):
        a('v_cvt_pk_bf16_f32 v%d, v%d, v%d' % (R_OUT + 2 * t, V_O + 4 * t, V_O + 4 * t + 1))
        a('v_cvt_pk_bf16_f32 v%d, v%d, v%d' % (R_OUT + 2 * t + 1, V_O + 4 * t + 2, V_O + 4 * t + 3))
        a('ds_write_b64 v%d, v[%d:%d] offset:%d' % (A_O + (t & 3), R_OUT + 2 * t, R_OUT + 2 * t + 1, 128 * (t >> 2)))

    for t in range(8):
        a('v_mfma_f32_16x16x16_bf16 v[%d:%d], v[%d:%d], v[%d:%d], v[%d:%d]' % (
            V_O + 4 * t, V_O + 4 * t + 3, R_V + 6 * t + 4, R_V + 6 * t + 5, PC, PC + 1, V_O + 4 * t, V_O + 4 * t + 3))
    for t in range(8):
        opack(t)
    a('v_mov_b32 v%d, s%d' % (V_T0, S_STEP))
    a('ds_write_b32 v15, v%d' % V_T0)
    if interleave and st_last is not None:
        a('s_cmp_eq_u32 s%d, 3' % S_R)
        a('s_cbranch_scc1 L_last')
    if interleave:
        store_tiles(1, R_K)
    a('s_add_u32 s%d, s%d, %d' % (S_STEP, S_STEP, NC))
    a('s_add_u32 s%d, s%d, %d' % (S_QS, S_QS, NC * 4096))
    for x in range(3):
        a('s_add_u32 s%d, s%d, %d' % (S_X + x, S_X + x, NC * 8192))
        a('s_cmp_ge_u32 s%d, %d' % (S_X + x, FLAG))
        a('s_cselect_b32 s60, %d, 0' % (NSLOT * 8192))
        a('s_sub_u32 s%d, s%d, s60' % (S_X + x, S_X + x))
    a('s_add_u32 s%d, s%d, 1' % (S_R, S_R))
    a('s_cmp_lt_u32 s%d, 4' % S_R)
    a('s_cbranch_scc1 L_round')
    if diag == 'stamp':
        a('s_mov_b32 s%d, s90' % (64 + 2 * nst[0]))
        nst[0] += 1
    stamp()
    if diag == 'stamp':
        a('s_waitcnt lgkmcnt(0)')
    if interleave and st_last is not None:
        a('L_last:')
        store_tiles(1, R_K, st_last)
    if storer and nst_tiles < 16:
        a('s_mul_i32 s60, s%d, 3' % S_STR4)
        a('s_add_u32 s%d, s%d, s60' % (S_HG, S_HG))
        a('s_add_u32 s%d, s%d, %d' % (S_HQ, S_HQ, 3 * NC * 4096))
    if not interleave and (not storer or nst_tiles < 16):
        store_tiles(1, R_K)
    stamp()
    a('s_waitcnt lgkmcnt(0)')
    dump()
    if storer:
        a('s_endpgm')
        nst[0] = 1
        role[0] = 'S'
        a('L_storer:')
        n = 0
        for k in range(nst_tiles):
            if k == early:
                poll('L_polls', '%d' % hold)
                if early:
                    nst[0] = 1
                stamp()
                nst[0] = 2 + k // 4
            poll('L_pd%d' % k, '%d' % (k + 2), off=16 + 4 * (k % NC))
            b = R_Q + 16 * (k & 1)
            for i in range(4):
                a('ds_read_b128 v[%d:%d], v%d offset:%d' % (b + 4 * i, b + 4 * i + 3, V_LIN, 4096 * k + 1024 * i))
            for i in range(4):
                a('s_waitcnt lgkmcnt(%d)%s' % (3 - i, ' vmcnt(%d)' % (W - 1) if n >= W else ''))
                a('buffer_store_dwordx4 v[%d:%d], v%d, %s, s%d offen offset:%d%s' % (
                    b + 4 * i, b + 4 * i + 3, V_ST0 + (i & 1), srd(S_O), S_QO, 1024 * i, st))
                n += 1
            a('s_add_u32 s%d, s%d, s%d' % (S_QO, S_QO, S_STR))
            if k % 4 == 3:
                stamp()
        dump()
    a('L_end:')
    a('s_endpgm')
    return finish(a, NWG, 64 * (NC + 1 + storer), LDS)


if __name__ == '__main__':
    out = sys.argv[1]
    kw = {}
    for x in sys.argv[2:]:
        k, v = x.split('=')
        try:
            v = int(v)
        except ValueError:
            v = v.replace('+', ' ')
        kw[k] = v
    s, info = gen(**kw)
    open(out, 'w').write(s)
    print(out, info)
```

```python
import sys
import math
import struct
from asmlib import Asm, finish

NBYTES = 32 * 2048 * 128 * 2


def f32(x):
    return '0x%08x' % struct.unpack('<I', struct.pack('<f', x))[0]


def gen(D=32, xmap=3, alt=1, ld=' nt', ld_first=None, st=' sc1', trig=17, W=63, ctrig=17, ctmo=0, prio=3, safe=1,
        diag='', arole='L', aidx=0, aop='max', aref=-1, pad=0xd00, tmo=0, tmo_from=15):
    a = Asm()
    NWG = 256
    NC = 4
    NSLOT = 11
    KV0 = 65536
    KVEND = KV0 + NSLOT * 8192
    FLAG = KVEND + 12
    LDS = KVEND + 256
    if ld_first is None:
        ld_first = ld
    G = D // 4 - 1
    PJ = G % 3
    LAG = 1 + (G - PJ) // 3
    S_Q, S_K, S_V, S_O = 12, 16, 20, 24
    srd = lambda b: 's[%d:%d]' % (b, b + 3)
    S_W, S_STR, S_KVO, S_QO, S_POS = 3, 37, 38, 39, 40
    V_FLAG = 1
    nst = [0]
    role = ['L']
    uid = [0]

    def stamp(idx=None):
        i = nst[0] if idx is None else idx
        if diag == 'stamp' or (diag == 'amp' and (i == 0 or (role[0] == arole and i in (aidx, aref)))):
            a('s_memrealtime s[%d:%d]' % (64 + 2 * i, 65 + 2 * i))
        nst[0] = max(nst[0], i + 1)

    def stamp_if(sreg, val, idx):
        if diag:
            uid[0] += 1
            a('s_cmp_lg_u32 s%d, %d' % (sreg, val))
            a('s_cbranch_scc1 L_ns%d' % uid[0])
            stamp(idx)
            a('L_ns%d:' % uid[0])

    def spin(lab, ref, lim):
        a('%s:' % lab)
        a('s_memrealtime s[94:95]')
        a('s_waitcnt lgkmcnt(0)')
        a('s_sub_u32 s96, s94, %s' % ref)
        a('s_cmp_lt_u32 s96, %s' % lim)
        a('s_cbranch_scc1 %s' % lab)

    tails = []

    def dump():
        if diag == 'stamp' or (diag == 'amp' and role[0] == arole):
            a('s_waitcnt vmcnt(0)')
            stamp()
            a('s_branch L_dump')
        else:
            a('s_endpgm')

    def dump_code():
        if diag == 'amp':
            a('L_dump:')
            a('s_load_dwordx2 s[62:63], s[0:1], 32')
            a('s_waitcnt lgkmcnt(0)')
            spin('L_sp0', 's64', '2000')
            a('s_not_b32 s93, s64')
            if aref >= 0:
                a('s_sub_u32 s%d, s%d, s%d' % (64 + 2 * aidx, 64 + 2 * aidx, 64 + 2 * aref))
            a('s_and_b32 s92, s%d, 0xfffff' % (64 + 2 * aidx))
            a('v_mov_b32 v8, s93')
            a('v_mov_b32 v9, s%d' % (64 + 2 * aidx))
            a('v_mov_b32 v10, s92')
            a('v_not_b32 v11, v9')
            a('v_mov_b32 v12, 0')
            a('s_mov_b64 exec, 1')
            a('global_atomic_umax v12, v8, s[62:63]')
            a('global_atomic_umax v12, v9, s[62:63] offset:4')
            a('global_atomic_add v12, v10, s[62:63] offset:8')
            a('global_atomic_umax v12, v11, s[62:63] offset:12')
            a('s_mov_b64 exec, -1')
            a('s_waitcnt vmcnt(0)')
            spin('L_sp1', 's64', '4500')
            a('global_load_dwordx4 v[8:11], v12, s[62:63] sc1')
            a('s_waitcnt vmcnt(0)')
            a('v_readfirstlane_b32 s93, v8')
            a('v_readfirstlane_b32 s97, v9')
            a('v_readfirstlane_b32 s98, v10')
            a('v_readfirstlane_b32 s99, v11')
            a('s_not_b32 s93, s93')
            if aref >= 0:
                if aop == 'avg':
                    a('s_lshr_b32 s97, s98, 8')
                elif aop == 'min':
                    a('s_not_b32 s97, s99')
            elif aop == 'max':
                a('s_sub_u32 s97, s97, s93')
            elif aop == 'min':
                a('s_not_b32 s99, s99')
                a('s_sub_u32 s97, s99, s93')
            else:
                a('s_lshr_b32 s98, s98, 8')
                a('s_and_b32 s97, s93, 0xfffff')
                a('s_sub_u32 s97, s98, s97')
            a('s_min_u32 s97, s97, 3000')
            a('s_mul_i32 s97, s97, 10')
            a('s_add_u32 s97, s97, 5000')
            spin('L_sp2', 's93', 's97')
            a('s_endpgm')
        if diag == 'stamp':
            a('L_dump:')
            a('s_load_dwordx2 s[62:63], s[0:1], 40')
            a('s_getreg_b32 s60, hwreg(HW_REG_XCC_ID)')
            a('s_waitcnt lgkmcnt(0)')
            spin('L_sp0', 's64', '2000')
            a('v_mov_b32 v5, 0')
            for i in range(12):
                a('v_writelane_b32 v5, s%d, %d' % (64 + 2 * i, i))
            a('v_writelane_b32 v5, s60, 30')
            a('v_writelane_b32 v5, s%d, 31' % S_W)
            a('s_lshl_b32 s61, s2, 3')
            a('s_add_u32 s61, s61, s%d' % S_W)
            a('s_lshl_b32 s61, s61, 8')
            a('v_lshl_add_u32 v6, v0, 2, s61')
            a('global_store_dword v6, v5, s[62:63]')
            a('s_endpgm')

    def guard(lab):
        if safe:
            a('s_add_u32 s56, s56, 1')
            a('s_cmp_ge_u32 s56, 0x20000')
            a('s_cbranch_scc1 %s_x' % lab)

    def wait_flag(lab, what, limit=0):
        if limit:
            a('s_mov_b32 s46, %d' % limit)
        a('%s:' % lab)
        if what > 17:
            a('ds_read_b128 v[8:11], v%d offset:4' % V_FLAG)
        else:
            a('ds_read_b32 v8, v%d' % V_FLAG)
        if limit:
            a('s_sub_u32 s46, s46, 1')
            a('s_cbranch_scc1 %s_x' % lab)
        else:
            guard(lab)
        a('s_waitcnt lgkmcnt(0)')
        if what > 17:
            a('v_min3_i32 v8, v8, v9, v10')
            a('v_min_i32 v8, v8, v11')
            a('v_cmp_ge_i32 vcc, %d, v8' % (what - 20))
        else:
            a('v_cmp_gt_i32 vcc, %d, v8' % (what + LAG))
        a('s_cbranch_vccnz %s' % lab)
        if safe or limit:
            a('%s_x:' % lab)

    stamp()
    a('s_load_dwordx2 s[%d:%d], s[0:1], 8' % (S_K, S_K + 1))
    a('s_load_dwordx2 s[%d:%d], s[0:1], 16' % (S_V, S_V + 1))
    a('s_load_dwordx2 s[%d:%d], s[0:1], 0' % (S_Q, S_Q + 1))
    a('s_load_dwordx2 s[%d:%d], s[0:1], 24' % (S_O, S_O + 1))
    a('s_cmp_ge_u32 s2, %d' % NWG)
    a('s_cbranch_scc1 L_end')
    a('v_lshrrev_b32 v5, 6, v0')
    a('v_and_b32 v0, 63, v0')
    a('v_readfirstlane_b32 s%d, v5' % S_W)
    a('v_mov_b32 v%d, %d' % (V_FLAG, FLAG))
    a('v_lshl_add_u32 v15, v5, 2, v%d' % V_FLAG)
    a('v_add_u32 v5, 1, v5')
    a('ds_write_b32 v15, v5')
    if safe:
        a('s_mov_b32 s56, 0')
    if xmap == 1:
        a('s_and_b32 s60, s2, 7')
        a('s_lshr_b32 s61, s2, 3')
        a('s_lshl_b32 s60, s60, 5')
        a('s_add_u32 s2, s60, s61')
    elif xmap == 3:
        a('s_bfe_u32 s60, s2, 0x40003')
        a('s_and_b32 s61, s2, 1')
        a('s_lshl4_add_u32 s60, s61, s60')
        a('s_lshr_b32 s61, s2, 7')
        a('s_and_b32 s2, s2, 6')
        a('s_or_b32 s2, s2, s61')
        a('s_lshl_b32 s2, s2, 5')
        a('s_or_b32 s2, s2, s60')
    a('s_lshl_b32 s%d, s2, 16' % S_QO)
    a('s_movk_i32 s%d, 4096' % S_STR)
    a('s_movk_i32 s61, -8192')
    a('s_and_b32 s60, s2, %d' % (1 if alt else 0))
    a('s_cmovk_i32 s%d, -4096' % S_STR)
    a('s_cselect_b32 s60, %d, 0' % (15 * 4096))
    a('s_cselect_b32 s61, s60, s61')
    a('s_cselect_b64 s[42:43], -1, 0')
    a('s_add_u32 s%d, s%d, s61' % (S_KVO, S_QO))
    a('s_add_u32 s%d, s%d, s60' % (S_QO, S_QO))
    a('v_lshrrev_b32 v6, 4, v0')
    a('v_and_b32 v7, 15, v0')
    a('s_mov_b32 s%d, %d' % (S_Q + 2, NBYTES))
    a('s_mov_b32 s%d, 0x20000' % (S_Q + 3))
    a('s_mov_b64 s[%d:%d], s[%d:%d]' % (S_O + 2, S_O + 3, S_Q + 2, S_Q + 3))
    a('v_lshlrev_b32 v5, 1, v6')
    a('v_xor_b32 v5, v5, v7')
    a('v_lshlrev_b32 v5, 4, v5')
    a('v_lshl_add_u32 v2, v6, 8, v5')
    a('v_xor_b32 v3, 128, v2')
    a('s_add_u32 s45, s%d, s%d' % (S_KVO, S_STR))
    a('s_add_u32 s46, s45, s%d' % S_STR)
    a('s_and_b32 s%d, s2, 7' % S_POS)
    a('s_cselect_b32 s44, s%d, 0' % S_KVO)
    a('s_cselect_b32 s45, s45, 0')
    a('s_cselect_b32 s%d, s%d, 0' % (S_K + 2, S_Q + 2))
    a('s_mov_b32 s%d, 0x20000' % (S_K + 3))
    a('s_mov_b64 s[%d:%d], s[%d:%d]' % (S_V + 2, S_V + 3, S_K + 2, S_K + 3))
    a('s_mov_b32 m0, %d' % KV0)
    a('s_cmp_lg_u32 s%d, 0' % S_W)
    a('s_waitcnt lgkmcnt(0)')
    a('s_cbranch_scc1 L_other')

    stamp()

    def group(r, so, fl):
        for i in range(4):
            a('buffer_load_dwordx4 v%d, %s, s%d offen offset:%d%s lds' % (2 + (i & 1), srd(r), so, i * 1024, fl))

    S_E, S_QL, S_KL, S_T = 47, 48, 49, 50
    for e in range(2):
        group(S_K, 44 + e, ld_first)
        a('s_addk_i32 m0, 4096')
        if e == 0 and prio:
            a('s_setprio %d' % prio)
        else:
            a('s_mov_b32 s%d, 2' % S_E)
        group(S_V, 44 + e, ld_first)
        if e == 0:
            a('s_addk_i32 m0, 4096')
            a('s_mov_b32 s%d, 0' % S_QL)
    if not prio:
        a('s_mov_b32 s%d, 2' % S_E)
    a('s_mov_b32 s%d, s%d' % (S_K + 2, S_Q + 2))
    a('s_mov_b32 s%d, s%d' % (S_V + 2, S_Q + 2))
    a('s_mov_b32 s%d, %d' % (S_KL, KV0 + 2 * 8192))
    a('v_mov_b32 v4, 2')
    a('s_barrier')

    def wait_pub(j):
        a('s_waitcnt vmcnt(%d)' % (D - 4))
        if j == PJ:
            a('ds_write_b32 v%d, v4' % V_FLAG)
            for k, x in enumerate((2, 5, 9, 13)):
                stamp_if(S_E, x + LAG, 2 + k)

    a('L_ld:')
    a('s_mov_b32 m0, s%d' % S_QL)
    wait_pub(0)
    a('L_free:')
    a('ds_read_b128 v[8:11], v%d offset:4' % V_FLAG)
    a('s_cmp_eq_u32 m0, s%d' % S_KL)
    a('s_cbranch_scc1 L_noq')
    group(S_Q, S_QO, ld)
    a('s_mov_b32 m0, s%d' % S_KL)
    a('s_sub_u32 s%d, s%d, 9' % (S_T, S_E))
    a('L_noq:')
    guard('L_free')
    a('s_waitcnt lgkmcnt(0)')
    a('v_min3_i32 v8, v8, v9, v10')
    a('v_min_i32 v8, v8, v11')
    a('v_cmp_ge_i32 vcc, s%d, v8' % S_T)
    a('s_cbranch_vccnz L_free')
    if safe:
        a('L_free_x:')
    wait_pub(1)
    group(S_K, 46, ld)
    a('s_addk_i32 m0, 4096')
    wait_pub(2)
    group(S_V, 46, ld)
    a('v_add_u32 v4, 1, v4')
    a('s_add_u32 s%d, s%d, s%d' % (S_QO, S_QO, S_STR))
    a('s_add_u32 s46, s46, s%d' % S_STR)
    a('s_addk_i32 s%d, 4096' % S_QL)
    a('s_addk_i32 s%d, 8192' % S_KL)
    a('s_cmp_eq_u32 s%d, %d' % (S_KL, KVEND))
    a('s_cmov_b32 s%d, %d' % (S_KL, KV0))
    a('s_add_u32 s%d, s%d, 1' % (S_E, S_E))
    a('s_cmp_lt_u32 s%d, 18' % S_E)
    a('s_cbranch_scc1 L_ld')
    stamp(6)
    for x in range(18 - LAG, 18):
        a('s_waitcnt vmcnt(%d)' % (12 * (17 - x)))
        a('ds_write_b32 v%d, v4' % V_FLAG)
        if x < 17:
            a('v_add_u32 v4, 1, v4')
    nst[0] = 7
    dump()

    role[0] = 'C'
    nst[0] = 1
    a('L_other:')
    a('s_barrier')
    V_LIN, V_ST0, V_ST1 = 2, 3, 4
    a('v_xor_b32 v5, v7, v6')
    a('v_lshlrev_b32 v5, 4, v5')
    a('v_lshl_add_u32 v%d, v6, 8, v5' % V_ST0)
    a('v_xor_b32 v%d, 64, v%d' % (V_ST1, V_ST0))
    a('s_cmp_le_u32 s%d, %d' % (S_W, NC))
    a('s_cbranch_scc1 L_consumer')
    role[0] = 'S'
    a('v_lshlrev_b32 v%d, 4, v0' % V_LIN)
    for r in range(3):
        wait_flag('L_sr%d' % r, 20 + 5 + 4 * r)
        for n in range(16 * r, 16 * r + 16):
            if n % 16 == 14:
                a('s_waitcnt lgkmcnt(8)')
            a('ds_read_b128 v[%d:%d], v%d offset:%d' % (16 + 4 * n, 19 + 4 * n, V_LIN, 1024 * n))
    stamp(1)
    if trig:
        wait_flag('L_strig', trig, tmo)
    else:
        a('s_waitcnt lgkmcnt(0)')
    stamp(3)
    for n in range(48):
        if n >= W:
            a('s_waitcnt vmcnt(%d)' % (W - 1))
        a('buffer_store_dwordx4 v[%d:%d], v%d, %s, s%d offen offset:%d%s' % (
            16 + 4 * n, 19 + 4 * n, V_ST0 + (n & 1), srd(S_O), S_QO, 1024 * (n & 3), st))
        if n & 3 == 3 and n < 47:
            a('s_add_u32 s%d, s%d, s%d' % (S_QO, S_QO, S_STR))
    stamp(4)
    dump()
    role[0] = 'C'
    nst[0] = 1
    a('L_consumer:')
    S_STEP, S_X, S_Y, S_Z, S_QS, S_C, S_NEG = 44, 45, 46, 47, 48, 51, 52
    S_MASK = 28
    V_M0, V_M1, V_T0, V_T1, V_T2 = 8, 9, 10, 11, 12
    C_K, C_V, C_O = 16, 20, 28
    A_Q, A_K, A_V, A_O = 32, 36, 48, 72
    R_Q, R_K, R_V = 76, 92, 140
    V_S, V_P, V_O = 188, 200, 208
    R_OUT = R_Q
    a('v_and_b32 v13, 7, v7')
    a('v_lshlrev_b32 v5, 1, v13')
    a('v_xor_b32 v5, v5, v6')
    a('v_lshlrev_b32 v5, 4, v5')
    a('v_lshl_add_u32 v%d, v7, 8, v5' % C_K)
    a('v_xor_b32 v%d, 64, v%d' % (C_K + 1, C_K))
    a('v_xor_b32 v%d, 128, v%d' % (C_K + 2, C_K))
    a('v_xor_b32 v%d, 64, v%d' % (C_K + 3, C_K + 2))
    a('v_lshrrev_b32 v14, 2, v0')
    a('v_and_b32 v5, 7, v14')
    a('v_lshlrev_b32 v5, 5, v5')
    a('v_lshl_add_u32 v5, v14, 8, v5')
    a('v_and_b32 v14, 3, v0')
    a('v_lshl_add_u32 v%d, v14, 3, v5' % C_V)
    a('v_xor_b32 v%d, 128, v%d' % (C_V + 4, C_V))
    for t in (0, 4):
        a('v_xor_b32 v%d, 64, v%d' % (C_V + t + 2, C_V + t))
    for t in (0, 2, 4, 6):
        a('v_xor_b32 v%d, 32, v%d' % (C_V + t + 1, C_V + t))
    a('v_lshrrev_b32 v5, 1, v6')
    a('v_xor_b32 v5, v5, v13')
    a('v_lshlrev_b32 v5, 4, v5')
    a('v_lshl_add_u32 v5, v7, 8, v5')
    a('v_and_b32 v14, 1, v6')
    a('v_lshl_add_u32 v%d, v14, 3, v5' % C_O)
    a('v_xor_b32 v%d, 64, v%d' % (C_O + 2, C_O))
    for t in (0, 2):
        a('v_xor_b32 v%d, 32, v%d' % (C_O + t + 1, C_O + t))
    a('v_lshlrev_b32 v13, 2, v6')
    a('v_sub_u32 v13, v7, v13')
    for r in range(4):
        a('v_cmp_le_i32 vcc, %d, v13' % r)
        a('s_xor_b64 s[%d:%d], vcc, s[42:43]' % (S_MASK + 2 * r, S_MASK + 2 * r + 1))
    a('v_mov_b32 v13, 0xffff')
    for w, vm in ((0, V_M0), (1, V_M1)):
        a('v_cndmask_b32 v5, 0, v13, s[%d:%d]' % (S_MASK + 4 * w, S_MASK + 4 * w + 1))
        a('v_cndmask_b32 v14, 0, v13, s[%d:%d]' % (S_MASK + 4 * w + 2, S_MASK + 4 * w + 3))
        a('v_lshl_or_b32 v%d, v14, 16, v5' % vm)
    a('s_mov_b32 s%d, %s' % (S_C, f32(math.log2(math.e) / math.sqrt(128.0))))
    a('s_cmp_eq_u32 s%d, 0' % S_POS)
    a('s_cselect_b32 s%d, %s, 0' % (S_NEG, f32(-1e30)))
    a('s_sub_u32 s60, s%d, 1' % S_W)
    a('s_add_u32 s%d, s60, %d' % (S_STEP, 2 + LAG))
    a('s_lshl_b32 s%d, s60, 12' % S_QS)
    a('s_lshl_b32 s61, s60, 13')
    a('s_add_u32 s%d, s61, %d' % (S_X, KV0))
    a('v_lshl_add_u32 v%d, v0, 4, s%d' % (V_LIN, S_QS))
    a('s_add_u32 s60, s60, 12')
    a('s_mul_i32 s61, s60, s%d' % S_STR)
    a('s_add_u32 s%d, s%d, s61' % (S_QO, S_QO))

    def xreduce(op):
        for sw in ('v_permlane32_swap_b32', 'v_permlane16_swap_b32'):
            a('v_mov_b32 v%d, v%d' % (V_T1, V_T0))
            a('%s v%d, v%d' % (sw, V_T0, V_T1))
            a('%s v%d, v%d, v%d' % (op, V_T0, V_T0, V_T1))

    a('L_round:')
    for x in (1, 2):
        a('s_add_u32 s%d, s%d, 8192' % (S_X + x, S_X + x - 1))
        a('s_cmp_eq_u32 s%d, %d' % (S_X + x, KVEND))
        a('s_cmov_b32 s%d, %d' % (S_X + x, KV0))
    for s in range(4):
        a('v_add_u32 v%d, s%d, v%d' % (A_Q + s, S_QS, C_K + s))
        for x in range(3):
            a('v_add_u32 v%d, s%d, v%d' % (A_K + 4 * x + s, S_X + x, C_K + s))
    for t in range(8):
        for x in range(3):
            a('v_add_u32 v%d, s%d, v%d' % (A_V + 8 * x + t, S_X + x, C_V + t))
    for t in range(4):
        a('v_add_u32 v%d, s%d, v%d' % (A_O + t, S_QS, C_O + t))
    a('s_cmp_lt_u32 s%d, %d' % (S_STEP, 4 + LAG))
    a('s_cselect_b32 s60, s%d, 0' % S_NEG)
    a('s_cmp_lt_u32 s%d, %d' % (S_STEP, 3 + LAG))
    a('s_cselect_b32 s61, s%d, 0' % S_NEG)
    for r in range(4):
        a('v_mov_b32 v%d, s60' % (V_S + r))
        a('v_mov_b32 v%d, s61' % (V_S + 4 + r))
    a('s_add_u32 s60, s%d, %d' % (S_STEP, NC - LAG))
    a('v_mov_b32 v13, s60')
    a('L_poll:')
    a('ds_read_b32 v%d, v%d' % (V_T0, V_FLAG))
    guard('L_poll')
    a('s_waitcnt lgkmcnt(0)')
    a('v_cmp_gt_i32 vcc, s%d, v%d' % (S_STEP, V_T0))
    a('s_cbranch_vccnz L_poll')
    if safe:
        a('L_poll_x:')
    stamp(1)
    for s in range(4):
        a('ds_read_b128 v[%d:%d], v%d' % (R_Q + 4 * s, R_Q + 4 * s + 3, A_Q + s))
        for x in range(3):
            if s == 3 and x == 2:
                a('s_waitcnt lgkmcnt(11)')
            a('ds_read_b128 v[%d:%d], v%d' % (R_K + 16 * x + 4 * s, R_K + 16 * x + 4 * s + 3, A_K + 4 * x + s))
    vreads = [(t, x) for t in range(8) for x in range(3)]

    def vread(n):
        for _ in range(n):
            t, x = vreads.pop(0)
            a('ds_read_b64_tr_b16 v[%d:%d], v%d offset:4096' % (R_V + 6 * t + 2 * x, R_V + 6 * t + 2 * x + 1, A_V + 8 * x + t))

    for s in range(4):
        if s:
            a('s_waitcnt lgkmcnt(%d)' % (12 - 4 * s + 3 * s))
        for x in range(3):
            d = 'v[%d:%d]' % (V_S + 4 * x, V_S + 4 * x + 3)
            c = '0' if (s == 0 and x == 2) else d
            a('v_mfma_f32_16x16x32_bf16 %s, v[%d:%d], v[%d:%d], %s' % (
                d, R_K + 16 * x + 4 * s, R_K + 16 * x + 4 * s + 3, R_Q + 4 * s, R_Q + 4 * s + 3, c))
            vread(1)
    a('s_waitcnt lgkmcnt(3)')
    vread(12)
    SA, SB, SC = V_S, V_S + 4, V_S + 8
    for r in range(4):
        a('v_cndmask_b32 v%d, v%d, v%d, s[%d:%d]' % (SA + r, SA + r, SC + r, S_MASK + 2 * r, S_MASK + 2 * r + 1))
    a('v_max3_f32 v%d, v%d, v%d, v%d' % (V_T0, SB, SB + 1, SB + 2))
    a('v_max3_f32 v%d, v%d, v%d, v%d' % (V_T1, SB + 3, SA, SA + 1))
    a('v_max3_f32 v%d, v%d, v%d, v%d' % (V_T0, V_T0, SA + 2, SA + 3))
    a('v_max_f32 v%d, v%d, v%d' % (V_T0, V_T0, V_T1))
    xreduce('v_max_f32')
    a('v_mul_f32 v%d, s%d, v%d' % (V_T0, S_C, V_T0))
    for r in range(8):
        a('v_fma_f32 v%d, v%d, s%d, -v%d' % (SA + r, SA + r, S_C, V_T0))
    for r in range(8):
        a('v_exp_f32 v%d, v%d' % (SA + r, SA + r))
    a('v_add_f32 v%d, v%d, v%d' % (V_T0, SA, SA + 1))
    a('v_add_f32 v%d, v%d, v%d' % (V_T1, SA + 2, SA + 3))
    a('v_add_f32 v%d, v%d, v%d' % (V_T2, SA + 4, SA + 5))
    a('v_add_f32 v%d, v%d, v%d' % (V_T0, V_T0, V_T1))
    a('v_add_f32 v%d, v%d, v%d' % (V_T1, SA + 6, SA + 7))
    a('v_add_f32 v%d, v%d, v%d' % (V_T0, V_T0, V_T2))
    a('v_add_f32 v%d, v%d, v%d' % (V_T0, V_T0, V_T1))
    xreduce('v_add_f32')
    a('v_rcp_f32 v%d, v%d' % (V_T0, V_T0))
    for r in range(8):
        a('v_mul_f32 v%d, v%d, v%d' % (SA + r, SA + r, V_T0))
    PA, PB, PC = V_P, V_P + 2, V_P + 4
    for w in range(2):
        a('v_cvt_pk_bf16_f32 v%d, v%d, v%d' % (PA + w, SA + 2 * w, SA + 2 * w + 1))
    for w in range(2):
        a('v_cvt_pk_bf16_f32 v%d, v%d, v%d' % (PB + w, SB + 2 * w, SB + 2 * w + 1))
    for w, vm in ((0, V_M0), (1, V_M1)):
        a('v_and_b32 v%d, v%d, v%d' % (PC + w, PA + w, vm))
    for w in range(2):
        a('v_xor_b32 v%d, v%d, v%d' % (PA + w, PA + w, PC + w))
    a('s_waitcnt lgkmcnt(0)')
    for t in range(8):
        a('v_mfma_f32_16x16x32_bf16 v[%d:%d], v[%d:%d], v[%d:%d], 0' % (
            V_O + 4 * t, V_O + 4 * t + 3, R_V + 6 * t, R_V + 6 * t + 3, PA, PA + 3))
    for t in range(8):
        a('v_mfma_f32_16x16x16_bf16 v[%d:%d], v[%d:%d], v[%d:%d], v[%d:%d]' % (
            V_O + 4 * t, V_O + 4 * t + 3, R_V + 6 * t + 4, R_V + 6 * t + 5, PC, PC + 1, V_O + 4 * t, V_O + 4 * t + 3))
    for t in range(8):
        a('v_cvt_pk_bf16_f32 v%d, v%d, v%d' % (R_OUT + 2 * t, V_O + 4 * t, V_O + 4 * t + 1))
        a('v_cvt_pk_bf16_f32 v%d, v%d, v%d' % (R_OUT + 2 * t + 1, V_O + 4 * t + 2, V_O + 4 * t + 3))
        a('ds_write_b64 v%d, v[%d:%d] offset:%d' % (A_O + (t & 3), R_OUT + 2 * t, R_OUT + 2 * t + 1, 128 * (t >> 2)))
    a('ds_write_b32 v15, v13')
    a('s_addk_i32 s%d, %d' % (S_QS, NC * 4096))
    a('s_add_u32 s%d, s%d, %d' % (S_X, S_X, NC * 8192))
    a('s_cmp_ge_u32 s%d, %d' % (S_X, KVEND))
    a('s_cselect_b32 s60, %d, 0' % (NSLOT * 8192))
    a('s_sub_u32 s%d, s%d, s60' % (S_X, S_X))
    a('s_add_u32 s%d, s%d, %d' % (S_STEP, S_STEP, NC))
    a('s_cmp_lt_u32 s%d, %d' % (S_STEP, 18 + LAG))
    a('s_cbranch_scc1 L_round')
    stamp(2)
    RB = R_K
    for n in range(4):
        a('ds_read_b128 v[%d:%d], v%d offset:%d' % (RB + 4 * n, RB + 4 * n + 3, V_LIN, 49152 + 1024 * n))
    if ctrig:
        wait_flag('L_ctrig', ctrig, ctmo)
    stamp(3)
    for n in range(4):
        if not ctrig:
            a('s_waitcnt lgkmcnt(%d)' % (3 - n))
        a('buffer_store_dwordx4 v[%d:%d], v%d, %s, s%d offen offset:%d%s' % (
            RB + 4 * n, RB + 4 * n + 3, V_ST0 + (n & 1), srd(S_O), S_QO, 1024 * n, st))
    stamp(4)
    if diag:
        dump()
    a('L_end:')
    a('s_endpgm')
    dump_code()
    s, info = finish(a, NWG, 64 * (NC + 2), LDS)
    if pad:
        s = s.replace('.p2align 8\n.type', '.p2align 12\n.fill %d, 4, 0xbf800000\n.p2align 8\n.type' % (pad // 4))
    return s, info


if __name__ == '__main__':
    out = sys.argv[1]
    kw = {}
    for x in sys.argv[2:]:
        k, v = x.split('=')
        try:
            v = int(v)
        except ValueError:
            v = v.replace('+', ' ')
        kw[k] = v
    s, info = gen(**kw)
    open(out, 'w').write(s)
    print(out, info)
```

```python
import sys
import math
import struct
from asmlib import Asm, finish

NBYTES = 32 * 2048 * 128 * 2


def f32(x):
    return '0x%08x' % struct.unpack('<I', struct.pack('<f', x))[0]


def gen(D=32, xmap=3, alt=1, ld=' nt', ld_first=None, st=' sc1', trig=17, W=63, ctrig=17, ctmo=0, sched=1, fine=0, E2=18, prio=3, safe=1,
        diag='', arole='L', aidx=0, aop='max', aref=-1, pad=0xd00, tmo=0, tmo_from=15):
    a = Asm()
    NWG = 256
    NC = 4
    NSLOT = 11
    KV0 = 65536
    KVEND = KV0 + NSLOT * 8192
    FLAG = KVEND + 12
    LDS = KVEND + 256
    if ld_first is None:
        ld_first = ld
    G = D // 4 - 1
    PJ = G % 3
    LAG = 1 + (G - PJ) // 3
    S_Q, S_K, S_V, S_O = 12, 16, 20, 24
    srd = lambda b: 's[%d:%d]' % (b, b + 3)
    S_W, S_STR, S_KVO, S_QO, S_POS = 3, 37, 38, 39, 40
    V_FLAG = 1
    nst = [0]
    role = ['L']
    uid = [0]

    def stamp(idx=None):
        i = nst[0] if idx is None else idx
        if diag == 'stamp' or (diag == 'amp' and (i == 0 or (role[0] == arole and i in (aidx, aref)))):
            a('s_memrealtime s[%d:%d]' % (64 + 2 * i, 65 + 2 * i))
        nst[0] = max(nst[0], i + 1)

    def stamp_if(sreg, val, idx):
        if diag:
            uid[0] += 1
            a('s_cmp_lg_u32 s%d, %d' % (sreg, val))
            a('s_cbranch_scc1 L_ns%d' % uid[0])
            stamp(idx)
            a('L_ns%d:' % uid[0])

    def spin(lab, ref, lim):
        a('%s:' % lab)
        a('s_memrealtime s[94:95]')
        a('s_waitcnt lgkmcnt(0)')
        a('s_sub_u32 s96, s94, %s' % ref)
        a('s_cmp_lt_u32 s96, %s' % lim)
        a('s_cbranch_scc1 %s' % lab)

    tails = []

    def dump():
        if diag == 'stamp' or (diag == 'amp' and role[0] == arole):
            a('s_waitcnt vmcnt(0)')
            stamp()
            a('s_branch L_dump')
        else:
            a('s_endpgm')

    def dump_code():
        if diag == 'amp':
            a('L_dump:')
            a('s_load_dwordx2 s[62:63], s[0:1], 32')
            a('s_waitcnt lgkmcnt(0)')
            spin('L_sp0', 's64', '2000')
            a('s_not_b32 s93, s64')
            if aref >= 0:
                a('s_sub_u32 s%d, s%d, s%d' % (64 + 2 * aidx, 64 + 2 * aidx, 64 + 2 * aref))
            a('s_and_b32 s92, s%d, 0xfffff' % (64 + 2 * aidx))
            a('v_mov_b32 v8, s93')
            a('v_mov_b32 v9, s%d' % (64 + 2 * aidx))
            a('v_mov_b32 v10, s92')
            a('v_not_b32 v11, v9')
            a('v_mov_b32 v12, 0')
            a('s_mov_b64 exec, 1')
            a('global_atomic_umax v12, v8, s[62:63]')
            a('global_atomic_umax v12, v9, s[62:63] offset:4')
            a('global_atomic_add v12, v10, s[62:63] offset:8')
            a('global_atomic_umax v12, v11, s[62:63] offset:12')
            a('s_mov_b64 exec, -1')
            a('s_waitcnt vmcnt(0)')
            spin('L_sp1', 's64', '4500')
            a('global_load_dwordx4 v[8:11], v12, s[62:63] sc1')
            a('s_waitcnt vmcnt(0)')
            a('v_readfirstlane_b32 s93, v8')
            a('v_readfirstlane_b32 s97, v9')
            a('v_readfirstlane_b32 s98, v10')
            a('v_readfirstlane_b32 s99, v11')
            a('s_not_b32 s93, s93')
            if aref >= 0:
                if aop == 'avg':
                    a('s_lshr_b32 s97, s98, 8')
                elif aop == 'min':
                    a('s_not_b32 s97, s99')
            elif aop == 'max':
                a('s_sub_u32 s97, s97, s93')
            elif aop == 'min':
                a('s_not_b32 s99, s99')
                a('s_sub_u32 s97, s99, s93')
            else:
                a('s_lshr_b32 s98, s98, 8')
                a('s_and_b32 s97, s93, 0xfffff')
                a('s_sub_u32 s97, s98, s97')
            a('s_min_u32 s97, s97, 3000')
            a('s_mul_i32 s97, s97, 10')
            a('s_add_u32 s97, s97, 5000')
            spin('L_sp2', 's93', 's97')
            a('s_endpgm')
        if diag == 'stamp':
            a('L_dump:')
            a('s_load_dwordx2 s[62:63], s[0:1], 40')
            a('s_getreg_b32 s60, hwreg(HW_REG_XCC_ID)')
            a('s_waitcnt lgkmcnt(0)')
            spin('L_sp0', 's64', '2000')
            a('v_mov_b32 v5, 0')
            for i in range(12):
                a('v_writelane_b32 v5, s%d, %d' % (64 + 2 * i, i))
            a('v_writelane_b32 v5, s60, 30')
            a('v_writelane_b32 v5, s%d, 31' % S_W)
            a('s_lshl_b32 s61, s2, 3')
            a('s_add_u32 s61, s61, s%d' % S_W)
            a('s_lshl_b32 s61, s61, 8')
            a('v_lshl_add_u32 v6, v0, 2, s61')
            a('global_store_dword v6, v5, s[62:63]')
            a('s_endpgm')

    def guard(lab):
        if safe:
            a('s_add_u32 s56, s56, 1')
            a('s_cmp_ge_u32 s56, 0x20000')
            a('s_cbranch_scc1 %s_x' % lab)

    def wait_flag(lab, what, limit=0):
        if limit:
            a('s_mov_b32 s46, %d' % limit)
        a('%s:' % lab)
        if what > 17:
            a('ds_read_b128 v[8:11], v%d offset:4' % V_FLAG)
        else:
            a('ds_read_b32 v8, v%d' % V_FLAG)
        if limit:
            a('s_sub_u32 s46, s46, 1')
            a('s_cbranch_scc1 %s_x' % lab)
        else:
            guard(lab)
        a('s_waitcnt lgkmcnt(0)')
        if what > 17:
            a('v_min3_i32 v8, v8, v9, v10')
            a('v_min_i32 v8, v8, v11')
            a('v_cmp_ge_i32 vcc, %d, v8' % (what - 20))
        else:
            a('v_cmp_gt_i32 vcc, %d, v8' % (what + LAG))
        a('s_cbranch_vccnz %s' % lab)
        if safe or limit:
            a('%s_x:' % lab)

    stamp()
    a('s_load_dwordx2 s[%d:%d], s[0:1], 8' % (S_K, S_K + 1))
    a('s_load_dwordx2 s[%d:%d], s[0:1], 16' % (S_V, S_V + 1))
    a('s_load_dwordx2 s[%d:%d], s[0:1], 0' % (S_Q, S_Q + 1))
    a('s_load_dwordx2 s[%d:%d], s[0:1], 24' % (S_O, S_O + 1))
    a('s_cmp_ge_u32 s2, %d' % NWG)
    a('s_cbranch_scc1 L_end')
    a('v_lshrrev_b32 v5, 6, v0')
    a('v_and_b32 v0, 63, v0')
    a('v_readfirstlane_b32 s%d, v5' % S_W)
    a('v_mov_b32 v%d, %d' % (V_FLAG, FLAG))
    a('v_lshl_add_u32 v15, v5, 2, v%d' % V_FLAG)
    a('v_add_u32 v5, 1, v5')
    a('ds_write_b32 v15, v5')
    if safe:
        a('s_mov_b32 s56, 0')
    if xmap == 1:
        a('s_and_b32 s60, s2, 7')
        a('s_lshr_b32 s61, s2, 3')
        a('s_lshl_b32 s60, s60, 5')
        a('s_add_u32 s2, s60, s61')
    elif xmap == 3:
        a('s_bfe_u32 s60, s2, 0x40003')
        a('s_and_b32 s61, s2, 1')
        a('s_lshl4_add_u32 s60, s61, s60')
        a('s_lshr_b32 s61, s2, 7')
        a('s_and_b32 s2, s2, 6')
        a('s_or_b32 s2, s2, s61')
        a('s_lshl_b32 s2, s2, 5')
        a('s_or_b32 s2, s2, s60')
    elif xmap in (4, 5, 6):
        tab = {4: (0, 1, 4, 5), 5: (0, 0, 0, 0), 6: (0, 3, 5, 6)}[xmap]
        a('s_lshr_b32 s60, s2, 6')
        a('s_lshl_b32 s60, s60, 2')
        a('s_lshr_b32 s60, 0x%x, s60' % sum(v << (4 * k) for k, v in enumerate(tab)))
        a('s_xor_b32 s60, s60, s2')
        a('s_and_b32 s60, s60, 7')
        a('s_bfe_u32 s61, s2, 0x30003')
        a('s_and_b32 s2, s2, 0xc0')
        a('s_or_b32 s2, s2, s61')
        a('s_lshl3_add_u32 s2, s60, s2')
    elif xmap == 7:
        a('s_and_b32 s60, s2, 7')
        a('s_bfe_u32 s61, s2, 0x10003')
        a('s_lshl1_add_u32 s60, s60, s61')
        a('s_and_b32 s2, s2, 0xf0')
        a('s_or_b32 s2, s2, s60')
    a('s_lshl_b32 s%d, s2, 16' % S_QO)
    a('s_movk_i32 s%d, 4096' % S_STR)
    a('s_movk_i32 s61, -8192')
    a('s_and_b32 s60, s2, %d' % (1 if alt else 0))
    a('s_cmovk_i32 s%d, -4096' % S_STR)
    a('s_cselect_b32 s60, %d, 0' % (15 * 4096))
    a('s_cselect_b32 s61, s60, s61')
    a('s_cselect_b64 s[42:43], -1, 0')
    a('s_add_u32 s%d, s%d, s61' % (S_KVO, S_QO))
    a('s_add_u32 s%d, s%d, s60' % (S_QO, S_QO))
    a('v_lshrrev_b32 v6, 4, v0')
    a('v_and_b32 v7, 15, v0')
    a('s_mov_b32 s%d, %d' % (S_Q + 2, NBYTES))
    a('s_mov_b32 s%d, 0x20000' % (S_Q + 3))
    a('s_mov_b64 s[%d:%d], s[%d:%d]' % (S_O + 2, S_O + 3, S_Q + 2, S_Q + 3))
    a('v_lshlrev_b32 v5, 1, v6')
    a('v_xor_b32 v5, v5, v7')
    a('v_lshlrev_b32 v5, 4, v5')
    a('v_lshl_add_u32 v2, v6, 8, v5')
    a('v_xor_b32 v3, 128, v2')
    a('s_add_u32 s45, s%d, s%d' % (S_KVO, S_STR))
    a('s_add_u32 s46, s45, s%d' % S_STR)
    a('s_and_b32 s%d, s2, 7' % S_POS)
    a('s_cselect_b32 s44, s%d, 0' % S_KVO)
    a('s_cselect_b32 s45, s45, 0')
    a('s_cselect_b32 s%d, s%d, 0' % (S_K + 2, S_Q + 2))
    a('s_mov_b32 s%d, 0x20000' % (S_K + 3))
    a('s_mov_b64 s[%d:%d], s[%d:%d]' % (S_V + 2, S_V + 3, S_K + 2, S_K + 3))
    a('s_mov_b32 m0, %d' % KV0)
    a('s_cmp_lg_u32 s%d, 0' % S_W)
    a('s_waitcnt lgkmcnt(0)')
    a('s_cbranch_scc1 L_other')

    stamp()

    def group(r, so, fl):
        for i in range(4):
            a('buffer_load_dwordx4 v%d, %s, s%d offen offset:%d%s lds' % (2 + (i & 1), srd(r), so, i * 1024, fl))

    S_E, S_QL, S_KL, S_T = 47, 48, 49, 50
    for e in range(2):
        group(S_K, 44 + e, ld_first)
        a('s_addk_i32 m0, 4096')
        if e == 0 and prio:
            a('s_setprio %d' % prio)
        else:
            a('s_mov_b32 s%d, 2' % S_E)
        group(S_V, 44 + e, ld_first)
        if e == 0:
            a('s_addk_i32 m0, 4096')
            a('s_mov_b32 s%d, 0' % S_QL)
    if not prio:
        a('s_mov_b32 s%d, 2' % S_E)
    a('s_mov_b32 s%d, s%d' % (S_K + 2, S_Q + 2))
    a('s_mov_b32 s%d, s%d' % (S_V + 2, S_Q + 2))
    a('s_mov_b32 s%d, %d' % (S_KL, KV0 + 2 * 8192))
    a('v_mov_b32 v4, 2')
    a('s_barrier')

    def wait_pub(j):
        if E2 < 18:
            a('s_cmp_ge_u32 s%d, %d' % (S_E, E2))
            a('s_cbranch_scc1 L_nw%d' % j)
        a('s_waitcnt vmcnt(%d)' % (D - 4))
        if j == PJ:
            a('ds_write_b32 v%d, v4' % V_FLAG)
            a('v_add_u32 v4, 1, v4')
            for k, x in enumerate((2, 5, 9, 13)):
                stamp_if(S_E, x + LAG, 2 + k)
        if E2 < 18:
            a('L_nw%d:' % j)

    a('L_ld:')
    a('s_mov_b32 m0, s%d' % S_QL)
    wait_pub(0)
    a('L_free:')
    a('ds_read_b128 v[8:11], v%d offset:4' % V_FLAG)
    a('s_cmp_eq_u32 m0, s%d' % S_KL)
    a('s_cbranch_scc1 L_noq')
    group(S_Q, S_QO, ld)
    a('s_mov_b32 m0, s%d' % S_KL)
    a('s_sub_u32 s%d, s%d, 9' % (S_T, S_E))
    a('L_noq:')
    guard('L_free')
    a('s_waitcnt lgkmcnt(0)')
    a('v_min3_i32 v8, v8, v9, v10')
    a('v_min_i32 v8, v8, v11')
    a('v_cmp_ge_i32 vcc, s%d, v8' % S_T)
    a('s_cbranch_vccnz L_free')
    if safe:
        a('L_free_x:')
    wait_pub(1)
    group(S_K, 46, ld)
    a('s_addk_i32 m0, 4096')
    wait_pub(2)
    group(S_V, 46, ld)
    a('s_add_u32 s%d, s%d, s%d' % (S_QO, S_QO, S_STR))
    a('s_add_u32 s46, s46, s%d' % S_STR)
    a('s_addk_i32 s%d, 4096' % S_QL)
    a('s_addk_i32 s%d, 8192' % S_KL)
    a('s_cmp_eq_u32 s%d, %d' % (S_KL, KVEND))
    a('s_cmov_b32 s%d, %d' % (S_KL, KV0))
    a('s_add_u32 s%d, s%d, 1' % (S_E, S_E))
    a('s_cmp_lt_u32 s%d, 18' % S_E)
    a('s_cbranch_scc1 L_ld')
    stamp(6)
    assert D + 12 * (18 - E2) <= 63
    for x in range(E2 - LAG, 18):
        a('s_waitcnt vmcnt(%d)' % (12 * (17 - x)))
        a('ds_write_b32 v%d, v4' % V_FLAG)
        if x < 17:
            a('v_add_u32 v4, 1, v4')
    nst[0] = 7
    dump()

    role[0] = 'C'
    nst[0] = 1
    a('L_other:')
    a('s_barrier')
    V_LIN, V_ST0, V_ST1 = 2, 3, 4
    a('v_xor_b32 v5, v7, v6')
    a('v_lshlrev_b32 v5, 4, v5')
    a('v_lshl_add_u32 v%d, v6, 8, v5' % V_ST0)
    a('v_xor_b32 v%d, 64, v%d' % (V_ST1, V_ST0))
    a('s_cmp_le_u32 s%d, %d' % (S_W, NC))
    a('s_cbranch_scc1 L_consumer')
    role[0] = 'S'
    a('v_lshlrev_b32 v%d, 4, v0' % V_LIN)
    for r in range(3):
        wait_flag('L_sr%d' % r, 20 + 5 + 4 * r)
        for n in range(16 * r, 16 * r + 16):
            if n % 16 == 14:
                a('s_waitcnt lgkmcnt(8)')
            a('ds_read_b128 v[%d:%d], v%d offset:%d' % (16 + 4 * n, 19 + 4 * n, V_LIN, 1024 * n))
    stamp(1)
    if trig:
        wait_flag('L_strig', trig, tmo)
    else:
        a('s_waitcnt lgkmcnt(0)')
    stamp(3)
    for n in range(48):
        if n >= W:
            a('s_waitcnt vmcnt(%d)' % (W - 1))
        a('buffer_store_dwordx4 v[%d:%d], v%d, %s, s%d offen offset:%d%s' % (
            16 + 4 * n, 19 + 4 * n, V_ST0 + (n & 1), srd(S_O), S_QO, 1024 * (n & 3), st))
        if n & 3 == 3 and n < 47:
            a('s_add_u32 s%d, s%d, s%d' % (S_QO, S_QO, S_STR))
    stamp(4)
    dump()
    role[0] = 'C'
    nst[0] = 1
    a('L_consumer:')
    S_STEP, S_X, S_Y, S_Z, S_QS, S_C, S_NEG = 44, 45, 46, 47, 48, 51, 52
    S_MASK = 28
    V_M0, V_M1, V_T0, V_T1, V_T2, V_T3 = 5, 6, 10, 11, 12, 14
    C_K, C_V, C_O = 16, 20, 28
    A_Q, A_K, A_V, A_O = 32, 36, 48, 72
    R_Q, R_K, R_V = 76, 92, 140
    V_S, V_P, V_O = 188, 200, 208
    R_OUT = R_Q
    a('v_and_b32 v13, 7, v7')
    a('v_lshlrev_b32 v5, 1, v13')
    a('v_xor_b32 v5, v5, v6')
    a('v_lshlrev_b32 v5, 4, v5')
    a('v_lshl_add_u32 v%d, v7, 8, v5' % C_K)
    a('v_xor_b32 v%d, 64, v%d' % (C_K + 1, C_K))
    a('v_xor_b32 v%d, 128, v%d' % (C_K + 2, C_K))
    a('v_xor_b32 v%d, 64, v%d' % (C_K + 3, C_K + 2))
    a('v_lshrrev_b32 v14, 2, v0')
    a('v_and_b32 v5, 7, v14')
    a('v_lshlrev_b32 v5, 5, v5')
    a('v_lshl_add_u32 v5, v14, 8, v5')
    a('v_and_b32 v14, 3, v0')
    a('v_lshl_add_u32 v%d, v14, 3, v5' % C_V)
    a('v_xor_b32 v%d, 128, v%d' % (C_V + 4, C_V))
    for t in (0, 4):
        a('v_xor_b32 v%d, 64, v%d' % (C_V + t + 2, C_V + t))
    for t in (0, 2, 4, 6):
        a('v_xor_b32 v%d, 32, v%d' % (C_V + t + 1, C_V + t))
    a('v_lshrrev_b32 v5, 1, v6')
    a('v_xor_b32 v5, v5, v13')
    a('v_lshlrev_b32 v5, 4, v5')
    a('v_lshl_add_u32 v5, v7, 8, v5')
    a('v_and_b32 v14, 1, v6')
    a('v_lshl_add_u32 v%d, v14, 3, v5' % C_O)
    a('v_xor_b32 v%d, 64, v%d' % (C_O + 2, C_O))
    for t in (0, 2):
        a('v_xor_b32 v%d, 32, v%d' % (C_O + t + 1, C_O + t))
    a('v_lshlrev_b32 v13, 2, v6')
    a('v_sub_u32 v13, v7, v13')
    for r in range(4):
        a('v_cmp_le_i32 vcc, %d, v13' % r)
        a('s_xor_b64 s[%d:%d], vcc, s[42:43]' % (S_MASK + 2 * r, S_MASK + 2 * r + 1))
    a('v_mov_b32 v13, 0xffff')
    for w, vm in ((0, V_M0), (1, V_M1)):
        a('v_cndmask_b32 v10, 0, v13, s[%d:%d]' % (S_MASK + 4 * w, S_MASK + 4 * w + 1))
        a('v_cndmask_b32 v14, 0, v13, s[%d:%d]' % (S_MASK + 4 * w + 2, S_MASK + 4 * w + 3))
        a('v_lshl_or_b32 v%d, v14, 16, v10' % vm)
    a('s_mov_b32 s%d, %s' % (S_C, f32(math.log2(math.e) / math.sqrt(128.0))))
    a('s_cmp_eq_u32 s%d, 0' % S_POS)
    a('s_cselect_b32 s%d, %s, 0' % (S_NEG, f32(-1e30)))
    a('s_sub_u32 s60, s%d, 1' % S_W)
    a('s_add_u32 s%d, s60, %d' % (S_STEP, 2 + LAG))
    a('s_lshl_b32 s%d, s60, 12' % S_QS)
    a('s_lshl_b32 s61, s60, 13')
    a('s_add_u32 s%d, s61, %d' % (S_X, KV0))
    a('v_lshl_add_u32 v%d, v0, 4, s%d' % (V_LIN, S_QS))
    a('s_add_u32 s60, s60, 12')
    a('s_mul_i32 s61, s60, s%d' % S_STR)
    a('s_add_u32 s%d, s%d, s61' % (S_QO, S_QO))

    a('L_round:')
    for x in (1, 2):
        a('s_add_u32 s%d, s%d, 8192' % (S_X + x, S_X + x - 1))
        a('s_cmp_eq_u32 s%d, %d' % (S_X + x, KVEND))
        a('s_cmov_b32 s%d, %d' % (S_X + x, KV0))
    for s in range(4):
        a('v_add_u32 v%d, s%d, v%d' % (A_Q + s, S_QS, C_K + s))
        for x in range(3):
            a('v_add_u32 v%d, s%d, v%d' % (A_K + 4 * x + s, S_X + x, C_K + s))
    for t in range(8):
        for x in range(3):
            a('v_add_u32 v%d, s%d, v%d' % (A_V + 8 * x + t, S_X + x, C_V + t))
    for t in range(4):
        a('v_add_u32 v%d, s%d, v%d' % (A_O + t, S_QS, C_O + t))
    a('s_cmp_lt_u32 s%d, %d' % (S_STEP, 4 + LAG))
    a('s_cselect_b32 s60, s%d, 0' % S_NEG)
    a('s_cmp_lt_u32 s%d, %d' % (S_STEP, 3 + LAG))
    a('s_cselect_b32 s61, s%d, 0' % S_NEG)
    for r in range(4):
        a('v_mov_b32 v%d, s60' % (V_S + r))
        a('v_mov_b32 v%d, s61' % (V_S + 4 + r))
    a('s_add_u32 s60, s%d, %d' % (S_STEP, NC - LAG))
    a('v_mov_b32 v13, s60')
    a('L_poll:')
    a('ds_read_b32 v%d, v%d' % (V_T0, V_FLAG))
    guard('L_poll')
    a('s_waitcnt lgkmcnt(0)')
    a('v_cmp_gt_i32 vcc, s%d, v%d' % (S_STEP, V_T0))
    a('s_cbranch_vccnz L_poll')
    if safe:
        a('L_poll_x:')
    stamp(1)
    def fstamp(i):
        if fine:
            a('s_memtime s[%d:%d]' % (64 + 2 * i, 65 + 2 * i))

    fstamp(5)
    lds_q = []

    def lds(text, tag):
        a(text)
        lds_q.append(tag)

    def lwait(tags):
        last = max(i for i, t in enumerate(lds_q) if t in tags)
        a('s_waitcnt lgkmcnt(%d)' % (len(lds_q) - 1 - last))

    def kread(s, x):
        if x < 0:
            lds('ds_read_b128 v[%d:%d], v%d' % (R_Q + 4 * s, R_Q + 4 * s + 3, A_Q + s), ('Q', s))
        else:
            lds('ds_read_b128 v[%d:%d], v%d' % (R_K + 16 * x + 4 * s, R_K + 16 * x + 4 * s + 3, A_K + 4 * x + s), ('K', s, x))

    vreads = [(t, x) for t in range(8) for x in range(3)]

    def vread(n):
        for _ in range(n):
            t, x = vreads.pop(0)
            lds('ds_read_b64_tr_b16 v[%d:%d], v%d offset:4096' % (R_V + 6 * t + 2 * x, R_V + 6 * t + 2 * x + 1, A_V + 8 * x + t), ('V', t, x))

    def qk(s, x):
        d = 'v[%d:%d]' % (V_S + 4 * x, V_S + 4 * x + 3)
        c = '0' if (s == 0 and x == 2) else d
        a('v_mfma_f32_16x16x32_bf16 %s, v[%d:%d], v[%d:%d], %s' % (
            d, R_K + 16 * x + 4 * s, R_K + 16 * x + 4 * s + 3, R_Q + 4 * s, R_Q + 4 * s + 3, c))

    XO = (0, 2, 1)
    pend = [(s, x) for s in range(4) for x in (-1,) + XO]
    for _ in range(12):
        kread(*pend.pop(0))
    for s in range(4):
        for x in XO:
            lwait([('Q', s), ('K', s, x)])
            qk(s, x)
            if pend:
                kread(*pend.pop(0))
                if pend and pend[0][1] == XO[0]:
                    kread(*pend.pop(0))
            elif s >= 2:
                vread(1)
    fstamp(6)
    SA, SB, SC = V_S, V_S + 4, V_S + 8
    vread(6)
    for r in range(4):
        a('v_cndmask_b32 v%d, v%d, v%d, s[%d:%d]' % (SA + r, SA + r, SC + r, S_MASK + 2 * r, S_MASK + 2 * r + 1))
    a('v_max3_f32 v%d, v%d, v%d, v%d' % (V_T2, SA, SA + 1, SA + 2))
    a('v_max3_f32 v%d, v%d, v%d, v%d' % (V_T3, SA + 3, SB, SB + 1))
    a('v_max3_f32 v%d, v%d, v%d, v%d' % (V_T2, V_T2, SB + 2, SB + 3))

    def xreduce(op, fill):
        a('%s v%d, v%d, v%d' % (op, V_T0, V_T2, V_T3))
        a('%s v%d, v%d, v%d' % (op, V_T1, V_T2, V_T3))
        fill()
        a('v_permlane32_swap_b32 v%d, v%d' % (V_T0, V_T1))
        a('%s v%d, v%d, v%d' % (op, V_T2, V_T0, V_T1))
        a('%s v%d, v%d, v%d' % (op, V_T3, V_T0, V_T1))
        fill()
        a('v_permlane16_swap_b32 v%d, v%d' % (V_T2, V_T3))
        a('%s v%d, v%d, v%d' % (op, V_T0, V_T2, V_T3))

    def fill_a():
        lwait([lds_q[-9]])
        vread(2)

    xreduce('v_max_f32', fill_a)
    a('v_mul_f32 v%d, s%d, v%d' % (V_T0, S_C, V_T0))
    for r in range(8):
        a('v_fma_f32 v%d, v%d, s%d, -v%d' % (SA + r, SA + r, S_C, V_T0))
    lwait([lds_q[-5]])
    for r in range(8):
        a('v_exp_f32 v%d, v%d' % (SA + r, SA + r))
        if r < 4:
            vread(1)
        if r == 3:
            a('v_add_f32 v%d, v%d, v%d' % (V_T2, SA, SA + 1))
        if r == 4:
            a('v_add_f32 v%d, v%d, v%d' % (V_T3, SA + 2, SA + 3))
        if r == 6:
            a('v_add_f32 v%d, v%d, v%d' % (V_T2, V_T2, SA + 4))
            a('v_add_f32 v%d, v%d, v%d' % (V_T3, V_T3, SA + 5))
    a('v_add_f32 v%d, v%d, v%d' % (V_T2, V_T2, SA + 6))
    a('v_add_f32 v%d, v%d, v%d' % (V_T3, V_T3, SA + 7))
    xreduce('v_add_f32', lambda: vread(2))
    assert not vreads
    a('v_rcp_f32 v%d, v%d' % (V_T0, V_T0))
    PA, PB, PC = V_P, V_P + 2, V_P + 4
    lwait([('V', 3, 2)])
    for r in range(4):
        a('v_mul_f32 v%d, v%d, v%d' % (SA + r, SA + r, V_T0))
    for w in range(2):
        a('v_cvt_pk_bf16_f32 v%d, v%d, v%d' % (PA + w, SA + 2 * w, SA + 2 * w + 1))
    for w, vm in ((0, V_M0), (1, V_M1)):
        a('v_and_b32 v%d, v%d, v%d' % (PC + w, PA + w, vm))
    fstamp(7)

    def pv16(t):
        a('v_mfma_f32_16x16x16_bf16 v[%d:%d], v[%d:%d], v[%d:%d], 0' % (
            V_O + 4 * t, V_O + 4 * t + 3, R_V + 6 * t + 4, R_V + 6 * t + 5, PC, PC + 1))

    def pv32(t):
        a('v_mfma_f32_16x16x32_bf16 v[%d:%d], v[%d:%d], v[%d:%d], v[%d:%d]' % (
            V_O + 4 * t, V_O + 4 * t + 3, R_V + 6 * t, R_V + 6 * t + 3, PA, PA + 3, V_O + 4 * t, V_O + 4 * t + 3))

    def cvt(t):
        a('v_cvt_pk_bf16_f32 v%d, v%d, v%d' % (R_OUT + 2 * t, V_O + 4 * t, V_O + 4 * t + 1))
        a('v_cvt_pk_bf16_f32 v%d, v%d, v%d' % (R_OUT + 2 * t + 1, V_O + 4 * t + 2, V_O + 4 * t + 3))

    def owr(t):
        a('ds_write_b64 v%d, v[%d:%d] offset:%d' % (A_O + (t & 3), R_OUT + 2 * t, R_OUT + 2 * t + 1, 128 * (t >> 2)))

    a('v_mul_f32 v%d, v%d, v%d' % (SB, SB, V_T0))
    a('v_mul_f32 v%d, v%d, v%d' % (SB + 1, SB + 1, V_T0))
    pv16(0)
    a('v_mul_f32 v%d, v%d, v%d' % (SB + 2, SB + 2, V_T0))
    a('v_mul_f32 v%d, v%d, v%d' % (SB + 3, SB + 3, V_T0))
    pv16(1)
    for w in range(2):
        a('v_cvt_pk_bf16_f32 v%d, v%d, v%d' % (PB + w, SB + 2 * w, SB + 2 * w + 1))
    pv16(2)
    for w in range(2):
        a('v_xor_b32 v%d, v%d, v%d' % (PA + w, PA + w, PC + w))
    pv16(3)
    a('s_waitcnt lgkmcnt(0)')
    pv32(0); pv16(4); pv32(1); pv16(5); pv32(2); pv16(6); pv32(3); pv16(7)
    a('s_addk_i32 s%d, %d' % (S_QS, NC * 4096))
    cvt(0); pv32(4); owr(0)
    cvt(1); pv32(5); owr(1)
    cvt(2); pv32(6); owr(2)
    cvt(3); pv32(7); owr(3)
    for t in range(4, 8):
        cvt(t); owr(t)
    fstamp(8)
    a('ds_write_b32 v15, v13')
    a('s_add_u32 s%d, s%d, %d' % (S_X, S_X, NC * 8192))
    a('s_cmp_ge_u32 s%d, %d' % (S_X, KVEND))
    a('s_cselect_b32 s60, %d, 0' % (NSLOT * 8192))
    a('s_sub_u32 s%d, s%d, s60' % (S_X, S_X))
    a('s_add_u32 s%d, s%d, %d' % (S_STEP, S_STEP, NC))
    a('s_cmp_lt_u32 s%d, %d' % (S_STEP, 18 + LAG))
    a('s_cbranch_scc1 L_round')
    stamp(2)
    RB = R_K
    for n in range(4):
        a('ds_read_b128 v[%d:%d], v%d offset:%d' % (RB + 4 * n, RB + 4 * n + 3, V_LIN, 49152 + 1024 * n))
    if ctrig:
        wait_flag('L_ctrig', ctrig, ctmo)
    stamp(3)
    for n in range(4):
        if not ctrig:
            a('s_waitcnt lgkmcnt(%d)' % (3 - n))
        a('buffer_store_dwordx4 v[%d:%d], v%d, %s, s%d offen offset:%d%s' % (
            RB + 4 * n, RB + 4 * n + 3, V_ST0 + (n & 1), srd(S_O), S_QO, 1024 * n, st))
    fstamp(9)
    stamp(4)
    if fine:
        nst[0] = 10
    if diag:
        dump()
    a('L_end:')
    a('s_endpgm')
    dump_code()
    s, info = finish(a, NWG, 64 * (NC + 2), LDS)
    if pad:
        s = s.replace('.p2align 8\n.type', '.p2align 12\n.fill %d, 4, 0xbf800000\n.p2align 8\n.type' % (pad // 4))
    return s, info


if __name__ == '__main__':
    out = sys.argv[1]
    kw = {}
    for x in sys.argv[2:]:
        k, v = x.split('=')
        try:
            v = int(v)
        except ValueError:
            v = v.replace('+', ' ')
        kw[k] = v
    s, info = gen(**kw)
    open(out, 'w').write(s)
    print(out, info)
```

```python
import sys
import math
import struct
from asmlib import Asm, finish

NBYTES = 32 * 2048 * 128 * 2


def f32(x):
    return '0x%08x' % struct.unpack('<I', struct.pack('<f', x))[0]


def gen(D=32, xmap=3, alt=1, ld=' nt', ld_first=None, st=' sc1', trig=17, W=63, ctrig=17, ctmo=0, sched=1, fine=0, E2=18, G=4, De=0, par=0, prio=3, safe=1,
        diag='', arole='L', aidx=0, aop='max', aref=-1, pad=0xd00, tmo=0, tmo_from=15):
    a = Asm()
    NWG = 256
    NC = 4
    NSLOT = 11
    KV0 = 65536
    KVEND = KV0 + NSLOT * 8192
    FLAG = KVEND + 12
    LDS = KVEND + 256
    if ld_first is None:
        ld_first = ld
    RW = D - G
    PJ = -(-(RW % 12) // G) * G
    LAG = 1 + RW // 12
    if PJ == 12:
        PJ = 0
        LAG += 1
    S_Q, S_K, S_V, S_O = 12, 16, 20, 24
    srd = lambda b: 's[%d:%d]' % (b, b + 3)
    S_W, S_STR, S_KVO, S_QO, S_POS = 3, 37, 38, 39, 40
    V_FLAG = 1
    nst = [0]
    role = ['L']
    uid = [0]

    def stamp(idx=None):
        i = nst[0] if idx is None else idx
        if diag == 'stamp' or (diag == 'amp' and (i == 0 or (role[0] == arole and i in (aidx, aref)))):
            a('s_memrealtime s[%d:%d]' % (64 + 2 * i, 65 + 2 * i))
        nst[0] = max(nst[0], i + 1)

    def stamp_if(sreg, val, idx):
        if diag:
            uid[0] += 1
            a('s_cmp_lg_u32 s%d, %d' % (sreg, val))
            a('s_cbranch_scc1 L_ns%d' % uid[0])
            stamp(idx)
            a('L_ns%d:' % uid[0])

    def spin(lab, ref, lim):
        a('%s:' % lab)
        a('s_memrealtime s[94:95]')
        a('s_waitcnt lgkmcnt(0)')
        a('s_sub_u32 s96, s94, %s' % ref)
        a('s_cmp_lt_u32 s96, %s' % lim)
        a('s_cbranch_scc1 %s' % lab)

    tails = []

    def dump():
        if diag == 'stamp' or (diag == 'amp' and role[0] == arole):
            a('s_waitcnt vmcnt(0)')
            stamp()
            a('s_branch L_dump')
        else:
            a('s_endpgm')

    def dump_code():
        if diag == 'amp':
            a('L_dump:')
            a('s_load_dwordx2 s[62:63], s[0:1], 32')
            a('s_waitcnt lgkmcnt(0)')
            spin('L_sp0', 's64', '2000')
            a('s_not_b32 s93, s64')
            if aref >= 0:
                a('s_sub_u32 s%d, s%d, s%d' % (64 + 2 * aidx, 64 + 2 * aidx, 64 + 2 * aref))
            a('s_and_b32 s92, s%d, 0xfffff' % (64 + 2 * aidx))
            a('v_mov_b32 v8, s93')
            a('v_mov_b32 v9, s%d' % (64 + 2 * aidx))
            a('v_mov_b32 v10, s92')
            a('v_not_b32 v11, v9')
            a('v_mov_b32 v12, 0')
            a('s_mov_b64 exec, 1')
            a('global_atomic_umax v12, v8, s[62:63]')
            a('global_atomic_umax v12, v9, s[62:63] offset:4')
            a('global_atomic_add v12, v10, s[62:63] offset:8')
            a('global_atomic_umax v12, v11, s[62:63] offset:12')
            a('s_mov_b64 exec, -1')
            a('s_waitcnt vmcnt(0)')
            spin('L_sp1', 's64', '4500')
            a('global_load_dwordx4 v[8:11], v12, s[62:63] sc1')
            a('s_waitcnt vmcnt(0)')
            a('v_readfirstlane_b32 s93, v8')
            a('v_readfirstlane_b32 s97, v9')
            a('v_readfirstlane_b32 s98, v10')
            a('v_readfirstlane_b32 s99, v11')
            a('s_not_b32 s93, s93')
            if aref >= 0:
                if aop == 'avg':
                    a('s_lshr_b32 s97, s98, 8')
                elif aop == 'min':
                    a('s_not_b32 s97, s99')
            elif aop == 'max':
                a('s_sub_u32 s97, s97, s93')
            elif aop == 'min':
                a('s_not_b32 s99, s99')
                a('s_sub_u32 s97, s99, s93')
            else:
                a('s_lshr_b32 s98, s98, 8')
                a('s_and_b32 s97, s93, 0xfffff')
                a('s_sub_u32 s97, s98, s97')
            a('s_min_u32 s97, s97, 3000')
            a('s_mul_i32 s97, s97, 10')
            a('s_add_u32 s97, s97, 5000')
            spin('L_sp2', 's93', 's97')
            a('s_endpgm')
        if diag == 'stamp':
            a('L_dump:')
            a('s_load_dwordx2 s[62:63], s[0:1], 40')
            a('s_getreg_b32 s60, hwreg(HW_REG_XCC_ID)')
            a('s_waitcnt lgkmcnt(0)')
            spin('L_sp0', 's64', '2000')
            a('v_mov_b32 v5, 0')
            for i in range(12):
                a('v_writelane_b32 v5, s%d, %d' % (64 + 2 * i, i))
            a('v_writelane_b32 v5, s60, 30')
            a('v_writelane_b32 v5, s%d, 31' % S_W)
            a('s_lshl_b32 s61, s2, 3')
            a('s_add_u32 s61, s61, s%d' % S_W)
            a('s_lshl_b32 s61, s61, 8')
            a('v_lshl_add_u32 v6, v0, 2, s61')
            a('global_store_dword v6, v5, s[62:63]')
            a('s_endpgm')

    def guard(lab):
        if safe:
            a('s_add_u32 s56, s56, 1')
            a('s_cmp_ge_u32 s56, 0x20000')
            a('s_cbranch_scc1 %s_x' % lab)

    def wait_flag(lab, what, limit=0):
        if limit:
            a('s_mov_b32 s46, %d' % limit)
        a('%s:' % lab)
        if what > 17:
            a('ds_read_b128 v[8:11], v%d offset:4' % V_FLAG)
        else:
            a('ds_read_b32 v8, v%d' % V_FLAG)
        if limit:
            a('s_sub_u32 s46, s46, 1')
            a('s_cbranch_scc1 %s_x' % lab)
        else:
            guard(lab)
        a('s_waitcnt lgkmcnt(0)')
        if what > 17:
            a('v_min3_i32 v8, v8, v9, v10')
            a('v_min_i32 v8, v8, v11')
            a('v_cmp_ge_i32 vcc, %d, v8' % (what - 20))
        else:
            a('v_cmp_gt_i32 vcc, %d, v8' % (what + LAG))
        a('s_cbranch_vccnz %s' % lab)
        if safe or limit:
            a('%s_x:' % lab)

    stamp()
    a('s_load_dwordx2 s[%d:%d], s[0:1], 8' % (S_K, S_K + 1))
    a('s_load_dwordx2 s[%d:%d], s[0:1], 16' % (S_V, S_V + 1))
    a('s_load_dwordx2 s[%d:%d], s[0:1], 0' % (S_Q, S_Q + 1))
    a('s_load_dwordx2 s[%d:%d], s[0:1], 24' % (S_O, S_O + 1))
    a('s_cmp_ge_u32 s2, %d' % NWG)
    a('s_cbranch_scc1 L_end')
    a('v_lshrrev_b32 v5, 6, v0')
    a('v_and_b32 v0, 63, v0')
    a('v_readfirstlane_b32 s%d, v5' % S_W)
    a('v_mov_b32 v%d, %d' % (V_FLAG, FLAG))
    a('v_lshl_add_u32 v15, v5, 2, v%d' % V_FLAG)
    a('v_add_u32 v5, 1, v5')
    a('ds_write_b32 v15, v5')
    if safe:
        a('s_mov_b32 s56, 0')
    if xmap == 1:
        a('s_and_b32 s60, s2, 7')
        a('s_lshr_b32 s61, s2, 3')
        a('s_lshl_b32 s60, s60, 5')
        a('s_add_u32 s2, s60, s61')
    elif xmap == 3:
        a('s_bfe_u32 s60, s2, 0x40003')
        a('s_and_b32 s61, s2, 1')
        a('s_lshl4_add_u32 s60, s61, s60')
        a('s_lshr_b32 s61, s2, 7')
        a('s_and_b32 s2, s2, 6')
        a('s_or_b32 s2, s2, s61')
        a('s_lshl_b32 s2, s2, 5')
        a('s_or_b32 s2, s2, s60')
    elif xmap in (4, 5, 6):
        tab = {4: (0, 1, 4, 5), 5: (0, 0, 0, 0), 6: (0, 3, 5, 6)}[xmap]
        a('s_lshr_b32 s60, s2, 6')
        a('s_lshl_b32 s60, s60, 2')
        a('s_lshr_b32 s60, 0x%x, s60' % sum(v << (4 * k) for k, v in enumerate(tab)))
        a('s_xor_b32 s60, s60, s2')
        a('s_and_b32 s60, s60, 7')
        a('s_bfe_u32 s61, s2, 0x30003')
        a('s_and_b32 s2, s2, 0xc0')
        a('s_or_b32 s2, s2, s61')
        a('s_lshl3_add_u32 s2, s60, s2')
    elif xmap == 7:
        a('s_and_b32 s60, s2, 7')
        a('s_bfe_u32 s61, s2, 0x10003')
        a('s_lshl1_add_u32 s60, s60, s61')
        a('s_and_b32 s2, s2, 0xf0')
        a('s_or_b32 s2, s2, s60')
    a('s_lshl_b32 s%d, s2, 16' % S_QO)
    a('s_movk_i32 s%d, 4096' % S_STR)
    a('s_movk_i32 s61, -8192')
    a('s_and_b32 s60, s2, %d' % (1 if alt else 0))
    a('s_cmovk_i32 s%d, -4096' % S_STR)
    a('s_cselect_b32 s60, %d, 0' % (15 * 4096))
    a('s_cselect_b32 s61, s60, s61')
    a('s_cselect_b64 s[42:43], -1, 0')
    a('s_add_u32 s%d, s%d, s61' % (S_KVO, S_QO))
    a('s_add_u32 s%d, s%d, s60' % (S_QO, S_QO))
    a('v_lshrrev_b32 v6, 4, v0')
    a('v_and_b32 v7, 15, v0')
    a('s_mov_b32 s%d, %d' % (S_Q + 2, NBYTES))
    a('s_mov_b32 s%d, 0x20000' % (S_Q + 3))
    a('s_mov_b64 s[%d:%d], s[%d:%d]' % (S_O + 2, S_O + 3, S_Q + 2, S_Q + 3))
    a('v_lshlrev_b32 v5, 1, v6')
    a('v_xor_b32 v5, v5, v7')
    a('v_lshlrev_b32 v5, 4, v5')
    a('v_lshl_add_u32 v2, v6, 8, v5')
    a('v_xor_b32 v3, 128, v2')
    a('s_add_u32 s45, s%d, s%d' % (S_KVO, S_STR))
    a('s_add_u32 s46, s45, s%d' % S_STR)
    a('s_and_b32 s%d, s2, 7' % S_POS)
    a('s_cselect_b32 s44, s%d, 0' % S_KVO)
    a('s_cselect_b32 s45, s45, 0')
    a('s_cselect_b32 s%d, s%d, 0' % (S_K + 2, S_Q + 2))
    a('s_mov_b32 s%d, 0x20000' % (S_K + 3))
    a('s_mov_b64 s[%d:%d], s[%d:%d]' % (S_V + 2, S_V + 3, S_K + 2, S_K + 3))
    a('s_mov_b32 m0, %d' % KV0)
    a('s_cmp_lg_u32 s%d, 0' % S_W)
    a('s_waitcnt lgkmcnt(0)')
    a('s_cbranch_scc1 L_other')

    stamp()

    def group(r, so, fl, j0=None):
        for i in range(4):
            if j0 is not None and i and i % G == 0:
                wait_pub(j0 + i)
            a('buffer_load_dwordx4 v%d, %s, s%d offen offset:%d%s lds' % (2 + (i & 1), srd(r), so, i * 1024, fl))

    S_E, S_QL, S_KL, S_T = 47, 48, 49, 50
    for e in range(2):
        group(S_K, 44 + e, ld_first)
        a('s_addk_i32 m0, 4096')
        if e == 0 and prio:
            a('s_setprio %d' % prio)
        else:
            a('s_mov_b32 s%d, 2' % S_E)
        group(S_V, 44 + e, ld_first)
        if e == 0:
            a('s_addk_i32 m0, 4096')
            a('s_mov_b32 s%d, 0' % S_QL)
    if not prio:
        a('s_mov_b32 s%d, 2' % S_E)
    a('s_mov_b32 s%d, s%d' % (S_K + 2, S_Q + 2))
    a('s_mov_b32 s%d, s%d' % (S_V + 2, S_Q + 2))
    a('s_mov_b32 s%d, %d' % (S_KL, KV0 + 2 * 8192))
    if De:
        assert (D - De) % 12 == 0
        a('s_getreg_b32 s53, hwreg(HW_REG_XCC_ID, 0, 1)')
        a('s_cmp_eq_u32 s53, %d' % par)
        a('s_cselect_b32 s54, %d, 2' % (2 + (D - De) // 12))
        a('s_cselect_b32 s53, %d, 0' % E2)
        a('v_mov_b32 v4, s54')
    else:
        a('v_mov_b32 v4, 2')
    a('s_barrier')

    def wait_pub(j):
        if De:
            a('s_waitcnt vmcnt(%d)' % RW)
            a('s_cmp_ge_u32 s%d, s53' % S_E)
            a('s_cbranch_scc1 L_nw%d' % j)
            a('s_waitcnt vmcnt(%d)' % (De - G))
            a('L_nw%d:' % j)
            if j == PJ:
                if E2 < 18:
                    a('s_cmp_lg_u32 s%d, s53' % S_E)
                    a('s_cbranch_scc1 L_nb')
                    a('v_mov_b32 v4, s%d' % S_E)
                    a('L_nb:')
                a('ds_max_i32 v%d, v4' % V_FLAG)
                a('v_add_u32 v4, 1, v4')
                for k, x in enumerate((2, 5, 9, 13)):
                    stamp_if(S_E, x + LAG, 2 + k)
            return
        if E2 < 18:
            a('s_cmp_ge_u32 s%d, %d' % (S_E, E2))
            a('s_cbranch_scc1 L_nw%d' % j)
        a('s_waitcnt vmcnt(%d)' % RW)
        if j == PJ:
            a('ds_write_b32 v%d, v4' % V_FLAG)
            a('v_add_u32 v4, 1, v4')
            for k, x in enumerate((2, 5, 9, 13)):
                stamp_if(S_E, x + LAG, 2 + k)
        if E2 < 18:
            a('L_nw%d:' % j)

    a('L_ld:')
    a('s_mov_b32 m0, s%d' % S_QL)
    wait_pub(0)
    a('L_free:')
    a('ds_read_b128 v[8:11], v%d offset:4' % V_FLAG)
    a('s_cmp_eq_u32 m0, s%d' % S_KL)
    a('s_cbranch_scc1 L_noq')
    group(S_Q, S_QO, ld, 0)
    a('s_mov_b32 m0, s%d' % S_KL)
    a('s_sub_u32 s%d, s%d, 9' % (S_T, S_E))
    a('L_noq:')
    guard('L_free')
    a('s_waitcnt lgkmcnt(0)')
    a('v_min3_i32 v8, v8, v9, v10')
    a('v_min_i32 v8, v8, v11')
    a('v_cmp_ge_i32 vcc, s%d, v8' % S_T)
    a('s_cbranch_vccnz L_free')
    if safe:
        a('L_free_x:')
    wait_pub(4)
    group(S_K, 46, ld, 4)
    a('s_addk_i32 m0, 4096')
    wait_pub(8)
    group(S_V, 46, ld, 8)
    a('s_add_u32 s%d, s%d, s%d' % (S_QO, S_QO, S_STR))
    a('s_add_u32 s46, s46, s%d' % S_STR)
    a('s_addk_i32 s%d, 4096' % S_QL)
    a('s_addk_i32 s%d, 8192' % S_KL)
    a('s_cmp_eq_u32 s%d, %d' % (S_KL, KVEND))
    a('s_cmov_b32 s%d, %d' % (S_KL, KV0))
    a('s_add_u32 s%d, s%d, 1' % (S_E, S_E))
    a('s_cmp_lt_u32 s%d, 18' % S_E)
    a('s_cbranch_scc1 L_ld')
    stamp(6)
    assert De or D + 12 * (18 - E2) <= 63
    if De:
        a('v_mov_b32 v4, 18')
    for x in range((18 if De else E2) - LAG, 18):
        a('s_waitcnt vmcnt(%d)' % (12 * (17 - x)))
        a('%s v%d, v4' % ('ds_max_i32' if De else 'ds_write_b32', V_FLAG))
        if x < 17:
            a('v_add_u32 v4, 1, v4')
    nst[0] = 7
    dump()

    role[0] = 'C'
    nst[0] = 1
    a('L_other:')
    a('s_barrier')
    V_LIN, V_ST0, V_ST1 = 2, 3, 4
    a('v_xor_b32 v5, v7, v6')
    a('v_lshlrev_b32 v5, 4, v5')
    a('v_lshl_add_u32 v%d, v6, 8, v5' % V_ST0)
    a('v_xor_b32 v%d, 64, v%d' % (V_ST1, V_ST0))
    a('s_cmp_le_u32 s%d, %d' % (S_W, NC))
    a('s_cbranch_scc1 L_consumer')
    role[0] = 'S'
    a('v_lshlrev_b32 v%d, 4, v0' % V_LIN)
    for r in range(3):
        wait_flag('L_sr%d' % r, 20 + 5 + 4 * r)
        for n in range(16 * r, 16 * r + 16):
            if n % 16 == 14:
                a('s_waitcnt lgkmcnt(8)')
            a('ds_read_b128 v[%d:%d], v%d offset:%d' % (16 + 4 * n, 19 + 4 * n, V_LIN, 1024 * n))
    stamp(1)
    if trig:
        wait_flag('L_strig', trig, tmo)
    else:
        a('s_waitcnt lgkmcnt(0)')
    stamp(3)
    for n in range(48):
        if n >= W:
            a('s_waitcnt vmcnt(%d)' % (W - 1))
        a('buffer_store_dwordx4 v[%d:%d], v%d, %s, s%d offen offset:%d%s' % (
            16 + 4 * n, 19 + 4 * n, V_ST0 + (n & 1), srd(S_O), S_QO, 1024 * (n & 3), st))
        if n & 3 == 3 and n < 47:
            a('s_add_u32 s%d, s%d, s%d' % (S_QO, S_QO, S_STR))
    stamp(4)
    dump()
    role[0] = 'C'
    nst[0] = 1
    a('L_consumer:')
    S_STEP, S_X, S_Y, S_Z, S_QS, S_C, S_NEG = 44, 45, 46, 47, 48, 51, 52
    S_MASK = 28
    V_M0, V_M1, V_T0, V_T1, V_T2, V_T3 = 5, 6, 10, 11, 12, 14
    C_K, C_V, C_O = 16, 20, 28
    A_Q, A_K, A_V, A_O = 32, 36, 48, 72
    R_Q, R_K, R_V = 76, 92, 140
    V_S, V_P, V_O = 188, 200, 208
    R_OUT = R_Q
    a('v_and_b32 v13, 7, v7')
    a('v_lshlrev_b32 v5, 1, v13')
    a('v_xor_b32 v5, v5, v6')
    a('v_lshlrev_b32 v5, 4, v5')
    a('v_lshl_add_u32 v%d, v7, 8, v5' % C_K)
    a('v_xor_b32 v%d, 64, v%d' % (C_K + 1, C_K))
    a('v_xor_b32 v%d, 128, v%d' % (C_K + 2, C_K))
    a('v_xor_b32 v%d, 64, v%d' % (C_K + 3, C_K + 2))
    a('v_lshrrev_b32 v14, 2, v0')
    a('v_and_b32 v5, 7, v14')
    a('v_lshlrev_b32 v5, 5, v5')
    a('v_lshl_add_u32 v5, v14, 8, v5')
    a('v_and_b32 v14, 3, v0')
    a('v_lshl_add_u32 v%d, v14, 3, v5' % C_V)
    a('v_xor_b32 v%d, 128, v%d' % (C_V + 4, C_V))
    for t in (0, 4):
        a('v_xor_b32 v%d, 64, v%d' % (C_V + t + 2, C_V + t))
    for t in (0, 2, 4, 6):
        a('v_xor_b32 v%d, 32, v%d' % (C_V + t + 1, C_V + t))
    a('v_lshrrev_b32 v5, 1, v6')
    a('v_xor_b32 v5, v5, v13')
    a('v_lshlrev_b32 v5, 4, v5')
    a('v_lshl_add_u32 v5, v7, 8, v5')
    a('v_and_b32 v14, 1, v6')
    a('v_lshl_add_u32 v%d, v14, 3, v5' % C_O)
    a('v_xor_b32 v%d, 64, v%d' % (C_O + 2, C_O))
    for t in (0, 2):
        a('v_xor_b32 v%d, 32, v%d' % (C_O + t + 1, C_O + t))
    a('v_lshlrev_b32 v13, 2, v6')
    a('v_sub_u32 v13, v7, v13')
    for r in range(4):
        a('v_cmp_le_i32 vcc, %d, v13' % r)
        a('s_xor_b64 s[%d:%d], vcc, s[42:43]' % (S_MASK + 2 * r, S_MASK + 2 * r + 1))
    a('v_mov_b32 v13, 0xffff')
    for w, vm in ((0, V_M0), (1, V_M1)):
        a('v_cndmask_b32 v10, 0, v13, s[%d:%d]' % (S_MASK + 4 * w, S_MASK + 4 * w + 1))
        a('v_cndmask_b32 v14, 0, v13, s[%d:%d]' % (S_MASK + 4 * w + 2, S_MASK + 4 * w + 3))
        a('v_lshl_or_b32 v%d, v14, 16, v10' % vm)
    a('s_mov_b32 s%d, %s' % (S_C, f32(math.log2(math.e) / math.sqrt(128.0))))
    a('s_cmp_eq_u32 s%d, 0' % S_POS)
    a('s_cselect_b32 s%d, %s, 0' % (S_NEG, f32(-1e30)))
    a('s_sub_u32 s60, s%d, 1' % S_W)
    a('s_add_u32 s%d, s60, %d' % (S_STEP, 2 + LAG))
    a('s_lshl_b32 s%d, s60, 12' % S_QS)
    a('s_lshl_b32 s61, s60, 13')
    a('s_add_u32 s%d, s61, %d' % (S_X, KV0))
    a('v_lshl_add_u32 v%d, v0, 4, s%d' % (V_LIN, S_QS))
    a('s_add_u32 s60, s60, 12')
    a('s_mul_i32 s61, s60, s%d' % S_STR)
    a('s_add_u32 s%d, s%d, s61' % (S_QO, S_QO))

    a('L_round:')
    for x in (1, 2):
        a('s_add_u32 s%d, s%d, 8192' % (S_X + x, S_X + x - 1))
        a('s_cmp_eq_u32 s%d, %d' % (S_X + x, KVEND))
        a('s_cmov_b32 s%d, %d' % (S_X + x, KV0))
    for s in range(4):
        a('v_add_u32 v%d, s%d, v%d' % (A_Q + s, S_QS, C_K + s))
        for x in range(3):
            a('v_add_u32 v%d, s%d, v%d' % (A_K + 4 * x + s, S_X + x, C_K + s))
    for t in range(8):
        for x in range(3):
            a('v_add_u32 v%d, s%d, v%d' % (A_V + 8 * x + t, S_X + x, C_V + t))
    for t in range(4):
        a('v_add_u32 v%d, s%d, v%d' % (A_O + t, S_QS, C_O + t))
    a('s_cmp_lt_u32 s%d, %d' % (S_STEP, 4 + LAG))
    a('s_cselect_b32 s60, s%d, 0' % S_NEG)
    a('s_cmp_lt_u32 s%d, %d' % (S_STEP, 3 + LAG))
    a('s_cselect_b32 s61, s%d, 0' % S_NEG)
    for r in range(4):
        a('v_mov_b32 v%d, s60' % (V_S + r))
        a('v_mov_b32 v%d, s61' % (V_S + 4 + r))
    a('s_add_u32 s60, s%d, %d' % (S_STEP, NC - LAG))
    a('v_mov_b32 v13, s60')
    a('L_poll:')
    a('ds_read_b32 v%d, v%d' % (V_T0, V_FLAG))
    guard('L_poll')
    a('s_waitcnt lgkmcnt(0)')
    a('v_cmp_gt_i32 vcc, s%d, v%d' % (S_STEP, V_T0))
    a('s_cbranch_vccnz L_poll')
    if safe:
        a('L_poll_x:')
    stamp(1)
    def fstamp(i):
        if fine:
            a('s_memtime s[%d:%d]' % (64 + 2 * i, 65 + 2 * i))

    fstamp(5)
    lds_q = []

    def lds(text, tag):
        a(text)
        lds_q.append(tag)

    def lwait(tags):
        last = max(i for i, t in enumerate(lds_q) if t in tags)
        a('s_waitcnt lgkmcnt(%d)' % (len(lds_q) - 1 - last))

    def kread(s, x):
        if x < 0:
            lds('ds_read_b128 v[%d:%d], v%d' % (R_Q + 4 * s, R_Q + 4 * s + 3, A_Q + s), ('Q', s))
        else:
            lds('ds_read_b128 v[%d:%d], v%d' % (R_K + 16 * x + 4 * s, R_K + 16 * x + 4 * s + 3, A_K + 4 * x + s), ('K', s, x))

    vreads = [(t, x) for t in range(8) for x in range(3)]

    def vread(n):
        for _ in range(n):
            t, x = vreads.pop(0)
            lds('ds_read_b64_tr_b16 v[%d:%d], v%d offset:4096' % (R_V + 6 * t + 2 * x, R_V + 6 * t + 2 * x + 1, A_V + 8 * x + t), ('V', t, x))

    def qk(s, x):
        d = 'v[%d:%d]' % (V_S + 4 * x, V_S + 4 * x + 3)
        c = '0' if (s == 0 and x == 2) else d
        a('v_mfma_f32_16x16x32_bf16 %s, v[%d:%d], v[%d:%d], %s' % (
            d, R_K + 16 * x + 4 * s, R_K + 16 * x + 4 * s + 3, R_Q + 4 * s, R_Q + 4 * s + 3, c))

    XO = (0, 2, 1)
    pend = [(s, x) for s in range(4) for x in (-1,) + XO]
    for _ in range(12):
        kread(*pend.pop(0))
    for s in range(4):
        for x in XO:
            lwait([('Q', s), ('K', s, x)])
            qk(s, x)
            if pend:
                kread(*pend.pop(0))
                if pend and pend[0][1] == XO[0]:
                    kread(*pend.pop(0))
            elif s >= 2:
                vread(1)
    fstamp(6)
    SA, SB, SC = V_S, V_S + 4, V_S + 8
    vread(6)
    for r in range(4):
        a('v_cndmask_b32 v%d, v%d, v%d, s[%d:%d]' % (SA + r, SA + r, SC + r, S_MASK + 2 * r, S_MASK + 2 * r + 1))
    a('v_max3_f32 v%d, v%d, v%d, v%d' % (V_T2, SA, SA + 1, SA + 2))
    a('v_max3_f32 v%d, v%d, v%d, v%d' % (V_T3, SA + 3, SB, SB + 1))
    a('v_max3_f32 v%d, v%d, v%d, v%d' % (V_T2, V_T2, SB + 2, SB + 3))

    def xreduce(op, fill):
        a('%s v%d, v%d, v%d' % (op, V_T0, V_T2, V_T3))
        a('%s v%d, v%d, v%d' % (op, V_T1, V_T2, V_T3))
        fill()
        a('v_permlane32_swap_b32 v%d, v%d' % (V_T0, V_T1))
        a('%s v%d, v%d, v%d' % (op, V_T2, V_T0, V_T1))
        a('%s v%d, v%d, v%d' % (op, V_T3, V_T0, V_T1))
        fill()
        a('v_permlane16_swap_b32 v%d, v%d' % (V_T2, V_T3))
        a('%s v%d, v%d, v%d' % (op, V_T0, V_T2, V_T3))

    def fill_a():
        lwait([lds_q[-9]])
        vread(2)

    xreduce('v_max_f32', fill_a)
    a('v_mul_f32 v%d, s%d, v%d' % (V_T0, S_C, V_T0))
    for r in range(8):
        a('v_fma_f32 v%d, v%d, s%d, -v%d' % (SA + r, SA + r, S_C, V_T0))
    lwait([lds_q[-5]])
    for r in range(8):
        a('v_exp_f32 v%d, v%d' % (SA + r, SA + r))
        if r < 4:
            vread(1)
        if r == 3:
            a('v_add_f32 v%d, v%d, v%d' % (V_T2, SA, SA + 1))
        if r == 4:
            a('v_add_f32 v%d, v%d, v%d' % (V_T3, SA + 2, SA + 3))
        if r == 6:
            a('v_add_f32 v%d, v%d, v%d' % (V_T2, V_T2, SA + 4))
            a('v_add_f32 v%d, v%d, v%d' % (V_T3, V_T3, SA + 5))
    a('v_add_f32 v%d, v%d, v%d' % (V_T2, V_T2, SA + 6))
    a('v_add_f32 v%d, v%d, v%d' % (V_T3, V_T3, SA + 7))
    xreduce('v_add_f32', lambda: vread(2))
    assert not vreads
    a('v_rcp_f32 v%d, v%d' % (V_T0, V_T0))
    PA, PB, PC = V_P, V_P + 2, V_P + 4
    lwait([('V', 3, 2)])
    for r in range(4):
        a('v_mul_f32 v%d, v%d, v%d' % (SA + r, SA + r, V_T0))
    for w in range(2):
        a('v_cvt_pk_bf16_f32 v%d, v%d, v%d' % (PA + w, SA + 2 * w, SA + 2 * w + 1))
    for w, vm in ((0, V_M0), (1, V_M1)):
        a('v_and_b32 v%d, v%d, v%d' % (PC + w, PA + w, vm))
    fstamp(7)

    def pv16(t):
        a('v_mfma_f32_16x16x16_bf16 v[%d:%d], v[%d:%d], v[%d:%d], 0' % (
            V_O + 4 * t, V_O + 4 * t + 3, R_V + 6 * t + 4, R_V + 6 * t + 5, PC, PC + 1))

    def pv32(t):
        a('v_mfma_f32_16x16x32_bf16 v[%d:%d], v[%d:%d], v[%d:%d], v[%d:%d]' % (
            V_O + 4 * t, V_O + 4 * t + 3, R_V + 6 * t, R_V + 6 * t + 3, PA, PA + 3, V_O + 4 * t, V_O + 4 * t + 3))

    def cvt(t):
        a('v_cvt_pk_bf16_f32 v%d, v%d, v%d' % (R_OUT + 2 * t, V_O + 4 * t, V_O + 4 * t + 1))
        a('v_cvt_pk_bf16_f32 v%d, v%d, v%d' % (R_OUT + 2 * t + 1, V_O + 4 * t + 2, V_O + 4 * t + 3))

    def owr(t):
        a('ds_write_b64 v%d, v[%d:%d] offset:%d' % (A_O + (t & 3), R_OUT + 2 * t, R_OUT + 2 * t + 1, 128 * (t >> 2)))

    a('v_mul_f32 v%d, v%d, v%d' % (SB, SB, V_T0))
    a('v_mul_f32 v%d, v%d, v%d' % (SB + 1, SB + 1, V_T0))
    pv16(0)
    a('v_mul_f32 v%d, v%d, v%d' % (SB + 2, SB + 2, V_T0))
    a('v_mul_f32 v%d, v%d, v%d' % (SB + 3, SB + 3, V_T0))
    pv16(1)
    for w in range(2):
        a('v_cvt_pk_bf16_f32 v%d, v%d, v%d' % (PB + w, SB + 2 * w, SB + 2 * w + 1))
    pv16(2)
    for w in range(2):
        a('v_xor_b32 v%d, v%d, v%d' % (PA + w, PA + w, PC + w))
    pv16(3)
    a('s_waitcnt lgkmcnt(0)')
    pv32(0); pv16(4); pv32(1); pv16(5); pv32(2); pv16(6); pv32(3); pv16(7)
    a('s_addk_i32 s%d, %d' % (S_QS, NC * 4096))
    cvt(0); pv32(4); owr(0)
    cvt(1); pv32(5); owr(1)
    cvt(2); pv32(6); owr(2)
    cvt(3); pv32(7); owr(3)
    for t in range(4, 8):
        cvt(t); owr(t)
    fstamp(8)
    a('ds_write_b32 v15, v13')
    a('s_add_u32 s%d, s%d, %d' % (S_X, S_X, NC * 8192))
    a('s_cmp_ge_u32 s%d, %d' % (S_X, KVEND))
    a('s_cselect_b32 s60, %d, 0' % (NSLOT * 8192))
    a('s_sub_u32 s%d, s%d, s60' % (S_X, S_X))
    a('s_add_u32 s%d, s%d, %d' % (S_STEP, S_STEP, NC))
    a('s_cmp_lt_u32 s%d, %d' % (S_STEP, 18 + LAG))
    a('s_cbranch_scc1 L_round')
    stamp(2)
    RB = R_K
    for n in range(4):
        a('ds_read_b128 v[%d:%d], v%d offset:%d' % (RB + 4 * n, RB + 4 * n + 3, V_LIN, 49152 + 1024 * n))
    if ctrig:
        wait_flag('L_ctrig', ctrig, ctmo)
    stamp(3)
    for n in range(4):
        if not ctrig:
            a('s_waitcnt lgkmcnt(%d)' % (3 - n))
        a('buffer_store_dwordx4 v[%d:%d], v%d, %s, s%d offen offset:%d%s' % (
            RB + 4 * n, RB + 4 * n + 3, V_ST0 + (n & 1), srd(S_O), S_QO, 1024 * n, st))
    fstamp(9)
    stamp(4)
    if fine:
        nst[0] = 10
    if diag:
        dump()
    a('L_end:')
    a('s_endpgm')
    dump_code()
    s, info = finish(a, NWG, 64 * (NC + 2), LDS)
    if pad:
        s = s.replace('.p2align 8\n.type', '.p2align 12\n.fill %d, 4, 0xbf800000\n.p2align 8\n.type' % (pad // 4))
    return s, info


if __name__ == '__main__':
    out = sys.argv[1]
    kw = {}
    for x in sys.argv[2:]:
        k, v = x.split('=')
        try:
            v = int(v)
        except ValueError:
            v = v.replace('+', ' ')
        kw[k] = v
    s, info = gen(**kw)
    open(out, 'w').write(s)
    print(out, info)
```

```python
import sys
import math
import struct
from asmlib import Asm, finish

NBYTES = 32 * 2048 * 128 * 2


def f32(x):
    return '0x%08x' % struct.unpack('<I', struct.pack('<f', x))[0]


def gen(D=32, xmap=3, alt=1, ld=' nt', ld_first=None, st=' sc1', trig=17, W=63, ctrig=17, ctmo=0, sched=1, fine=0, E2=18, G=4, De=0, par=0, assist=0, prio=3, safe=1,
        diag='', arole='L', aidx=0, aop='max', aref=-1, pad=0xd00, tmo=0, tmo_from=15):
    a = Asm()
    NWG = 256
    NC = 4
    NSLOT = 11
    KV0 = 65536
    KVEND = KV0 + NSLOT * 8192
    FLAG = KVEND + 12
    LDS = KVEND + 256
    if ld_first is None:
        ld_first = ld
    RW = D - G
    PJ = -(-((RW + 8) % 12) // G) * G
    LAG = (RW + 8) // 12
    if PJ == 12:
        PJ = 0
        LAG += 1
    S_Q, S_K, S_V, S_O = 12, 16, 20, 24
    srd = lambda b: 's[%d:%d]' % (b, b + 3)
    S_W, S_STR, S_KVO, S_QO, S_POS = 3, 37, 38, 39, 40
    V_FLAG = 1
    nst = [0]
    role = ['L']
    uid = [0]

    def stamp(idx=None):
        i = nst[0] if idx is None else idx
        if diag == 'stamp' or (diag == 'amp' and (i == 0 or (role[0] in arole and i in (aidx, aref)))):
            a('s_memrealtime s[%d:%d]' % (64 + 2 * i, 65 + 2 * i))
        nst[0] = max(nst[0], i + 1)

    def stamp_if(sreg, val, idx):
        if diag == 'stamp' or (diag == 'amp' and role[0] in arole and idx in (aidx, aref)):
            uid[0] += 1
            a('s_cmp_lg_u32 s%d, %d' % (sreg, val))
            a('s_cbranch_scc1 L_ns%d' % uid[0])
            stamp(idx)
            a('L_ns%d:' % uid[0])

    def spin(lab, ref, lim):
        a('%s:' % lab)
        a('s_memrealtime s[94:95]')
        a('s_waitcnt lgkmcnt(0)')
        a('s_sub_u32 s96, s94, %s' % ref)
        a('s_cmp_lt_u32 s96, %s' % lim)
        a('s_cbranch_scc1 %s' % lab)

    tails = []

    def dump():
        if diag == 'stamp' or (diag == 'amp' and role[0] in arole):
            if role[0] != 'L':
                a('s_waitcnt vmcnt(0)')
            stamp()
            a('s_branch L_dump')
        else:
            a('s_endpgm')

    def dump_code():
        if diag == 'amp':
            a('L_dump:')
            a('s_load_dwordx2 s[62:63], s[0:1], 32')
            a('s_waitcnt lgkmcnt(0)')
            spin('L_sp0', 's64', '2000')
            a('s_not_b32 s93, s64')
            if aref >= 0:
                a('s_sub_u32 s%d, s%d, s%d' % (64 + 2 * aidx, 64 + 2 * aidx, 64 + 2 * aref))
            a('s_and_b32 s92, s%d, 0xfffff' % (64 + 2 * aidx))
            a('v_mov_b32 v8, s93')
            a('v_mov_b32 v9, s%d' % (64 + 2 * aidx))
            a('v_mov_b32 v10, s92')
            a('v_not_b32 v11, v9')
            a('v_mov_b32 v12, 0')
            a('s_mov_b64 exec, 1')
            a('global_atomic_umax v12, v8, s[62:63]')
            a('global_atomic_umax v12, v9, s[62:63] offset:4')
            if len(arole) == 1:
                a('global_atomic_add v12, v10, s[62:63] offset:8')
                a('global_atomic_umax v12, v11, s[62:63] offset:12')
            a('s_mov_b64 exec, -1')
            a('s_waitcnt vmcnt(0)')
            spin('L_sp1', 's64', '4500' if len(arole) == 1 else '7500')
            a('global_load_dwordx4 v[8:11], v12, s[62:63] sc1')
            a('s_waitcnt vmcnt(0)')
            a('v_readfirstlane_b32 s93, v8')
            a('v_readfirstlane_b32 s97, v9')
            a('v_readfirstlane_b32 s98, v10')
            a('v_readfirstlane_b32 s99, v11')
            a('s_not_b32 s93, s93')
            if aref >= 0:
                if aop == 'avg':
                    a('s_lshr_b32 s97, s98, 8')
                elif aop == 'min':
                    a('s_not_b32 s97, s99')
            elif aop == 'max':
                a('s_sub_u32 s97, s97, s93')
            elif aop == 'min':
                a('s_not_b32 s99, s99')
                a('s_sub_u32 s97, s99, s93')
            else:
                a('s_lshr_b32 s98, s98, 8')
                a('s_and_b32 s97, s93, 0xfffff')
                a('s_sub_u32 s97, s98, s97')
            a('s_min_u32 s97, s97, 3000')
            a('s_mul_i32 s97, s97, 10')
            a('s_add_u32 s97, s97, %d' % (5000 if len(arole) == 1 else 8000))
            spin('L_sp2', 's93', 's97')
            a('s_endpgm')
        if diag == 'stamp':
            a('L_dump:')
            a('s_load_dwordx2 s[62:63], s[0:1], 40')
            a('s_getreg_b32 s60, hwreg(HW_REG_XCC_ID)')
            a('s_waitcnt lgkmcnt(0)')
            spin('L_sp0', 's64', '2000')
            a('v_mov_b32 v5, 0')
            for i in range(12):
                a('v_writelane_b32 v5, s%d, %d' % (64 + 2 * i, i))
            a('v_writelane_b32 v5, s60, 30')
            a('v_writelane_b32 v5, s%d, 31' % S_W)
            a('s_lshl_b32 s61, s2, 3')
            a('s_add_u32 s61, s61, s%d' % S_W)
            a('s_lshl_b32 s61, s61, 8')
            a('v_lshl_add_u32 v6, v0, 2, s61')
            a('global_store_dword v6, v5, s[62:63]')
            a('s_endpgm')

    def guard(lab):
        if safe:
            a('s_add_u32 s56, s56, 1')
            a('s_cmp_ge_u32 s56, 0x20000')
            a('s_cbranch_scc1 %s_x' % lab)

    def wait_flag(lab, what, limit=0):
        if limit:
            a('s_mov_b32 s46, %d' % limit)
        a('%s:' % lab)
        if what > 17:
            a('ds_read_b128 v[8:11], v%d offset:4' % V_FLAG)
        else:
            a('ds_read_b32 v8, v%d' % V_FLAG)
        if limit:
            a('s_sub_u32 s46, s46, 1')
            a('s_cbranch_scc1 %s_x' % lab)
        else:
            guard(lab)
        a('s_waitcnt lgkmcnt(0)')
        if what > 17:
            a('v_min3_i32 v8, v8, v9, v10')
            a('v_min_i32 v8, v8, v11')
            a('v_cmp_ge_i32 vcc, %d, v8' % (what - 20))
        else:
            a('v_cmp_gt_i32 vcc, %d, v8' % (what + LAG))
        a('s_cbranch_vccnz %s' % lab)
        if safe or limit:
            a('%s_x:' % lab)

    stamp()
    a('s_load_dwordx2 s[%d:%d], s[0:1], 8' % (S_K, S_K + 1))
    a('s_load_dwordx2 s[%d:%d], s[0:1], 16' % (S_V, S_V + 1))
    a('s_load_dwordx2 s[%d:%d], s[0:1], 0' % (S_Q, S_Q + 1))
    a('s_load_dwordx2 s[%d:%d], s[0:1], 24' % (S_O, S_O + 1))
    a('s_cmp_ge_u32 s2, %d' % NWG)
    a('s_cbranch_scc1 L_end')
    a('v_lshrrev_b32 v5, 6, v0')
    a('v_and_b32 v0, 63, v0')
    a('v_readfirstlane_b32 s%d, v5' % S_W)
    a('v_mov_b32 v%d, %d' % (V_FLAG, FLAG))
    a('v_lshl_add_u32 v15, v5, 2, v%d' % V_FLAG)
    a('v_add_u32 v5, 1, v5')
    a('ds_write_b32 v15, v5')
    if safe:
        a('s_mov_b32 s56, 0')
    if xmap == 1:
        a('s_and_b32 s60, s2, 7')
        a('s_lshr_b32 s61, s2, 3')
        a('s_lshl_b32 s60, s60, 5')
        a('s_add_u32 s2, s60, s61')
    elif xmap == 3:
        a('s_bfe_u32 s60, s2, 0x40003')
        a('s_and_b32 s61, s2, 1')
        a('s_lshl4_add_u32 s60, s61, s60')
        a('s_lshr_b32 s61, s2, 7')
        a('s_and_b32 s2, s2, 6')
        a('s_or_b32 s2, s2, s61')
        a('s_lshl_b32 s2, s2, 5')
        a('s_or_b32 s2, s2, s60')
    elif xmap in (4, 5, 6):
        tab = {4: (0, 1, 4, 5), 5: (0, 0, 0, 0), 6: (0, 3, 5, 6)}[xmap]
        a('s_lshr_b32 s60, s2, 6')
        a('s_lshl_b32 s60, s60, 2')
        a('s_lshr_b32 s60, 0x%x, s60' % sum(v << (4 * k) for k, v in enumerate(tab)))
        a('s_xor_b32 s60, s60, s2')
        a('s_and_b32 s60, s60, 7')
        a('s_bfe_u32 s61, s2, 0x30003')
        a('s_and_b32 s2, s2, 0xc0')
        a('s_or_b32 s2, s2, s61')
        a('s_lshl3_add_u32 s2, s60, s2')
    elif xmap == 7:
        a('s_and_b32 s60, s2, 7')
        a('s_bfe_u32 s61, s2, 0x10003')
        a('s_lshl1_add_u32 s60, s60, s61')
        a('s_and_b32 s2, s2, 0xf0')
        a('s_or_b32 s2, s2, s60')
    a('s_lshl_b32 s%d, s2, 16' % S_QO)
    a('s_movk_i32 s%d, 4096' % S_STR)
    a('s_movk_i32 s61, -8192')
    a('s_and_b32 s60, s2, %d' % (1 if alt else 0))
    a('s_cmovk_i32 s%d, -4096' % S_STR)
    a('s_cselect_b32 s60, %d, 0' % (15 * 4096))
    a('s_cselect_b32 s61, s60, s61')
    a('s_cselect_b64 s[42:43], -1, 0')
    a('s_add_u32 s%d, s%d, s61' % (S_KVO, S_QO))
    a('s_add_u32 s%d, s%d, s60' % (S_QO, S_QO))
    a('v_lshrrev_b32 v6, 4, v0')
    a('v_and_b32 v7, 15, v0')
    a('s_mov_b32 s%d, %d' % (S_Q + 2, NBYTES))
    a('s_mov_b32 s%d, 0x20000' % (S_Q + 3))
    a('s_mov_b64 s[%d:%d], s[%d:%d]' % (S_O + 2, S_O + 3, S_Q + 2, S_Q + 3))
    a('v_lshlrev_b32 v5, 1, v6')
    a('v_xor_b32 v5, v5, v7')
    a('v_lshlrev_b32 v5, 4, v5')
    a('v_lshl_add_u32 v2, v6, 8, v5')
    a('v_xor_b32 v3, 128, v2')
    a('s_add_u32 s45, s%d, s%d' % (S_KVO, S_STR))
    a('s_and_b32 s%d, s2, 7' % S_POS)
    a('s_cselect_b32 s44, s%d, 0' % S_KVO)
    a('s_cselect_b32 s45, s45, 0')
    a('s_cselect_b32 s%d, s%d, 0' % (S_K + 2, S_Q + 2))
    a('s_mov_b32 s%d, 0x20000' % (S_K + 3))
    a('s_mov_b64 s[%d:%d], s[%d:%d]' % (S_V + 2, S_V + 3, S_K + 2, S_K + 3))
    a('s_mov_b32 m0, %d' % KV0)
    a('s_cmp_lg_u32 s%d, 0' % S_W)
    a('s_waitcnt lgkmcnt(0)')
    a('s_cbranch_scc1 L_other')

    stamp()

    def group(r, so, fl, j0=None):
        for i in range(4):
            if j0 is not None and i and i % G == 0:
                wait_pub(j0 + i)
            a('buffer_load_dwordx4 v%d, %s, s%d offen offset:%d%s lds' % (2 + (i & 1), srd(r), so, i * 1024, fl))

    S_E, S_QL, S_KL, S_T = 47, 48, 49, 50
    S_KV = S_KVO
    for e in range(2):
        group(S_K, 44 + e, ld_first)
        a('s_addk_i32 m0, 4096')
        if e == 0:
            a('s_setprio %d' % prio)
        else:
            a('s_mov_b32 s%d, 2' % S_E)
        group(S_V, 44 + e, ld_first)
        a('s_movk_i32 m0, %d' % (4096 * e))
        a('s_add_u32 s%d, s%d, s%d' % (S_KV, S_KV, S_STR))
        group(S_Q, S_QO, ld)
        if e == 0:
            a('s_mov_b32 m0, %d' % (KV0 + 8192))
        a('s_add_u32 s%d, s%d, s%d' % (S_QO, S_QO, S_STR))
    a('s_mov_b32 s%d, s%d' % (S_K + 2, S_Q + 2))
    a('s_mov_b32 s%d, s%d' % (S_V + 2, S_Q + 2))
    a('s_movk_i32 s%d, 8192' % S_QL)
    a('s_mov_b32 s%d, %d' % (S_KL, KV0 + 2 * 8192))
    if De:
        assert (D - De) % 12 == 0
        a('s_getreg_b32 s53, hwreg(HW_REG_XCC_ID, 0, 1)')
        a('s_cmp_eq_u32 s53, %d' % par)
        a('s_cselect_b32 s54, %d, 2' % (2 + (D - De) // 12))
        a('v_mov_b32 v4, s54')
    else:
        a('v_mov_b32 v4, 2')
    a('s_barrier')

    def wait_pub(j):
        a('s_waitcnt vmcnt(%d)' % RW)
        if De:
            a('s_cmp_lg_u32 s53, %d' % par)
            a('s_cbranch_scc1 L_nw%d' % j)
            a('s_waitcnt vmcnt(%d)' % (De - G))
            a('L_nw%d:' % j)
        if j == PJ:
            a('ds_write_b32 v%d, v4' % V_FLAG)
            a('v_add_u32 v4, 1, v4')
            for k, x in enumerate((2, 5, 9, 11)):
                stamp_if(S_E, x + LAG, 2 + k)

    a('L_ld:')
    a('s_mov_b32 m0, s%d' % S_KL)
    wait_pub(0)
    group(S_K, S_KV, ld, 0)
    a('s_addk_i32 m0, 4096')
    wait_pub(4)
    group(S_V, S_KV, ld, 4)
    a('s_mov_b32 m0, s%d' % S_QL)
    a('ds_read_b128 v[8:11], v%d offset:4' % V_FLAG)
    wait_pub(8)
    group(S_Q, S_QO, ld, 8)
    a('s_add_u32 s%d, s%d, s%d' % (S_QO, S_QO, S_STR))
    a('s_add_u32 s%d, s%d, s%d' % (S_KV, S_KV, S_STR))
    a('s_addk_i32 s%d, 4096' % S_QL)
    a('s_addk_i32 s%d, 8192' % S_KL)
    a('s_cmp_eq_u32 s%d, %d' % (S_KL, KVEND))
    a('s_cmov_b32 s%d, %d' % (S_KL, KV0))
    a('s_sub_u32 s%d, s%d, 7' % (S_T, S_E))
    a('L_free:')
    a('s_waitcnt lgkmcnt(0)')
    a('v_min3_i32 v8, v8, v9, v10')
    a('v_min_i32 v8, v8, v11')
    a('v_cmp_lt_i32 vcc, s%d, v8' % S_T)
    a('s_cbranch_vccnz L_free_x')
    a('ds_read_b128 v[8:11], v%d offset:4' % V_FLAG)
    guard('L_free')
    a('s_branch L_free')
    a('L_free_x:')
    a('s_add_u32 s%d, s%d, 1' % (S_E, S_E))
    a('s_cmp_lt_u32 s%d, 16' % S_E)
    a('s_cbranch_scc1 L_ld')
    assert LAG <= 6
    a('s_mov_b32 m0, %d' % (KV0 + 5 * 8192))
    if D + 16 + assist > 63:
        a('s_waitcnt vmcnt(%d)' % (63 - 16 - assist))
    for e in (16, 17):
        group(S_K, S_KV, ld)
        a('s_addk_i32 m0, 4096')
        group(S_V, S_KV, ld)
        if e == 16:
            a('s_addk_i32 m0, 4096')
        a('s_add_u32 s%d, s%d, s%d' % (S_KV, S_KV, S_STR))
    if assist:
        a('v_lshlrev_b32 v12, 7, v0')
        a('s_min_i32 s60, s%d, 0' % S_STR)
        a('s_add_u32 s61, s%d, s60' % S_QO)
        a('s_add_u32 s60, s%d, s60' % S_KV)
        a('buffer_load_dword v13, v12, %s, s61 offen nt' % srd(S_Q))
        a('buffer_load_dword v13, v12, %s, s60 offen nt' % srd(S_K))
        a('buffer_load_dword v13, v12, %s, s60 offen nt' % srd(S_V))
    stamp(6)
    for x in range(16 - LAG, 18):
        left = 208 - (12 * x + 8 if x <= 16 else 208)
        skip = De and x < 16 - LAG + (D - De) // 12
        if skip and x == 16 - LAG:
            a('s_cmp_eq_u32 s53, %d' % par)
            a('s_cbranch_scc1 L_epi')
        if De and x == 16 - LAG + (D - De) // 12:
            a('L_epi:')
        a('s_waitcnt vmcnt(%d)' % min(63, left + assist))
        a('ds_write_b32 v%d, v4' % V_FLAG)
        if x < 17:
            a('v_add_u32 v4, 1, v4')
    nst[0] = 7
    dump()

    role[0] = 'C'
    nst[0] = 1
    a('L_other:')
    a('s_barrier')
    V_LIN, V_ST0, V_ST1 = 2, 3, 4
    a('v_xor_b32 v5, v7, v6')
    a('v_lshlrev_b32 v5, 4, v5')
    a('v_lshl_add_u32 v%d, v6, 8, v5' % V_ST0)
    a('v_xor_b32 v%d, 64, v%d' % (V_ST1, V_ST0))
    a('s_cmp_le_u32 s%d, %d' % (S_W, NC))
    a('s_cbranch_scc1 L_consumer')
    role[0] = 'S'
    a('v_lshlrev_b32 v%d, 4, v0' % V_LIN)
    for r in range(3):
        wait_flag('L_sr%d' % r, 20 + 5 + 4 * r)
        for n in range(16 * r, 16 * r + 16):
            if n % 16 == 14:
                a('s_waitcnt lgkmcnt(8)')
            a('ds_read_b128 v[%d:%d], v%d offset:%d' % (16 + 4 * n, 19 + 4 * n, V_LIN, 1024 * n))
    stamp(1)
    if trig:
        wait_flag('L_strig', trig, tmo)
    else:
        a('s_waitcnt lgkmcnt(0)')
    stamp(3)
    for n in range(48):
        if n >= W:
            a('s_waitcnt vmcnt(%d)' % (W - 1))
        a('buffer_store_dwordx4 v[%d:%d], v%d, %s, s%d offen offset:%d%s' % (
            16 + 4 * n, 19 + 4 * n, V_ST0 + (n & 1), srd(S_O), S_QO, 1024 * (n & 3), st))
        if n & 3 == 3 and n < 47:
            a('s_add_u32 s%d, s%d, s%d' % (S_QO, S_QO, S_STR))
    stamp(4)
    dump()
    role[0] = 'C'
    nst[0] = 1
    a('L_consumer:')
    S_STEP, S_X, S_Y, S_Z, S_QS, S_C, S_NEG = 44, 45, 46, 47, 48, 51, 52
    S_MASK = 28
    V_M0, V_M1, V_T0, V_T1, V_T2, V_T3 = 5, 6, 10, 11, 12, 14
    C_K, C_V, C_O = 16, 20, 28
    A_Q, A_K, A_V, A_O = 32, 36, 48, 72
    R_Q, R_K, R_V = 76, 92, 140
    V_S, V_P, V_O = 188, 200, 208
    R_OUT = R_Q
    a('v_and_b32 v13, 7, v7')
    a('v_lshlrev_b32 v5, 1, v13')
    a('v_xor_b32 v5, v5, v6')
    a('v_lshlrev_b32 v5, 4, v5')
    a('v_lshl_add_u32 v%d, v7, 8, v5' % C_K)
    a('v_xor_b32 v%d, 64, v%d' % (C_K + 1, C_K))
    a('v_xor_b32 v%d, 128, v%d' % (C_K + 2, C_K))
    a('v_xor_b32 v%d, 64, v%d' % (C_K + 3, C_K + 2))
    a('v_lshrrev_b32 v14, 2, v0')
    a('v_and_b32 v5, 7, v14')
    a('v_lshlrev_b32 v5, 5, v5')
    a('v_lshl_add_u32 v5, v14, 8, v5')
    a('v_and_b32 v14, 3, v0')
    a('v_lshl_add_u32 v%d, v14, 3, v5' % C_V)
    a('v_xor_b32 v%d, 128, v%d' % (C_V + 4, C_V))
    for t in (0, 4):
        a('v_xor_b32 v%d, 64, v%d' % (C_V + t + 2, C_V + t))
    for t in (0, 2, 4, 6):
        a('v_xor_b32 v%d, 32, v%d' % (C_V + t + 1, C_V + t))
    a('v_lshrrev_b32 v5, 1, v6')
    a('v_xor_b32 v5, v5, v13')
    a('v_lshlrev_b32 v5, 4, v5')
    a('v_lshl_add_u32 v5, v7, 8, v5')
    a('v_and_b32 v14, 1, v6')
    a('v_lshl_add_u32 v%d, v14, 3, v5' % C_O)
    a('v_xor_b32 v%d, 64, v%d' % (C_O + 2, C_O))
    for t in (0, 2):
        a('v_xor_b32 v%d, 32, v%d' % (C_O + t + 1, C_O + t))
    a('v_lshlrev_b32 v13, 2, v6')
    a('v_sub_u32 v13, v7, v13')
    for r in range(4):
        a('v_cmp_le_i32 vcc, %d, v13' % r)
        a('s_xor_b64 s[%d:%d], vcc, s[42:43]' % (S_MASK + 2 * r, S_MASK + 2 * r + 1))
    a('v_mov_b32 v13, 0xffff')
    for w, vm in ((0, V_M0), (1, V_M1)):
        a('v_cndmask_b32 v10, 0, v13, s[%d:%d]' % (S_MASK + 4 * w, S_MASK + 4 * w + 1))
        a('v_cndmask_b32 v14, 0, v13, s[%d:%d]' % (S_MASK + 4 * w + 2, S_MASK + 4 * w + 3))
        a('v_lshl_or_b32 v%d, v14, 16, v10' % vm)
    a('s_mov_b32 s%d, %s' % (S_C, f32(math.log2(math.e) / math.sqrt(128.0))))
    a('s_cmp_eq_u32 s%d, 0' % S_POS)
    a('s_cselect_b32 s%d, %s, 0' % (S_NEG, f32(-1e30)))
    a('s_sub_u32 s60, s%d, 1' % S_W)
    a('s_add_u32 s%d, s60, %d' % (S_STEP, 2 + LAG))
    a('s_lshl_b32 s%d, s60, 12' % S_QS)
    a('s_lshl_b32 s61, s60, 13')
    a('s_add_u32 s%d, s61, %d' % (S_X, KV0))
    a('v_lshl_add_u32 v%d, v0, 4, s%d' % (V_LIN, S_QS))
    a('s_add_u32 s60, s60, 12')
    a('s_mul_i32 s61, s60, s%d' % S_STR)
    a('s_add_u32 s%d, s%d, s61' % (S_QO, S_QO))

    a('L_round:')
    for x in (1, 2):
        a('s_add_u32 s%d, s%d, 8192' % (S_X + x, S_X + x - 1))
        a('s_cmp_eq_u32 s%d, %d' % (S_X + x, KVEND))
        a('s_cmov_b32 s%d, %d' % (S_X + x, KV0))
    for s in range(4):
        a('v_add_u32 v%d, s%d, v%d' % (A_Q + s, S_QS, C_K + s))
        for x in range(3):
            a('v_add_u32 v%d, s%d, v%d' % (A_K + 4 * x + s, S_X + x, C_K + s))
    for t in range(8):
        for x in range(3):
            a('v_add_u32 v%d, s%d, v%d' % (A_V + 8 * x + t, S_X + x, C_V + t))
    for t in range(4):
        a('v_add_u32 v%d, s%d, v%d' % (A_O + t, S_QS, C_O + t))
    a('s_cmp_lt_u32 s%d, %d' % (S_STEP, 4 + LAG))
    a('s_cselect_b32 s60, s%d, 0' % S_NEG)
    a('s_cmp_lt_u32 s%d, %d' % (S_STEP, 3 + LAG))
    a('s_cselect_b32 s61, s%d, 0' % S_NEG)
    for r in range(4):
        a('v_mov_b32 v%d, s60' % (V_S + r))
        a('v_mov_b32 v%d, s61' % (V_S + 4 + r))
    a('s_add_u32 s60, s%d, %d' % (S_STEP, NC - LAG))
    a('v_mov_b32 v13, s60')
    a('L_poll:')
    a('ds_read_b32 v%d, v%d' % (V_T0, V_FLAG))
    guard('L_poll')
    a('s_waitcnt lgkmcnt(0)')
    a('v_cmp_gt_i32 vcc, s%d, v%d' % (S_STEP, V_T0))
    a('s_cbranch_vccnz L_poll')
    if safe:
        a('L_poll_x:')
    stamp(1)
    def fstamp(i):
        if fine:
            a('s_memtime s[%d:%d]' % (64 + 2 * i, 65 + 2 * i))

    fstamp(5)
    lds_q = []

    def lds(text, tag):
        a(text)
        lds_q.append(tag)

    def lwait(tags):
        last = max(i for i, t in enumerate(lds_q) if t in tags)
        a('s_waitcnt lgkmcnt(%d)' % (len(lds_q) - 1 - last))

    def kread(s, x):
        if x < 0:
            lds('ds_read_b128 v[%d:%d], v%d' % (R_Q + 4 * s, R_Q + 4 * s + 3, A_Q + s), ('Q', s))
        else:
            lds('ds_read_b128 v[%d:%d], v%d' % (R_K + 16 * x + 4 * s, R_K + 16 * x + 4 * s + 3, A_K + 4 * x + s), ('K', s, x))

    vreads = [(t, x) for t in range(8) for x in range(3)]

    def vread(n):
        for _ in range(n):
            t, x = vreads.pop(0)
            lds('ds_read_b64_tr_b16 v[%d:%d], v%d offset:4096' % (R_V + 6 * t + 2 * x, R_V + 6 * t + 2 * x + 1, A_V + 8 * x + t), ('V', t, x))

    def qk(s, x):
        d = 'v[%d:%d]' % (V_S + 4 * x, V_S + 4 * x + 3)
        c = '0' if (s == 0 and x == 2) else d
        a('v_mfma_f32_16x16x32_bf16 %s, v[%d:%d], v[%d:%d], %s' % (
            d, R_K + 16 * x + 4 * s, R_K + 16 * x + 4 * s + 3, R_Q + 4 * s, R_Q + 4 * s + 3, c))

    XO = (0, 2, 1)
    pend = [(s, x) for s in range(4) for x in (-1,) + XO]
    for _ in range(12):
        kread(*pend.pop(0))
    for s in range(4):
        for x in XO:
            lwait([('Q', s), ('K', s, x)])
            qk(s, x)
            if pend:
                kread(*pend.pop(0))
                if pend and pend[0][1] == XO[0]:
                    kread(*pend.pop(0))
            elif s >= 2:
                vread(1)
    fstamp(6)
    SA, SB, SC = V_S, V_S + 4, V_S + 8
    vread(6)
    for r in range(4):
        a('v_cndmask_b32 v%d, v%d, v%d, s[%d:%d]' % (SA + r, SA + r, SC + r, S_MASK + 2 * r, S_MASK + 2 * r + 1))
    a('v_max3_f32 v%d, v%d, v%d, v%d' % (V_T2, SA, SA + 1, SA + 2))
    a('v_max3_f32 v%d, v%d, v%d, v%d' % (V_T3, SA + 3, SB, SB + 1))
    a('v_max3_f32 v%d, v%d, v%d, v%d' % (V_T2, V_T2, SB + 2, SB + 3))

    def xreduce(op, fill):
        a('%s v%d, v%d, v%d' % (op, V_T0, V_T2, V_T3))
        a('%s v%d, v%d, v%d' % (op, V_T1, V_T2, V_T3))
        fill()
        a('v_permlane32_swap_b32 v%d, v%d' % (V_T0, V_T1))
        a('%s v%d, v%d, v%d' % (op, V_T2, V_T0, V_T1))
        a('%s v%d, v%d, v%d' % (op, V_T3, V_T0, V_T1))
        fill()
        a('v_permlane16_swap_b32 v%d, v%d' % (V_T2, V_T3))
        a('%s v%d, v%d, v%d' % (op, V_T0, V_T2, V_T3))

    def fill_a():
        lwait([lds_q[-9]])
        vread(2)

    xreduce('v_max_f32', fill_a)
    a('v_mul_f32 v%d, s%d, v%d' % (V_T0, S_C, V_T0))
    for r in range(8):
        a('v_fma_f32 v%d, v%d, s%d, -v%d' % (SA + r, SA + r, S_C, V_T0))
    lwait([lds_q[-5]])
    for r in range(8):
        a('v_exp_f32 v%d, v%d' % (SA + r, SA + r))
        if r < 4:
            vread(1)
        if r == 3:
            a('v_add_f32 v%d, v%d, v%d' % (V_T2, SA, SA + 1))
        if r == 4:
            a('v_add_f32 v%d, v%d, v%d' % (V_T3, SA + 2, SA + 3))
        if r == 6:
            a('v_add_f32 v%d, v%d, v%d' % (V_T2, V_T2, SA + 4))
            a('v_add_f32 v%d, v%d, v%d' % (V_T3, V_T3, SA + 5))
    a('v_add_f32 v%d, v%d, v%d' % (V_T2, V_T2, SA + 6))
    a('v_add_f32 v%d, v%d, v%d' % (V_T3, V_T3, SA + 7))
    xreduce('v_add_f32', lambda: vread(2))
    assert not vreads
    a('v_rcp_f32 v%d, v%d' % (V_T0, V_T0))
    PA, PB, PC = V_P, V_P + 2, V_P + 4
    lwait([('V', 3, 2)])
    for r in range(4):
        a('v_mul_f32 v%d, v%d, v%d' % (SA + r, SA + r, V_T0))
    for w in range(2):
        a('v_cvt_pk_bf16_f32 v%d, v%d, v%d' % (PA + w, SA + 2 * w, SA + 2 * w + 1))
    for w, vm in ((0, V_M0), (1, V_M1)):
        a('v_and_b32 v%d, v%d, v%d' % (PC + w, PA + w, vm))
    fstamp(7)

    def pv16(t):
        a('v_mfma_f32_16x16x16_bf16 v[%d:%d], v[%d:%d], v[%d:%d], 0' % (
            V_O + 4 * t, V_O + 4 * t + 3, R_V + 6 * t + 4, R_V + 6 * t + 5, PC, PC + 1))

    def pv32(t):
        a('v_mfma_f32_16x16x32_bf16 v[%d:%d], v[%d:%d], v[%d:%d], v[%d:%d]' % (
            V_O + 4 * t, V_O + 4 * t + 3, R_V + 6 * t, R_V + 6 * t + 3, PA, PA + 3, V_O + 4 * t, V_O + 4 * t + 3))

    def cvt(t):
        a('v_cvt_pk_bf16_f32 v%d, v%d, v%d' % (R_OUT + 2 * t, V_O + 4 * t, V_O + 4 * t + 1))
        a('v_cvt_pk_bf16_f32 v%d, v%d, v%d' % (R_OUT + 2 * t + 1, V_O + 4 * t + 2, V_O + 4 * t + 3))

    def owr(t):
        a('ds_write_b64 v%d, v[%d:%d] offset:%d' % (A_O + (t & 3), R_OUT + 2 * t, R_OUT + 2 * t + 1, 128 * (t >> 2)))

    a('v_mul_f32 v%d, v%d, v%d' % (SB, SB, V_T0))
    a('v_mul_f32 v%d, v%d, v%d' % (SB + 1, SB + 1, V_T0))
    pv16(0)
    a('v_mul_f32 v%d, v%d, v%d' % (SB + 2, SB + 2, V_T0))
    a('v_mul_f32 v%d, v%d, v%d' % (SB + 3, SB + 3, V_T0))
    pv16(1)
    for w in range(2):
        a('v_cvt_pk_bf16_f32 v%d, v%d, v%d' % (PB + w, SB + 2 * w, SB + 2 * w + 1))
    pv16(2)
    for w in range(2):
        a('v_xor_b32 v%d, v%d, v%d' % (PA + w, PA + w, PC + w))
    pv16(3)
    a('s_waitcnt lgkmcnt(0)')
    pv32(0); pv16(4); pv32(1); pv16(5); pv32(2); pv16(6); pv32(3); pv16(7)
    a('s_addk_i32 s%d, %d' % (S_QS, NC * 4096))
    cvt(0); pv32(4); owr(0)
    cvt(1); pv32(5); owr(1)
    cvt(2); pv32(6); owr(2)
    cvt(3); pv32(7); owr(3)
    for t in range(4, 8):
        cvt(t); owr(t)
    fstamp(8)
    a('ds_write_b32 v15, v13')
    a('s_add_u32 s%d, s%d, %d' % (S_X, S_X, NC * 8192))
    a('s_cmp_ge_u32 s%d, %d' % (S_X, KVEND))
    a('s_cselect_b32 s60, %d, 0' % (NSLOT * 8192))
    a('s_sub_u32 s%d, s%d, s60' % (S_X, S_X))
    a('s_add_u32 s%d, s%d, %d' % (S_STEP, S_STEP, NC))
    a('s_cmp_lt_u32 s%d, %d' % (S_STEP, 18 + LAG))
    a('s_cbranch_scc1 L_round')
    stamp(2)
    RB = R_K
    for n in range(4):
        a('ds_read_b128 v[%d:%d], v%d offset:%d' % (RB + 4 * n, RB + 4 * n + 3, V_LIN, 49152 + 1024 * n))
    if ctrig:
        wait_flag('L_ctrig', ctrig, ctmo)
    stamp(3)
    for n in range(4):
        if not ctrig:
            a('s_waitcnt lgkmcnt(%d)' % (3 - n))
        a('buffer_store_dwordx4 v[%d:%d], v%d, %s, s%d offen offset:%d%s' % (
            RB + 4 * n, RB + 4 * n + 3, V_ST0 + (n & 1), srd(S_O), S_QO, 1024 * n, st))
    fstamp(9)
    stamp(4)
    if fine:
        nst[0] = 10
    if diag:
        dump()
    a('L_end:')
    a('s_endpgm')
    dump_code()
    s, info = finish(a, NWG, 64 * (NC + 2), LDS)
    if pad:
        s = s.replace('.p2align 8\n.type', '.p2align 12\n.fill %d, 4, 0xbf800000\n.p2align 8\n.type' % (pad // 4))
    return s, info


if __name__ == '__main__':
    out = sys.argv[1]
    kw = {}
    for x in sys.argv[2:]:
        k, v = x.split('=')
        try:
            v = int(v)
        except ValueError:
            v = v.replace('+', ' ')
        kw[k] = v
    s, info = gen(**kw)
    open(out, 'w').write(s)
    print(out, info)
```

```python
import sys
import math
import struct
from asmlib import Asm, finish

NBYTES = 32 * 2048 * 128 * 2


def f32(x):
    return '0x%08x' % struct.unpack('<I', struct.pack('<f', x))[0]


def gen(D=32, xmap=3, alt=1, ld=' nt', ld_first=None, st=' sc1', trig=17, W=63, ctrig=17, ctmo=0, sched=1, fine=0, E2=18, G=4, De=0, par=0, topen=48, tbase=44, p2=1, padn=0, oob=0, roll=0, rv=0, padto=52, padfrom=0, sync=0, lstamp=0, prio=3, safe=1,
        diag='', arole='L', aidx=0, aop='max', aref=-1, pad=0xd00, tmo=0, tmo_from=15):
    a = Asm()
    NWG = 256
    NC = 4
    NSLOT = 10 if rv & 8 else 11
    KV0 = 65536
    KVEND = KV0 + NSLOT * 8192
    FLAG = KVEND + 12
    LDS = KVEND + 256
    if ld_first is None:
        ld_first = ld
    RW = D - G
    OFFW = -(-RW // 4)
    OFFN = -(-(De - G) // 4) if De else OFFW
    assert OFFW <= 14
    S_Q, S_K, S_V, S_O = 12, 16, 20, 24
    srd = lambda b: 's[%d:%d]' % (b, b + 3)
    S_W, S_STR, S_KVO, S_QO, S_POS = 3, 37, 38, 39, 40
    V_FLAG = 1
    nst = [0]
    role = ['L']
    uid = [0]

    def stamp(idx=None):
        i = nst[0] if idx is None else idx
        if diag == 'stamp' or (diag == 'amp' and (i == 0 or (role[0] in arole and i in (aidx, aref)))):
            a('s_memrealtime s[%d:%d]' % (64 + 2 * i, 65 + 2 * i))
        nst[0] = max(nst[0], i + 1)

    def stamp_if(sreg, val, idx):
        if diag == 'stamp' or (diag == 'amp' and role[0] in arole and idx in (aidx, aref)):
            uid[0] += 1
            a('s_cmp_lg_u32 s%d, %d' % (sreg, val))
            a('s_cbranch_scc1 L_ns%d' % uid[0])
            stamp(idx)
            a('L_ns%d:' % uid[0])

    def spin(lab, ref, lim):
        a('%s:' % lab)
        a('s_memrealtime s[94:95]')
        a('s_waitcnt lgkmcnt(0)')
        a('s_sub_u32 s96, s94, %s' % ref)
        a('s_cmp_lt_u32 s96, %s' % lim)
        a('s_cbranch_scc1 %s' % lab)

    tails = []

    def dump():
        if diag == 'stamp' or (diag == 'amp' and role[0] in arole):
            if role[0] != 'L':
                a('s_waitcnt vmcnt(0)')
            stamp()
            a('s_branch L_dump')
        else:
            a('s_endpgm')

    def dump_code():
        if diag == 'amp':
            a('L_dump:')
            a('s_load_dwordx2 s[62:63], s[0:1], 32')
            a('s_waitcnt lgkmcnt(0)')
            spin('L_sp0', 's64', '2000')
            a('s_not_b32 s93, s64')
            if aref >= 0:
                a('s_sub_u32 s%d, s%d, s%d' % (64 + 2 * aidx, 64 + 2 * aidx, 64 + 2 * aref))
            a('s_and_b32 s92, s%d, 0xfffff' % (64 + 2 * aidx))
            a('v_mov_b32 v8, s93')
            a('v_mov_b32 v9, s%d' % (64 + 2 * aidx))
            a('v_mov_b32 v10, s92')
            a('v_not_b32 v11, v9')
            a('v_mov_b32 v12, 0')
            a('s_mov_b64 exec, 1')
            a('global_atomic_umax v12, v8, s[62:63]')
            a('global_atomic_umax v12, v9, s[62:63] offset:4')
            if len(arole) == 1:
                a('global_atomic_add v12, v10, s[62:63] offset:8')
                a('global_atomic_umax v12, v11, s[62:63] offset:12')
            a('s_mov_b64 exec, -1')
            a('s_waitcnt vmcnt(0)')
            spin('L_sp1', 's64', '4500' if len(arole) == 1 else '7500')
            a('global_load_dwordx4 v[8:11], v12, s[62:63] sc1')
            a('s_waitcnt vmcnt(0)')
            a('v_readfirstlane_b32 s93, v8')
            a('v_readfirstlane_b32 s97, v9')
            a('v_readfirstlane_b32 s98, v10')
            a('v_readfirstlane_b32 s99, v11')
            a('s_not_b32 s93, s93')
            if aref >= 0:
                if aop == 'avg':
                    a('s_lshr_b32 s97, s98, 8')
                elif aop == 'min':
                    a('s_not_b32 s97, s99')
            elif aop == 'max':
                a('s_sub_u32 s97, s97, s93')
            elif aop == 'min':
                a('s_not_b32 s99, s99')
                a('s_sub_u32 s97, s99, s93')
            else:
                a('s_lshr_b32 s98, s98, 8')
                a('s_and_b32 s97, s93, 0xfffff')
                a('s_sub_u32 s97, s98, s97')
            a('s_min_u32 s97, s97, 3000')
            a('s_mul_i32 s97, s97, 10')
            a('s_add_u32 s97, s97, %d' % (5000 if len(arole) == 1 else 8000))
            spin('L_sp2', 's93', 's97')
            a('s_endpgm')
        if diag == 'stamp':
            a('L_dump:')
            a('s_load_dwordx2 s[62:63], s[0:1], 40')
            a('s_getreg_b32 s60, hwreg(HW_REG_XCC_ID)')
            a('s_waitcnt lgkmcnt(0)')
            spin('L_sp0', 's64', '2000')
            a('v_mov_b32 v5, 0')
            for i in range(12):
                a('v_writelane_b32 v5, s%d, %d' % (64 + 2 * i, i))
            a('v_writelane_b32 v5, s60, 30')
            a('v_writelane_b32 v5, s%d, 31' % S_W)
            a('s_lshl_b32 s61, s2, 3')
            a('s_add_u32 s61, s61, s%d' % S_W)
            a('s_lshl_b32 s61, s61, 8')
            a('v_lshl_add_u32 v6, v0, 2, s61')
            a('global_store_dword v6, v5, s[62:63]')
            a('s_endpgm')

    def guard(lab):
        if safe:
            a('s_add_u32 s56, s56, 1')
            a('s_cmp_ge_u32 s56, 0x20000')
            a('s_cbranch_scc1 %s_x' % lab)

    def wait_flag(lab, what, limit=0):
        if limit:
            a('s_mov_b32 s46, %d' % limit)
        a('%s:' % lab)
        if what >= 100:
            a('ds_read_b128 v[8:11], v%d offset:4' % V_FLAG)
        else:
            a('ds_read_b32 v8, v%d' % V_FLAG)
        if limit:
            a('s_sub_u32 s46, s46, 1')
            a('s_cbranch_scc1 %s_x' % lab)
        else:
            guard(lab)
        a('s_waitcnt lgkmcnt(0)')
        if what >= 100:
            a('v_min3_i32 v8, v8, v9, v10')
            a('v_min_i32 v8, v8, v11')
            a('v_cmp_ge_i32 vcc, %d, v8' % (what - 100))
        else:
            a('v_cmp_gt_i32 vcc, %d, v8' % what)
        a('s_cbranch_vccnz %s' % lab)
        if safe or limit:
            a('%s_x:' % lab)

    stamp()
    a('s_load_dwordx2 s[%d:%d], s[0:1], 8' % (S_K, S_K + 1))
    a('s_load_dwordx2 s[%d:%d], s[0:1], 16' % (S_V, S_V + 1))
    a('s_load_dwordx2 s[%d:%d], s[0:1], 0' % (S_Q, S_Q + 1))
    a('s_load_dwordx2 s[%d:%d], s[0:1], 24' % (S_O, S_O + 1))
    a('s_cmp_ge_u32 s2, %d' % NWG)
    a('s_cbranch_scc1 L_end')
    a('v_lshrrev_b32 v5, 6, v0')
    a('v_and_b32 v0, 63, v0')
    a('v_readfirstlane_b32 s%d, v5' % S_W)
    a('v_mov_b32 v%d, %d' % (V_FLAG, FLAG))
    a('v_lshl_add_u32 v15, v5, 2, v%d' % V_FLAG)
    a('v_add_u32 v5, 1, v5')
    a('ds_write_b32 v15, v5')
    if safe:
        a('s_mov_b32 s56, 0')
    if xmap == 1:
        a('s_and_b32 s60, s2, 7')
        a('s_lshr_b32 s61, s2, 3')
        a('s_lshl_b32 s60, s60, 5')
        a('s_add_u32 s2, s60, s61')
    elif xmap == 3:
        a('s_bfe_u32 s60, s2, 0x40003')
        a('s_and_b32 s61, s2, 1')
        a('s_lshl4_add_u32 s60, s61, s60')
        a('s_lshr_b32 s61, s2, 7')
        a('s_and_b32 s2, s2, 6')
        a('s_or_b32 s2, s2, s61')
        a('s_lshl_b32 s2, s2, 5')
        a('s_or_b32 s2, s2, s60')
    elif xmap in (4, 5, 6):
        tab = {4: (0, 1, 4, 5), 5: (0, 0, 0, 0), 6: (0, 3, 5, 6)}[xmap]
        a('s_lshr_b32 s60, s2, 6')
        a('s_lshl_b32 s60, s60, 2')
        a('s_lshr_b32 s60, 0x%x, s60' % sum(v << (4 * k) for k, v in enumerate(tab)))
        a('s_xor_b32 s60, s60, s2')
        a('s_and_b32 s60, s60, 7')
        a('s_bfe_u32 s61, s2, 0x30003')
        a('s_and_b32 s2, s2, 0xc0')
        a('s_or_b32 s2, s2, s61')
        a('s_lshl3_add_u32 s2, s60, s2')
    elif xmap == 7:
        a('s_and_b32 s60, s2, 7')
        a('s_bfe_u32 s61, s2, 0x10003')
        a('s_lshl1_add_u32 s60, s60, s61')
        a('s_and_b32 s2, s2, 0xf0')
        a('s_or_b32 s2, s2, s60')
    a('s_lshl_b32 s%d, s2, 16' % S_QO)
    a('s_movk_i32 s%d, 4096' % S_STR)
    a('s_movk_i32 s61, -8192')
    a('s_and_b32 s60, s2, %d' % (1 if alt else 0))
    a('s_cmovk_i32 s%d, -4096' % S_STR)
    a('s_cselect_b32 s60, %d, 0' % (15 * 4096))
    a('s_cselect_b32 s61, s60, s61')
    a('s_cselect_b64 s[42:43], -1, 0')
    a('s_add_u32 s%d, s%d, s61' % (S_KVO, S_QO))
    a('s_add_u32 s%d, s%d, s60' % (S_QO, S_QO))
    a('v_lshrrev_b32 v6, 4, v0')
    a('v_and_b32 v7, 15, v0')
    a('s_mov_b32 s%d, %d' % (S_Q + 2, 0 if oob else NBYTES))
    a('s_mov_b32 s%d, 0x20000' % (S_Q + 3))
    a('s_mov_b64 s[%d:%d], s[%d:%d]' % (S_O + 2, S_O + 3, S_Q + 2, S_Q + 3))
    a('v_lshlrev_b32 v5, 1, v6')
    a('v_xor_b32 v5, v5, v7')
    a('v_lshlrev_b32 v5, 4, v5')
    a('v_lshl_add_u32 v2, v6, 8, v5')
    a('v_xor_b32 v3, 128, v2')
    a('s_add_u32 s45, s%d, s%d' % (S_KVO, S_STR))
    a('s_and_b32 s%d, s2, 7' % S_POS)
    a('s_cselect_b32 s44, s%d, 0' % S_KVO)
    a('s_cselect_b32 s45, s45, 0')
    a('s_cselect_b32 s%d, s%d, 0' % (S_K + 2, S_Q + 2))
    a('s_mov_b32 s%d, 0x20000' % (S_K + 3))
    a('s_mov_b64 s[%d:%d], s[%d:%d]' % (S_V + 2, S_V + 3, S_K + 2, S_K + 3))
    a('s_mov_b32 m0, %d' % KV0)
    a('s_cmp_lg_u32 s%d, 0' % S_W)
    a('s_waitcnt lgkmcnt(0)')
    a('s_cbranch_scc1 L_other')

    stamp()

    def dma(i, r, so, fl):
        a('buffer_load_dwordx4 v%d, %s, s%d offen offset:%d%s lds' % (2 + (i & 1), srd(r), so, i * 1024, fl))

    S_N, S_STEPL, S_OPEN, S_T = 52, 53, 54, 55
    fill = ['s_setprio %d' % prio, 's_mov_b32 s46, s%d' % S_QO, 's_mov_b32 s47, 0']
    for n in range(4):
        for i in range(4):
            dma(i, S_V if n & 1 else S_K, 44 + (n >> 1), ld_first)
        if n < 3:
            a('s_addk_i32 m0, 4096')
            a(fill[n])
    a('s_lshl1_add_u32 s48, s%d, s%d' % (S_STR, S_KVO))
    a('s_mov_b32 s50, s48')
    a('s_mov_b32 s49, %d' % (KV0 + 2 * 8192))
    a('s_add_u32 s51, s49, 4096')
    a('s_mov_b32 s%d, 4' % S_N)
    a('s_movk_i32 s%d, 4096' % S_STEPL)
    if De:
        a('s_getreg_b32 s%d, hwreg(HW_REG_XCC_ID, 0, 1)' % S_OPEN)
        a('s_cmp_eq_u32 s%d, %d' % (S_OPEN, par))
        a('s_cselect_b32 s%d, %d, 0' % (S_OPEN, topen))
    a('v_mov_b32 v4, %d' % (3 - OFFW if rv & 4 else 0))
    if rv & 2:
        a('s_movk_i32 s58, 128')
        a('v_mov_b32 v5, 1024')
    if sync:
        a('s_mov_b32 s57, 0')
    a('s_barrier')

    def throttle(j):
        a('s_waitcnt vmcnt(%d)' % RW)
        if De:
            a('s_cmp_ge_u32 s%d, s%d' % (S_N, S_OPEN))
            if j == 0:
                a('s_cselect_b32 s%d, %d, %d' % (S_T, OFFW, OFFN))
            a('s_cbranch_scc1 L_nw%d' % j)
            a('s_waitcnt vmcnt(%d)' % (De - G))
            a('L_nw%d:' % j)

    a('L_ld:')
    a('s_mov_b32 m0, s47')
    throttle(0)
    if rv & 4:
        a('v_add_u32 v4, 1, v4')
    else:
        a('s_sub_u32 s%d, s%d, %s' % (S_T, S_N, 's%d' % S_T if De else OFFW))
        a('v_max_i32 v4, s%d, v4' % S_T)
    a('ds_write_b32 v%d, v4' % V_FLAG)
    for k, x in enumerate((8, 16, 28, 40)):
        if lstamp:
            stamp_if(S_T, x, 2 + k)
    if roll:
        a('ds_read_b128 v[8:11], v%d offset:4' % V_FLAG)
        a('s_cmp_ge_u32 s%d, %d' % (S_N, padto))
        a('s_cbranch_scc1 L_fast')
        if not rv & 2:
            a('s_mov_b32 s58, s46')
        a('L_row:')
        if rv & 1:
            a('s_waitcnt vmcnt(%d)' % (RW + 3))
        if rv & 2:
            a('buffer_load_dwordx4 v2, %s, s46 offen%s lds' % (srd(S_Q), ld))
            a('v_xad_u32 v2, v2, s58, v5')
        else:
            a('buffer_load_dwordx4 v2, %s, s58 offen%s lds' % (srd(S_Q), ld))
            a('v_xor_b32 v2, 128, v2')
            a('s_addk_i32 s58, 1024')
        a('s_addk_i32 m0, 1024')
        a('s_and_b32 s60, m0, 4095')
        a('s_cbranch_scc1 L_row')
        if rv & 2:
            a('v_xor_b32 v2, s58, v3')
        a('L_next:')
    else:
        if padto < 52:
            a('s_cmp_ge_u32 s%d, %d' % (S_N, padto))
            a('s_cbranch_scc1 L_np')
        if padfrom:
            a('s_cmp_lt_u32 s%d, %d' % (S_N, padfrom))
            a('s_cbranch_scc1 L_np')
        for k in range(padn // 16):
            a('s_nop 15')
        if padn % 16:
            a('s_nop %d' % (padn % 16 - 1))
        if sync:
            a('L_free:')
            a('ds_read_b128 v[8:11], v%d offset:4' % V_FLAG)
            guard('L_free')
            a('s_waitcnt lgkmcnt(0)')
            a('v_min3_i32 v8, v8, v9, v10')
            a('v_min_i32 v8, v8, v11')
            a('v_cmp_ge_i32 vcc, s57, v8')
            a('s_cbranch_vccnz L_free')
            if safe:
                a('L_free_x:')
        if padto < 52 or padfrom:
            a('L_np:')
        for i in range(4):
            if i and i % G == 0:
                throttle(i)
            dma(i, S_Q, 46, ld)
            if i == 0 and not sync:
                a('ds_read_b128 v[8:11], v%d offset:4' % V_FLAG)
    a('s_add_u32 s46, s46, s%d' % S_STR)
    a('s_add_u32 s47, s47, s%d' % S_STEPL)
    if not rv & 8:
        a('s_cmp_ge_u32 s47, %d' % KVEND)
        a('s_cselect_b32 s60, %d, 0' % (NSLOT * 8192))
        a('s_sub_u32 s47, s47, s60')
    a('s_add_u32 s%d, s%d, 1' % (S_N, S_N))
    a('s_and_b32 s60, s%d, 3' % S_N)
    a('s_cbranch_scc1 L_ld')
    if rv & 8:
        a('s_cmp_ge_u32 s47, %d' % KVEND)
        a('s_cselect_b32 s60, %d, 0' % (NSLOT * 8192))
        a('s_sub_u32 s47, s47, s60')
    for x, y, z in ((S_Q, S_K, S_V), (46, 48, 50)):
        a('s_mov_b64 s[60:61], s[%d:%d]' % (x, x + 1))
        a('s_mov_b64 s[%d:%d], s[%d:%d]' % (x, x + 1, y, y + 1))
        a('s_mov_b64 s[%d:%d], s[%d:%d]' % (y, y + 1, z, z + 1))
        a('s_mov_b64 s[%d:%d], s[60:61]' % (z, z + 1))
    a('s_movk_i32 s%d, 4096' % S_STEPL)
    a('s_cmp_ge_u32 s47, %d' % KV0)
    a('s_cmovk_i32 s%d, 8192' % S_STEPL)
    if rv & 8:
        a('s_cmp_ge_u32 s%d, 44' % S_N)
        a('s_cselect_b32 s%d, 9, 5' % S_T)
        a('s_cmp_lt_u32 s%d, 32' % S_N)
        a('s_cmov_b32 s%d, 0' % S_T)
    else:
        a('s_sub_u32 s%d, s%d, 20' % (S_T, S_N))
        a('s_mul_i32 s%d, s%d, 43' % (S_T, S_T))
    if sync:
        a('s_ashr_i32 s57, s%d, 7' % S_T)
        a('s_cmp_lg_u32 s%d, 52' % S_N)
        a('s_cbranch_scc1 L_ld')
    else:
        if not rv & 8:
            a('s_ashr_i32 s%d, s%d, 7' % (S_T, S_T))
        a('s_cmp_eq_u32 s%d, 52' % S_N)
        a('s_cbranch_scc1 L_drain')
        a('L_free:')
        a('s_waitcnt lgkmcnt(0)')
        a('v_min3_i32 v8, v8, v9, v10')
        a('v_min_i32 v8, v8, v11')
        a('v_cmp_lt_i32 vcc, s%d, v8' % S_T)
        a('s_cbranch_vccnz L_ld')
        a('ds_read_b128 v[8:11], v%d offset:4' % V_FLAG)
        if safe:
            a('s_add_u32 s56, s56, 1')
            a('s_cmp_ge_u32 s56, 0x20000')
            a('s_cbranch_scc1 L_ld')
        a('s_branch L_free')
    if roll:
        a('L_fast:')
        for i in range(4):
            dma(i, S_Q, 46, ld)
        a('s_branch L_next')
    a('L_drain:')
    stamp(6)
    for left in range(OFFW, -1, -1):
        a('v_max_i32 v4, %d, v4' % (52 - left))
        a('s_waitcnt vmcnt(%d)' % (4 * left))
        a('ds_write_b32 v%d, v4' % V_FLAG)
    nst[0] = 7
    dump()

    role[0] = 'C'
    nst[0] = 1
    a('L_other:')
    a('s_barrier')
    V_LIN, V_ST0, V_ST1 = 2, 3, 4
    a('v_xor_b32 v5, v7, v6')
    a('v_lshlrev_b32 v5, 4, v5')
    a('v_lshl_add_u32 v%d, v6, 8, v5' % V_ST0)
    a('v_xor_b32 v%d, 64, v%d' % (V_ST1, V_ST0))
    a('s_cmp_le_u32 s%d, %d' % (S_W, NC))
    a('s_cbranch_scc1 L_consumer')
    role[0] = 'S'
    a('v_lshlrev_b32 v%d, 4, v0' % V_LIN)
    for r in range(3):
        wait_flag('L_sr%d' % r, 100 + 5 + 4 * r)
        for n in range(16 * r, 16 * r + 16):
            if n % 16 == 14:
                a('s_waitcnt lgkmcnt(6)')
            a('ds_read_b128 v[%d:%d], v%d offset:%d' % (16 + 4 * n, 19 + 4 * n, V_LIN, 1024 * n))
    stamp(1)
    if tbase:
        wait_flag('L_sbase', tbase)
    stamp(2)
    wait_flag('L_strig', trig, tmo)
    stamp(3)
    for n in range(48):
        if n >= W:
            a('s_waitcnt vmcnt(%d)' % (W - 1))
        a('buffer_store_dwordx4 v[%d:%d], v%d, %s, s%d offen offset:%d%s' % (
            16 + 4 * n, 19 + 4 * n, V_ST0 + (n & 1), srd(S_O), S_QO, 1024 * (n & 3), st))
        if n & 3 == 3 and n < 47:
            a('s_add_u32 s%d, s%d, s%d' % (S_QO, S_QO, S_STR))
    stamp(4)
    dump()
    role[0] = 'C'
    nst[0] = 1
    a('L_consumer:')
    S_STEP, S_X, S_Y, S_Z, S_QS, S_C, S_NEG, S_TH = 44, 45, 46, 47, 48, 51, 52, 53
    S_MASK = 28
    V_M0, V_M1, V_T0, V_T1, V_T2, V_T3 = 5, 6, 10, 11, 12, 14
    C_K, C_V, C_O = 16, 20, 28
    A_Q, A_K, A_V, A_O = 32, 36, 48, 72
    R_Q, R_K, R_V = 76, 92, 140
    V_S, V_P, V_O = 188, 200, 208
    R_OUT = R_Q
    a('v_and_b32 v13, 7, v7')
    a('v_lshlrev_b32 v5, 1, v13')
    a('v_xor_b32 v5, v5, v6')
    a('v_lshlrev_b32 v5, 4, v5')
    a('v_lshl_add_u32 v%d, v7, 8, v5' % C_K)
    a('v_xor_b32 v%d, 64, v%d' % (C_K + 1, C_K))
    a('v_xor_b32 v%d, 128, v%d' % (C_K + 2, C_K))
    a('v_xor_b32 v%d, 64, v%d' % (C_K + 3, C_K + 2))
    a('v_lshrrev_b32 v14, 2, v0')
    a('v_and_b32 v5, 7, v14')
    a('v_lshlrev_b32 v5, 5, v5')
    a('v_lshl_add_u32 v5, v14, 8, v5')
    a('v_and_b32 v14, 3, v0')
    a('v_lshl_add_u32 v%d, v14, 3, v5' % C_V)
    a('v_xor_b32 v%d, 128, v%d' % (C_V + 4, C_V))
    for t in (0, 4):
        a('v_xor_b32 v%d, 64, v%d' % (C_V + t + 2, C_V + t))
    for t in (0, 2, 4, 6):
        a('v_xor_b32 v%d, 32, v%d' % (C_V + t + 1, C_V + t))
    a('v_lshrrev_b32 v5, 1, v6')
    a('v_xor_b32 v5, v5, v13')
    a('v_lshlrev_b32 v5, 4, v5')
    a('v_lshl_add_u32 v5, v7, 8, v5')
    a('v_and_b32 v14, 1, v6')
    a('v_lshl_add_u32 v%d, v14, 3, v5' % C_O)
    a('v_xor_b32 v%d, 64, v%d' % (C_O + 2, C_O))
    for t in (0, 2):
        a('v_xor_b32 v%d, 32, v%d' % (C_O + t + 1, C_O + t))
    a('v_lshlrev_b32 v13, 2, v6')
    a('v_sub_u32 v13, v7, v13')
    for r in range(4):
        a('v_cmp_le_i32 vcc, %d, v13' % r)
        a('s_xor_b64 s[%d:%d], vcc, s[42:43]' % (S_MASK + 2 * r, S_MASK + 2 * r + 1))
    a('v_mov_b32 v13, 0xffff')
    for w, vm in ((0, V_M0), (1, V_M1)):
        a('v_cndmask_b32 v10, 0, v13, s[%d:%d]' % (S_MASK + 4 * w, S_MASK + 4 * w + 1))
        a('v_cndmask_b32 v14, 0, v13, s[%d:%d]' % (S_MASK + 4 * w + 2, S_MASK + 4 * w + 3))
        a('v_lshl_or_b32 v%d, v14, 16, v10' % vm)
    a('s_mov_b32 s%d, %s' % (S_C, f32(math.log2(math.e) / math.sqrt(128.0))))
    a('s_cmp_eq_u32 s%d, 0' % S_POS)
    a('s_cselect_b32 s%d, %s, 0' % (S_NEG, f32(-1e30)))
    a('s_sub_u32 s60, s%d, 1' % S_W)
    a('s_add_u32 s%d, s60, 2' % S_STEP)
    a('s_add_u32 s%d, s60, 9' % S_TH)
    a('s_lshl_b32 s%d, s60, 12' % S_QS)
    a('s_lshl_b32 s61, s60, 13')
    a('s_add_u32 s%d, s61, %d' % (S_X, KV0))
    a('v_lshl_add_u32 v%d, v0, 4, s%d' % (V_LIN, S_QS))
    a('s_add_u32 s60, s60, 12')
    a('s_mul_i32 s61, s60, s%d' % S_STR)
    a('s_add_u32 s%d, s%d, s61' % (S_QO, S_QO))

    a('L_round:')
    for x in (1, 2):
        a('s_add_u32 s%d, s%d, 8192' % (S_X + x, S_X + x - 1))
        a('s_cmp_eq_u32 s%d, %d' % (S_X + x, KVEND))
        a('s_cmov_b32 s%d, %d' % (S_X + x, KV0))
    for s in range(4):
        a('v_add_u32 v%d, s%d, v%d' % (A_Q + s, S_QS, C_K + s))
        for x in range(3):
            a('v_add_u32 v%d, s%d, v%d' % (A_K + 4 * x + s, S_X + x, C_K + s))
    for t in range(8):
        for x in range(3):
            a('v_add_u32 v%d, s%d, v%d' % (A_V + 8 * x + t, S_X + x, C_V + t))
    for t in range(4):
        a('v_add_u32 v%d, s%d, v%d' % (A_O + t, S_QS, C_O + t))
    a('s_cmp_lt_u32 s%d, %d' % (S_STEP, 4))
    a('s_cselect_b32 s60, s%d, 0' % S_NEG)
    a('s_cmp_lt_u32 s%d, %d' % (S_STEP, 3))
    a('s_cselect_b32 s61, s%d, 0' % S_NEG)
    for r in range(4):
        a('v_mov_b32 v%d, s60' % (V_S + r))
        a('v_mov_b32 v%d, s61' % (V_S + 4 + r))
    a('s_add_u32 s60, s%d, %d' % (S_STEP, NC))
    a('v_mov_b32 v13, s60')
    a('L_poll:')
    a('ds_read_b32 v%d, v%d' % (V_T0, V_FLAG))
    guard('L_poll')
    a('s_waitcnt lgkmcnt(0)')
    a('v_cmp_gt_i32 vcc, s%d, v%d' % (S_TH, V_T0))
    a('s_cbranch_vccnz L_poll')
    if safe:
        a('L_poll_x:')
    def fstamp(i):
        if fine:
            a('s_memtime s[%d:%d]' % (64 + 2 * i, 65 + 2 * i))

    fstamp(5)
    lds_q = []

    def lds(text, tag):
        a(text)
        lds_q.append(tag)

    def lwait(tags):
        last = max(i for i, t in enumerate(lds_q) if t in tags)
        a('s_waitcnt lgkmcnt(%d)' % (len(lds_q) - 1 - last))

    def kread(s, x):
        if x < 0:
            lds('ds_read_b128 v[%d:%d], v%d' % (R_Q + 4 * s, R_Q + 4 * s + 3, A_Q + s), ('Q', s))
        else:
            lds('ds_read_b128 v[%d:%d], v%d' % (R_K + 16 * x + 4 * s, R_K + 16 * x + 4 * s + 3, A_K + 4 * x + s), ('K', s, x))

    vreads = [(t, x) for t in range(8) for x in range(3)]

    def vread(n):
        for _ in range(n):
            t, x = vreads.pop(0)
            lds('ds_read_b64_tr_b16 v[%d:%d], v%d offset:4096' % (R_V + 6 * t + 2 * x, R_V + 6 * t + 2 * x + 1, A_V + 8 * x + t), ('V', t, x))

    def qk(s, x):
        d = 'v[%d:%d]' % (V_S + 4 * x, V_S + 4 * x + 3)
        c = '0' if (s == 0 and x == 2) else d
        a('v_mfma_f32_16x16x32_bf16 %s, v[%d:%d], v[%d:%d], %s' % (
            d, R_K + 16 * x + 4 * s, R_K + 16 * x + 4 * s + 3, R_Q + 4 * s, R_Q + 4 * s + 3, c))

    XO = (0, 2, 1)
    pend = [(s, x) for s in range(4) for x in (-1,) + XO]
    for _ in range(12):
        kread(*pend.pop(0))
    for s in range(4):
        for x in XO:
            lwait([('Q', s), ('K', s, x)])
            qk(s, x)
            if pend:
                kread(*pend.pop(0))
                if pend and pend[0][1] == XO[0]:
                    kread(*pend.pop(0))
    fstamp(6)
    SA, SB, SC = V_S, V_S + 4, V_S + 8
    a('s_add_u32 s%d, s%d, 4' % (S_TH, S_TH))
    a('ds_read_b32 v8, v%d' % V_FLAG)
    for r in range(4):
        a('v_cndmask_b32 v%d, v%d, v%d, s[%d:%d]' % (SA + r, SA + r, SC + r, S_MASK + 2 * r, S_MASK + 2 * r + 1))
    a('v_max3_f32 v%d, v%d, v%d, v%d' % (V_T2, SA, SA + 1, SA + 2))
    a('v_max3_f32 v%d, v%d, v%d, v%d' % (V_T3, SA + 3, SB, SB + 1))
    a('v_max3_f32 v%d, v%d, v%d, v%d' % (V_T2, V_T2, SB + 2, SB + 3))

    def xreduce(op, fill):
        a('%s v%d, v%d, v%d' % (op, V_T0, V_T2, V_T3))
        a('%s v%d, v%d, v%d' % (op, V_T1, V_T2, V_T3))
        fill()
        a('v_permlane32_swap_b32 v%d, v%d' % (V_T0, V_T1))
        a('%s v%d, v%d, v%d' % (op, V_T2, V_T0, V_T1))
        a('%s v%d, v%d, v%d' % (op, V_T3, V_T0, V_T1))
        fill()
        a('v_permlane16_swap_b32 v%d, v%d' % (V_T2, V_T3))
        a('%s v%d, v%d, v%d' % (op, V_T0, V_T2, V_T3))

    xreduce('v_max_f32', lambda: None)
    a('v_mul_f32 v%d, s%d, v%d' % (V_T0, S_C, V_T0))
    for r in range(8):
        a('v_fma_f32 v%d, v%d, s%d, -v%d' % (SA + r, SA + r, S_C, V_T0))
    for r in range(8):
        a('v_exp_f32 v%d, v%d' % (SA + r, SA + r))
        if r == 3:
            a('v_add_f32 v%d, v%d, v%d' % (V_T2, SA, SA + 1))
        if r == 4:
            a('v_add_f32 v%d, v%d, v%d' % (V_T3, SA + 2, SA + 3))
        if r == 6:
            a('v_add_f32 v%d, v%d, v%d' % (V_T2, V_T2, SA + 4))
            a('v_add_f32 v%d, v%d, v%d' % (V_T3, V_T3, SA + 5))
    a('L_poll2:')
    a('s_waitcnt lgkmcnt(0)')
    a('v_cmp_le_i32 vcc, s%d, v8' % S_TH)
    a('s_cbranch_vccnz L_poll2_x')
    a('ds_read_b32 v8, v%d' % V_FLAG)
    guard('L_poll2')
    a('s_branch L_poll2')
    a('L_poll2_x:')
    stamp(1)
    del lds_q[:]
    vreads[:] = [(t, 2) for t in range(4)] + [(t, x) for t in range(4) for x in (0, 1)] + \
                [(t, 2) for t in range(4, 8)] + [(t, x) for t in range(4, 8) for x in (0, 1)]
    vread(8)
    a('v_add_f32 v%d, v%d, v%d' % (V_T2, V_T2, SA + 6))
    a('v_add_f32 v%d, v%d, v%d' % (V_T3, V_T3, SA + 7))
    xreduce('v_add_f32', lambda: vread(2))
    a('v_rcp_f32 v%d, v%d' % (V_T0, V_T0))
    PA, PB, PC = V_P, V_P + 2, V_P + 4
    lwait([('V', 3, 2)])
    vread(2)
    for r in range(4):
        a('v_mul_f32 v%d, v%d, v%d' % (SA + r, SA + r, V_T0))
    vread(2)
    for w in range(2):
        a('v_cvt_pk_bf16_f32 v%d, v%d, v%d' % (PA + w, SA + 2 * w, SA + 2 * w + 1))
    for w, vm in ((0, V_M0), (1, V_M1)):
        a('v_and_b32 v%d, v%d, v%d' % (PC + w, PA + w, vm))
    fstamp(7)

    def pv16(t):
        a('v_mfma_f32_16x16x16_bf16 v[%d:%d], v[%d:%d], v[%d:%d], 0' % (
            V_O + 4 * t, V_O + 4 * t + 3, R_V + 6 * t + 4, R_V + 6 * t + 5, PC, PC + 1))

    def pv32(t):
        a('v_mfma_f32_16x16x32_bf16 v[%d:%d], v[%d:%d], v[%d:%d], v[%d:%d]' % (
            V_O + 4 * t, V_O + 4 * t + 3, R_V + 6 * t, R_V + 6 * t + 3, PA, PA + 3, V_O + 4 * t, V_O + 4 * t + 3))

    def cvt(t):
        a('v_cvt_pk_bf16_f32 v%d, v%d, v%d' % (R_OUT + 2 * t, V_O + 4 * t, V_O + 4 * t + 1))
        a('v_cvt_pk_bf16_f32 v%d, v%d, v%d' % (R_OUT + 2 * t + 1, V_O + 4 * t + 2, V_O + 4 * t + 3))

    def owr(t):
        a('ds_write_b64 v%d, v[%d:%d] offset:%d' % (A_O + (t & 3), R_OUT + 2 * t, R_OUT + 2 * t + 1, 128 * (t >> 2)))

    a('v_mul_f32 v%d, v%d, v%d' % (SB, SB, V_T0))
    a('v_mul_f32 v%d, v%d, v%d' % (SB + 1, SB + 1, V_T0))
    pv16(0)
    lwait([('V', 2, 1)])
    vread(2)
    a('v_mul_f32 v%d, v%d, v%d' % (SB + 2, SB + 2, V_T0))
    a('v_mul_f32 v%d, v%d, v%d' % (SB + 3, SB + 3, V_T0))
    pv16(1)
    vread(2)
    for w in range(2):
        a('v_cvt_pk_bf16_f32 v%d, v%d, v%d' % (PB + w, SB + 2 * w, SB + 2 * w + 1))
    pv16(2)
    vread(2)
    for w in range(2):
        a('v_xor_b32 v%d, v%d, v%d' % (PA + w, PA + w, PC + w))
    pv16(3)
    vread(2)
    assert not vreads
    lwait([('V', 7, 2)])
    pv32(0); pv16(4); pv32(1); pv16(5); pv32(2); pv16(6); pv32(3); pv16(7)
    a('s_waitcnt lgkmcnt(0)')
    a('s_addk_i32 s%d, %d' % (S_QS, NC * 4096))
    cvt(0); pv32(4); owr(0)
    cvt(1); pv32(5); owr(1)
    cvt(2); pv32(6); owr(2)
    cvt(3); pv32(7); owr(3)
    for t in range(4, 8):
        cvt(t); owr(t)
    fstamp(8)
    a('ds_write_b32 v15, v13')
    a('s_add_u32 s%d, s%d, %d' % (S_X, S_X, NC * 8192))
    a('s_cmp_ge_u32 s%d, %d' % (S_X, KVEND))
    a('s_cselect_b32 s60, %d, 0' % (NSLOT * 8192))
    a('s_sub_u32 s%d, s%d, s60' % (S_X, S_X))
    a('s_add_u32 s%d, s%d, 8' % (S_TH, S_TH))
    a('s_add_u32 s%d, s%d, %d' % (S_STEP, S_STEP, NC))
    a('s_cmp_lt_u32 s%d, %d' % (S_STEP, 18))
    a('s_cbranch_scc1 L_round')
    stamp(2)
    RB = R_K
    for n in range(4):
        a('ds_read_b128 v[%d:%d], v%d offset:%d' % (RB + 4 * n, RB + 4 * n + 3, V_LIN, 49152 + 1024 * n))
    if ctrig:
        wait_flag('L_ctrig', ctrig, ctmo)
    stamp(3)
    for n in range(4):
        if not ctrig:
            a('s_waitcnt lgkmcnt(%d)' % (3 - n))
        a('buffer_store_dwordx4 v[%d:%d], v%d, %s, s%d offen offset:%d%s' % (
            RB + 4 * n, RB + 4 * n + 3, V_ST0 + (n & 1), srd(S_O), S_QO, 1024 * n, st))
    fstamp(9)
    stamp(4)
    if fine:
        nst[0] = 10
    if diag:
        dump()
    a('L_end:')
    a('s_endpgm')
    dump_code()
    s, info = finish(a, NWG, 64 * (NC + 2), LDS)
    if pad:
        s = s.replace('.p2align 8\n.type', '.p2align 12\n.fill %d, 4, 0xbf800000\n.p2align 8\n.type' % (pad // 4))
    return s, info


if __name__ == '__main__':
    out = sys.argv[1]
    kw = {}
    for x in sys.argv[2:]:
        k, v = x.split('=')
        try:
            v = int(v)
        except ValueError:
            v = v.replace('+', ' ')
        kw[k] = v
    s, info = gen(**kw)
    open(out, 'w').write(s)
    print(out, info)
```

```python
import sys
import math
import struct
from asmlib import Asm, finish

NBYTES = 32 * 2048 * 128 * 2


def f32(x):
    return '0x%08x' % struct.unpack('<I', struct.pack('<f', x))[0]


def gen(D=32, xmap=3, alt=1, ld=' nt', ld_first=None, st=' sc1', trig=17, W=63, ctrig=17, ctmo=0, sched=1, fine=0, E2=18, G=4, De=0, par=0, topen=48, tbase=44, p2=1, padn=0, oob=0, roll=0, rv=0, al=-1, padodd=0, late2=0, slp=0, clk=0, trigodd=0, vmlog=0, stc=None, nsp=48, padto=52, padfrom=0, sync=0, lstamp=0, prio=3, safe=1,
        diag='', arole='L', aidx=0, aop='max', aref=-1, pad=0xd00, tmo=0, tmo_from=15):
    a = Asm()
    NWG = 256
    NC = 4
    NSLOT = 10 if rv & 8 else 11
    KV0 = 65536
    KVEND = KV0 + NSLOT * 8192
    FLAG = KVEND + 12
    LDS = KVEND + 256
    if ld_first is None:
        ld_first = ld
    RW = D - G
    OFFW = -(-RW // 4)
    OFFN = -(-(De - G) // 4) if De else OFFW
    assert OFFW <= 14
    S_Q, S_K, S_V, S_O = 12, 16, 20, 24
    srd = lambda b: 's[%d:%d]' % (b, b + 3)
    S_W, S_STR, S_KVO, S_QO, S_POS = 3, 37, 38, 39, 40
    V_FLAG = 1
    nst = [0]
    role = ['L']
    uid = [0]

    def stamp(idx=None):
        i = nst[0] if idx is None else idx
        if diag == 'stamp' or (diag == 'amp' and (i == 0 or (role[0] in arole and i in (aidx, aref)))):
            a('s_memrealtime s[%d:%d]' % (64 + 2 * i, 65 + 2 * i))
        nst[0] = max(nst[0], i + 1)

    def stamp_if(sreg, val, idx):
        if diag == 'stamp' or (diag == 'amp' and role[0] in arole and idx in (aidx, aref)):
            uid[0] += 1
            a('s_cmp_lg_u32 s%d, %d' % (sreg, val))
            a('s_cbranch_scc1 L_ns%d' % uid[0])
            stamp(idx)
            a('L_ns%d:' % uid[0])

    def spin(lab, ref, lim):
        a('%s:' % lab)
        a('s_memrealtime s[94:95]')
        a('s_waitcnt lgkmcnt(0)')
        a('s_sub_u32 s96, s94, %s' % ref)
        a('s_cmp_lt_u32 s96, %s' % lim)
        a('s_cbranch_scc1 %s' % lab)

    tails = []

    def dump():
        if diag == 'stamp' or (diag == 'amp' and role[0] in arole):
            if role[0] != 'L':
                a('s_waitcnt vmcnt(0)')
            stamp()
            a('s_branch L_dump')
        else:
            a('s_endpgm')

    def dump_code():
        if diag == 'amp':
            a('L_dump:')
            a('s_load_dwordx2 s[62:63], s[0:1], 32')
            a('s_waitcnt lgkmcnt(0)')
            spin('L_sp0', 's64', '2000')
            a('s_not_b32 s93, s64')
            if aref >= 0:
                a('s_sub_u32 s%d, s%d, s%d' % (64 + 2 * aidx, 64 + 2 * aidx, 64 + 2 * aref))
            a('s_and_b32 s92, s%d, 0xfffff' % (64 + 2 * aidx))
            a('v_mov_b32 v8, s93')
            a('v_mov_b32 v9, s%d' % (64 + 2 * aidx))
            a('v_mov_b32 v10, s92')
            a('v_not_b32 v11, v9')
            a('v_mov_b32 v12, 0')
            a('s_mov_b64 exec, 1')
            a('global_atomic_umax v12, v8, s[62:63]')
            a('global_atomic_umax v12, v9, s[62:63] offset:4')
            if len(arole) == 1:
                a('global_atomic_add v12, v10, s[62:63] offset:8')
                a('global_atomic_umax v12, v11, s[62:63] offset:12')
            a('s_mov_b64 exec, -1')
            a('s_waitcnt vmcnt(0)')
            spin('L_sp1', 's64', '4500' if len(arole) == 1 else '7500')
            a('global_load_dwordx4 v[8:11], v12, s[62:63] sc1')
            a('s_waitcnt vmcnt(0)')
            a('v_readfirstlane_b32 s93, v8')
            a('v_readfirstlane_b32 s97, v9')
            a('v_readfirstlane_b32 s98, v10')
            a('v_readfirstlane_b32 s99, v11')
            a('s_not_b32 s93, s93')
            if aref >= 0:
                if aop == 'avg':
                    a('s_lshr_b32 s97, s98, 8')
                elif aop == 'min':
                    a('s_not_b32 s97, s99')
            elif aop == 'max':
                a('s_sub_u32 s97, s97, s93')
            elif aop == 'min':
                a('s_not_b32 s99, s99')
                a('s_sub_u32 s97, s99, s93')
            else:
                a('s_lshr_b32 s98, s98, 8')
                a('s_and_b32 s97, s93, 0xfffff')
                a('s_sub_u32 s97, s98, s97')
            a('s_min_u32 s97, s97, 3000')
            a('s_mul_i32 s97, s97, 10')
            a('s_add_u32 s97, s97, %d' % (5000 if len(arole) == 1 else 8000))
            spin('L_sp2', 's93', 's97')
            a('s_endpgm')
        if diag == 'stamp':
            a('L_dump:')
            a('s_load_dwordx2 s[62:63], s[0:1], 40')
            a('s_getreg_b32 s60, hwreg(HW_REG_XCC_ID)')
            a('s_waitcnt lgkmcnt(0)')
            spin('L_sp0', 's64', '2000')
            a('v_mov_b32 v5, 0')
            for i in range(12):
                a('v_writelane_b32 v5, s%d, %d' % (64 + 2 * i, i))
            a('v_writelane_b32 v5, s60, 30')
            a('v_writelane_b32 v5, s%d, 31' % S_W)
            a('s_lshl_b32 s61, s2, 3')
            a('s_add_u32 s61, s61, s%d' % S_W)
            a('s_lshl_b32 s61, s61, 8')
            a('v_lshl_add_u32 v6, v0, 2, s61')
            a('global_store_dword v6, v5, s[62:63]')
            a('s_endpgm')

    def guard(lab):
        if slp:
            a('s_sleep %d' % slp)
        if safe:
            a('s_add_u32 s56, s56, 1')
            a('s_cmp_ge_u32 s56, 0x20000')
            a('s_cbranch_scc1 %s_x' % lab)

    def wait_flag(lab, what, limit=0):
        if limit:
            a('s_mov_b32 s46, %d' % limit)
        a('%s:' % lab)
        if what >= 100:
            a('ds_read_b128 v[8:11], v%d offset:4' % V_FLAG)
        else:
            a('ds_read_b32 v8, v%d' % V_FLAG)
        if limit:
            a('s_sub_u32 s46, s46, 1')
            a('s_cbranch_scc1 %s_x' % lab)
        else:
            guard(lab)
        a('s_waitcnt lgkmcnt(0)')
        if what >= 100:
            a('v_min3_i32 v8, v8, v9, v10')
            a('v_min_i32 v8, v8, v11')
            a('v_cmp_ge_i32 vcc, %d, v8' % (what - 100))
        else:
            a('v_cmp_gt_i32 vcc, %d, v8' % what)
        a('s_cbranch_vccnz %s' % lab)
        if safe or limit:
            a('%s_x:' % lab)

    stamp()
    a('s_load_dwordx2 s[%d:%d], s[0:1], 8' % (S_K, S_K + 1))
    a('s_load_dwordx2 s[%d:%d], s[0:1], 16' % (S_V, S_V + 1))
    a('s_load_dwordx2 s[%d:%d], s[0:1], 0' % (S_Q, S_Q + 1))
    a('s_load_dwordx2 s[%d:%d], s[0:1], 24' % (S_O, S_O + 1))
    a('s_cmp_ge_u32 s2, %d' % NWG)
    a('s_cbranch_scc1 L_end')
    a('v_lshrrev_b32 v5, 6, v0')
    a('v_and_b32 v0, 63, v0')
    a('v_readfirstlane_b32 s%d, v5' % S_W)
    a('v_mov_b32 v%d, %d' % (V_FLAG, FLAG))
    a('v_lshl_add_u32 v15, v5, 2, v%d' % V_FLAG)
    a('v_add_u32 v5, 1, v5')
    a('ds_write_b32 v15, v5')
    if safe:
        a('s_mov_b32 s56, 0')
    if xmap == 1:
        a('s_and_b32 s60, s2, 7')
        a('s_lshr_b32 s61, s2, 3')
        a('s_lshl_b32 s60, s60, 5')
        a('s_add_u32 s2, s60, s61')
    elif xmap == 3:
        a('s_bfe_u32 s60, s2, 0x40003')
        a('s_and_b32 s61, s2, 1')
        a('s_lshl4_add_u32 s60, s61, s60')
        a('s_lshr_b32 s61, s2, 7')
        a('s_and_b32 s2, s2, 6')
        a('s_or_b32 s2, s2, s61')
        a('s_lshl_b32 s2, s2, 5')
        a('s_or_b32 s2, s2, s60')
    elif xmap in (4, 5, 6):
        tab = {4: (0, 1, 4, 5), 5: (0, 0, 0, 0), 6: (0, 3, 5, 6)}[xmap]
        a('s_lshr_b32 s60, s2, 6')
        a('s_lshl_b32 s60, s60, 2')
        a('s_lshr_b32 s60, 0x%x, s60' % sum(v << (4 * k) for k, v in enumerate(tab)))
        a('s_xor_b32 s60, s60, s2')
        a('s_and_b32 s60, s60, 7')
        a('s_bfe_u32 s61, s2, 0x30003')
        a('s_and_b32 s2, s2, 0xc0')
        a('s_or_b32 s2, s2, s61')
        a('s_lshl3_add_u32 s2, s60, s2')
    elif xmap == 7:
        a('s_and_b32 s60, s2, 7')
        a('s_bfe_u32 s61, s2, 0x10003')
        a('s_lshl1_add_u32 s60, s60, s61')
        a('s_and_b32 s2, s2, 0xf0')
        a('s_or_b32 s2, s2, s60')
    a('s_lshl_b32 s%d, s2, 16' % S_QO)
    a('s_movk_i32 s%d, 4096' % S_STR)
    a('s_movk_i32 s61, -8192')
    a('s_and_b32 s60, s2, %d' % (1 if alt else 0))
    a('s_cmovk_i32 s%d, -4096' % S_STR)
    a('s_cselect_b32 s60, %d, 0' % (15 * 4096))
    a('s_cselect_b32 s61, s60, s61')
    a('s_cselect_b64 s[42:43], -1, 0')
    a('s_add_u32 s%d, s%d, s61' % (S_KVO, S_QO))
    a('s_add_u32 s%d, s%d, s60' % (S_QO, S_QO))
    a('v_lshrrev_b32 v6, 4, v0')
    a('v_and_b32 v7, 15, v0')
    a('s_mov_b32 s%d, %d' % (S_Q + 2, 0 if oob else NBYTES))
    a('s_mov_b32 s%d, 0x20000' % (S_Q + 3))
    a('s_mov_b64 s[%d:%d], s[%d:%d]' % (S_O + 2, S_O + 3, S_Q + 2, S_Q + 3))
    a('v_lshlrev_b32 v5, 1, v6')
    a('v_xor_b32 v5, v5, v7')
    a('v_lshlrev_b32 v5, 4, v5')
    a('v_lshl_add_u32 v2, v6, 8, v5')
    a('v_xor_b32 v3, 128, v2')
    a('s_add_u32 s45, s%d, s%d' % (S_KVO, S_STR))
    a('s_and_b32 s%d, s2, 7' % S_POS)
    a('s_cselect_b32 s44, s%d, 0' % S_KVO)
    a('s_cselect_b32 s45, s45, 0')
    a('s_cselect_b32 s%d, s%d, 0' % (S_K + 2, S_Q + 2))
    a('s_mov_b32 s%d, 0x20000' % (S_K + 3))
    a('s_mov_b64 s[%d:%d], s[%d:%d]' % (S_V + 2, S_V + 3, S_K + 2, S_K + 3))
    a('s_mov_b32 m0, %d' % KV0)
    a('s_cmp_lg_u32 s%d, 0' % S_W)
    a('s_waitcnt lgkmcnt(0)')
    a('s_cbranch_scc1 L_other')

    stamp()

    if clk:
        a('s_memtime s[80:81]')

    def dma(i, r, so, fl):
        a('buffer_load_dwordx4 v%d, %s, s%d offen offset:%d%s lds' % (2 + (i & 1), srd(r), so, i * 1024, fl))

    S_N, S_STEPL, S_OPEN, S_T = 52, 53, 54, 55
    fill = ['s_setprio %d' % prio, 's_mov_b32 s46, s%d' % S_QO, 's_mov_b32 s47, 0']
    for n in range(4):
        for i in range(4):
            dma(i, S_V if n & 1 else S_K, 44 + (n >> 1), ld_first)
        if n < 3:
            a('s_addk_i32 m0, 4096')
            a(fill[n])
    a('s_lshl1_add_u32 s48, s%d, s%d' % (S_STR, S_KVO))
    a('s_mov_b32 s50, s48')
    a('s_mov_b32 s49, %d' % (KV0 + 2 * 8192))
    a('s_add_u32 s51, s49, 4096')
    a('s_mov_b32 s%d, 4' % S_N)
    a('s_movk_i32 s%d, 4096' % S_STEPL)
    if De:
        a('s_getreg_b32 s%d, hwreg(HW_REG_XCC_ID, 0, 1)' % S_OPEN)
        a('s_cmp_eq_u32 s%d, %d' % (S_OPEN, par))
        a('s_cselect_b32 s%d, %d, 0' % (S_OPEN, topen))
    a('v_mov_b32 v4, %d' % (3 - OFFW if rv & 4 else 0))
    if rv & 2:
        a('s_movk_i32 s58, 128')
        a('v_mov_b32 v5, 1024')
    if sync:
        a('s_mov_b32 s57, 0')
    if padodd:
        a('s_getreg_b32 s59, hwreg(HW_REG_XCC_ID, 0, 1)')
        a('s_cmp_eq_u32 s59, 0')
        a('s_cselect_b32 s59, %d, %d' % (padto, padodd))
    a('s_barrier')
    if al >= 0:
        a('s_branch L_ld')
        a('.p2align 6')
        if al:
            a('.fill %d, 4, 0xbf800000' % al)

    def throttle(j):
        a('s_waitcnt vmcnt(%d)' % RW)
        if De:
            a('s_cmp_ge_u32 s%d, s%d' % (S_N, S_OPEN))
            if j == 0:
                a('s_cselect_b32 s%d, %d, %d' % (S_T, OFFW, OFFN))
            a('s_cbranch_scc1 L_nw%d' % j)
            a('s_waitcnt vmcnt(%d)' % (De - G))
            a('L_nw%d:' % j)

    a('L_ld:')
    a('s_mov_b32 m0, s47')
    throttle(0)
    if rv & 4:
        a('v_add_u32 v4, 1, v4')
    else:
        a('s_sub_u32 s%d, s%d, %s' % (S_T, S_N, 's%d' % S_T if De else OFFW))
        a('v_max_i32 v4, s%d, v4' % S_T)
    a('ds_write_b32 v%d, v4' % V_FLAG)
    for k, x in enumerate((8, 16, 28, 40)):
        if lstamp:
            stamp_if(S_T, x, 2 + k)
    if roll:
        a('ds_read_b128 v[8:11], v%d offset:4' % V_FLAG)
        a('s_cmp_ge_u32 s%d, %s' % (S_N, 's59' if padodd else padto))
        a('s_cbranch_scc1 L_fast')
        if not rv & 2:
            a('s_mov_b32 s58, s46')
        a('L_row:')
        if rv & 1:
            a('s_waitcnt vmcnt(%d)' % (RW + 3))
        if rv & 2:
            a('buffer_load_dwordx4 v2, %s, s46 offen%s lds' % (srd(S_Q), ld))
            a('v_xad_u32 v2, v2, s58, v5')
        else:
            a('buffer_load_dwordx4 v2, %s, s58 offen%s lds' % (srd(S_Q), ld))
            a('v_xor_b32 v2, 128, v2')
            a('s_addk_i32 s58, 1024')
        a('s_addk_i32 m0, 1024')
        a('s_and_b32 s60, m0, 4095')
        a('s_cbranch_scc1 L_row')
        if rv & 2:
            a('v_xor_b32 v2, s58, v3')
        a('L_next:')
    else:
        if padto < 52:
            a('s_cmp_ge_u32 s%d, %d' % (S_N, padto))
            a('s_cbranch_scc1 L_np')
        if padfrom:
            a('s_cmp_lt_u32 s%d, %d' % (S_N, padfrom))
            a('s_cbranch_scc1 L_np')
        for k in range(padn // 16):
            a('s_nop 15')
        if padn % 16:
            a('s_nop %d' % (padn % 16 - 1))
        if sync:
            a('L_free:')
            a('ds_read_b128 v[8:11], v%d offset:4' % V_FLAG)
            guard('L_free')
            a('s_waitcnt lgkmcnt(0)')
            a('v_min3_i32 v8, v8, v9, v10')
            a('v_min_i32 v8, v8, v11')
            a('v_cmp_ge_i32 vcc, s57, v8')
            a('s_cbranch_vccnz L_free')
            if safe:
                a('L_free_x:')
        if padto < 52 or padfrom:
            a('L_np:')
        for i in range(4):
            if i and i % G == 0:
                throttle(i)
            dma(i, S_Q, 46, ld)
            if i == 0 and not sync:
                a('ds_read_b128 v[8:11], v%d offset:4' % V_FLAG)
    a('s_add_u32 s46, s46, s%d' % S_STR)
    a('s_add_u32 s47, s47, s%d' % S_STEPL)
    if not rv & 8:
        a('s_cmp_ge_u32 s47, %d' % KVEND)
        a('s_cselect_b32 s60, %d, 0' % (NSLOT * 8192))
        a('s_sub_u32 s47, s47, s60')
    a('s_add_u32 s%d, s%d, 1' % (S_N, S_N))
    a('s_and_b32 s60, s%d, 3' % S_N)
    a('s_cbranch_scc1 L_ld')
    if rv & 8:
        a('s_cmp_ge_u32 s47, %d' % KVEND)
        a('s_cselect_b32 s60, %d, 0' % (NSLOT * 8192))
        a('s_sub_u32 s47, s47, s60')
    if vmlog:
        a('s_getreg_b32 s60, hwreg(HW_REG_IB_STS)')
        a('s_lshr_b32 s61, s60, 30')
        a('s_bfe_u32 s60, s60, 0x30001')
        a('s_lshl3_add_u32 s60, s61, s60')
        a('s_lshl_b64 s[68:69], s[68:69], 5')
        a('s_or_b32 s68, s68, s60')
        a('s_mov_b32 s70, s69')
    if clk:
        a('s_cmp_lg_u32 s%d, 44' % S_N)
        a('s_cbranch_scc1 L_nclk')
        a('s_memtime s[82:83]')
        stamp(5)
        a('L_nclk:')
    for x, y, z in ((S_Q, S_K, S_V), (46, 48, 50)):
        a('s_mov_b64 s[60:61], s[%d:%d]' % (x, x + 1))
        a('s_mov_b64 s[%d:%d], s[%d:%d]' % (x, x + 1, y, y + 1))
        a('s_mov_b64 s[%d:%d], s[%d:%d]' % (y, y + 1, z, z + 1))
        a('s_mov_b64 s[%d:%d], s[60:61]' % (z, z + 1))
    a('s_movk_i32 s%d, 4096' % S_STEPL)
    a('s_cmp_ge_u32 s47, %d' % KV0)
    a('s_cmovk_i32 s%d, 8192' % S_STEPL)
    if rv & 8:
        a('s_cmp_ge_u32 s%d, 44' % S_N)
        a('s_cselect_b32 s%d, 9, 5' % S_T)
        a('s_cmp_lt_u32 s%d, 32' % S_N)
        a('s_cmov_b32 s%d, 0' % S_T)
    else:
        a('s_sub_u32 s%d, s%d, 20' % (S_T, S_N))
        a('s_mul_i32 s%d, s%d, 43' % (S_T, S_T))
    if sync:
        a('s_ashr_i32 s57, s%d, 7' % S_T)
        a('s_cmp_lg_u32 s%d, 52' % S_N)
        a('s_cbranch_scc1 L_ld')
    else:
        if not rv & 8:
            a('s_ashr_i32 s%d, s%d, 7' % (S_T, S_T))
        a('s_cmp_eq_u32 s%d, 52' % S_N)
        a('s_cbranch_scc1 L_drain')
        a('L_free:')
        a('s_waitcnt lgkmcnt(0)')
        a('v_min3_i32 v8, v8, v9, v10')
        a('v_min_i32 v8, v8, v11')
        a('v_cmp_lt_i32 vcc, s%d, v8' % S_T)
        a('s_cbranch_vccnz L_ld')
        a('ds_read_b128 v[8:11], v%d offset:4' % V_FLAG)
        if safe:
            a('s_add_u32 s56, s56, 1')
            a('s_cmp_ge_u32 s56, 0x20000')
            a('s_cbranch_scc1 L_ld')
        a('s_branch L_free')
    if roll:
        a('L_fast:')
        for i in range(4):
            dma(i, S_Q, 46, ld)
        a('s_branch L_next')
    a('L_drain:')
    stamp(6)
    for left in range(OFFW, -1, -1):
        a('v_max_i32 v4, %d, v4' % (52 - left))
        a('s_waitcnt vmcnt(%d)' % (4 * left))
        a('ds_write_b32 v%d, v4' % V_FLAG)
    nst[0] = 7
    dump()

    role[0] = 'C'
    nst[0] = 1
    a('L_other:')
    a('s_barrier')
    V_LIN, V_ST0, V_ST1 = 2, 3, 4
    a('v_xor_b32 v5, v7, v6')
    a('v_lshlrev_b32 v5, 4, v5')
    a('v_lshl_add_u32 v%d, v6, 8, v5' % V_ST0)
    a('v_xor_b32 v%d, 64, v%d' % (V_ST1, V_ST0))
    a('s_cmp_le_u32 s%d, %d' % (S_W, NC))
    a('s_cbranch_scc1 L_consumer')
    role[0] = 'S'
    a('v_lshlrev_b32 v%d, 4, v0' % V_LIN)
    def sread(r):
        wait_flag('L_sr%d' % r, 100 + 5 + 4 * r)
        for n in range(16 * r, 16 * r + 16):
            if n % 16 == 14:
                a('s_waitcnt lgkmcnt(6)')
            a('ds_read_b128 v[%d:%d], v%d offset:%d' % (16 + 4 * n, 19 + 4 * n, V_LIN, 1024 * n))

    for r in range(2 if late2 else 3):
        sread(r)
    stamp(1)
    if tbase:
        wait_flag('L_sbase', tbase)
    stamp(2)
    if trigodd:
        a('s_getreg_b32 s59, hwreg(HW_REG_XCC_ID, 0, 1)')
        a('s_cmp_eq_u32 s59, 0')
        a('s_cselect_b32 s59, %d, %d' % (trig, trigodd))
        a('L_strig:')
        a('ds_read_b32 v8, v%d' % V_FLAG)
        a('s_waitcnt lgkmcnt(0)')
        a('v_cmp_gt_i32 vcc, s59, v8')
        a('s_cbranch_vccnz L_strig')
    else:
        wait_flag('L_strig', trig, tmo)
    stamp(3)
    for n in range(48):
        if late2 and n == 32:
            sread(2)
        if late2 and n in (40, 44):
            a('s_waitcnt lgkmcnt(%d)' % (44 - n))
        a('buffer_store_dwordx4 v[%d:%d], v%d, %s, s%d offen offset:%d%s' % (
            16 + 4 * n, 19 + 4 * n, V_ST0 + (n & 1), srd(S_O), S_QO, 1024 * (n & 3), st if n < nsp else stc))
        if n & 3 == 3 and n < 47:
            a('s_add_u32 s%d, s%d, s%d' % (S_QO, S_QO, S_STR))
    stamp(4)
    dump()
    role[0] = 'C'
    nst[0] = 1
    a('L_consumer:')
    S_STEP, S_X, S_Y, S_Z, S_QS, S_C, S_NEG, S_TH = 44, 45, 46, 47, 48, 51, 52, 53
    S_MASK = 28
    V_M0, V_M1, V_T0, V_T1, V_T2, V_T3 = 5, 6, 10, 11, 12, 14
    C_K, C_V, C_O = 16, 20, 28
    A_Q, A_K, A_V, A_O = 32, 36, 48, 72
    R_Q, R_K, R_V = 76, 92, 140
    V_S, V_P, V_O = 188, 200, 208
    R_OUT = R_Q
    a('v_and_b32 v13, 7, v7')
    a('v_lshlrev_b32 v5, 1, v13')
    a('v_xor_b32 v5, v5, v6')
    a('v_lshlrev_b32 v5, 4, v5')
    a('v_lshl_add_u32 v%d, v7, 8, v5' % C_K)
    a('v_xor_b32 v%d, 64, v%d' % (C_K + 1, C_K))
    a('v_xor_b32 v%d, 128, v%d' % (C_K + 2, C_K))
    a('v_xor_b32 v%d, 64, v%d' % (C_K + 3, C_K + 2))
    a('v_lshrrev_b32 v14, 2, v0')
    a('v_and_b32 v5, 7, v14')
    a('v_lshlrev_b32 v5, 5, v5')
    a('v_lshl_add_u32 v5, v14, 8, v5')
    a('v_and_b32 v14, 3, v0')
    a('v_lshl_add_u32 v%d, v14, 3, v5' % C_V)
    a('v_xor_b32 v%d, 128, v%d' % (C_V + 4, C_V))
    for t in (0, 4):
        a('v_xor_b32 v%d, 64, v%d' % (C_V + t + 2, C_V + t))
    for t in (0, 2, 4, 6):
        a('v_xor_b32 v%d, 32, v%d' % (C_V + t + 1, C_V + t))
    a('v_lshrrev_b32 v5, 1, v6')
    a('v_xor_b32 v5, v5, v13')
    a('v_lshlrev_b32 v5, 4, v5')
    a('v_lshl_add_u32 v5, v7, 8, v5')
    a('v_and_b32 v14, 1, v6')
    a('v_lshl_add_u32 v%d, v14, 3, v5' % C_O)
    a('v_xor_b32 v%d, 64, v%d' % (C_O + 2, C_O))
    for t in (0, 2):
        a('v_xor_b32 v%d, 32, v%d' % (C_O + t + 1, C_O + t))
    a('v_lshlrev_b32 v13, 2, v6')
    a('v_sub_u32 v13, v7, v13')
    for r in range(4):
        a('v_cmp_le_i32 vcc, %d, v13' % r)
        a('s_xor_b64 s[%d:%d], vcc, s[42:43]' % (S_MASK + 2 * r, S_MASK + 2 * r + 1))
    a('v_mov_b32 v13, 0xffff')
    for w, vm in ((0, V_M0), (1, V_M1)):
        a('v_cndmask_b32 v10, 0, v13, s[%d:%d]' % (S_MASK + 4 * w, S_MASK + 4 * w + 1))
        a('v_cndmask_b32 v14, 0, v13, s[%d:%d]' % (S_MASK + 4 * w + 2, S_MASK + 4 * w + 3))
        a('v_lshl_or_b32 v%d, v14, 16, v10' % vm)
    a('s_mov_b32 s%d, %s' % (S_C, f32(math.log2(math.e) / math.sqrt(128.0))))
    a('s_cmp_eq_u32 s%d, 0' % S_POS)
    a('s_cselect_b32 s%d, %s, 0' % (S_NEG, f32(-1e30)))
    a('s_sub_u32 s60, s%d, 1' % S_W)
    a('s_add_u32 s%d, s60, 2' % S_STEP)
    a('s_add_u32 s%d, s60, 9' % S_TH)
    a('s_lshl_b32 s%d, s60, 12' % S_QS)
    a('s_lshl_b32 s61, s60, 13')
    a('s_add_u32 s%d, s61, %d' % (S_X, KV0))
    a('v_lshl_add_u32 v%d, v0, 4, s%d' % (V_LIN, S_QS))
    a('s_add_u32 s60, s60, 12')
    a('s_mul_i32 s61, s60, s%d' % S_STR)
    a('s_add_u32 s%d, s%d, s61' % (S_QO, S_QO))

    a('L_round:')
    for x in (1, 2):
        a('s_add_u32 s%d, s%d, 8192' % (S_X + x, S_X + x - 1))
        a('s_cmp_eq_u32 s%d, %d' % (S_X + x, KVEND))
        a('s_cmov_b32 s%d, %d' % (S_X + x, KV0))
    for s in range(4):
        a('v_add_u32 v%d, s%d, v%d' % (A_Q + s, S_QS, C_K + s))
        for x in range(3):
            a('v_add_u32 v%d, s%d, v%d' % (A_K + 4 * x + s, S_X + x, C_K + s))
    for t in range(8):
        for x in range(3):
            a('v_add_u32 v%d, s%d, v%d' % (A_V + 8 * x + t, S_X + x, C_V + t))
    for t in range(4):
        a('v_add_u32 v%d, s%d, v%d' % (A_O + t, S_QS, C_O + t))
    a('s_cmp_lt_u32 s%d, %d' % (S_STEP, 4))
    a('s_cselect_b32 s60, s%d, 0' % S_NEG)
    a('s_cmp_lt_u32 s%d, %d' % (S_STEP, 3))
    a('s_cselect_b32 s61, s%d, 0' % S_NEG)
    for r in range(4):
        a('v_mov_b32 v%d, s60' % (V_S + r))
        a('v_mov_b32 v%d, s61' % (V_S + 4 + r))
    a('s_add_u32 s60, s%d, %d' % (S_STEP, NC))
    a('v_mov_b32 v13, s60')
    a('L_poll:')
    a('ds_read_b32 v%d, v%d' % (V_T0, V_FLAG))
    guard('L_poll')
    a('s_waitcnt lgkmcnt(0)')
    a('v_cmp_gt_i32 vcc, s%d, v%d' % (S_TH, V_T0))
    a('s_cbranch_vccnz L_poll')
    if safe:
        a('L_poll_x:')
    def fstamp(i):
        if fine:
            a('s_memtime s[%d:%d]' % (64 + 2 * i, 65 + 2 * i))

    fstamp(5)
    lds_q = []

    def lds(text, tag):
        a(text)
        lds_q.append(tag)

    def lwait(tags):
        last = max(i for i, t in enumerate(lds_q) if t in tags)
        a('s_waitcnt lgkmcnt(%d)' % (len(lds_q) - 1 - last))

    def kread(s, x):
        if x < 0:
            lds('ds_read_b128 v[%d:%d], v%d' % (R_Q + 4 * s, R_Q + 4 * s + 3, A_Q + s), ('Q', s))
        else:
            lds('ds_read_b128 v[%d:%d], v%d' % (R_K + 16 * x + 4 * s, R_K + 16 * x + 4 * s + 3, A_K + 4 * x + s), ('K', s, x))

    vreads = [(t, x) for t in range(8) for x in range(3)]

    def vread(n):
        for _ in range(n):
            t, x = vreads.pop(0)
            lds('ds_read_b64_tr_b16 v[%d:%d], v%d offset:4096' % (R_V + 6 * t + 2 * x, R_V + 6 * t + 2 * x + 1, A_V + 8 * x + t), ('V', t, x))

    def qk(s, x):
        d = 'v[%d:%d]' % (V_S + 4 * x, V_S + 4 * x + 3)
        c = '0' if (s == 0 and x == 2) else d
        a('v_mfma_f32_16x16x32_bf16 %s, v[%d:%d], v[%d:%d], %s' % (
            d, R_K + 16 * x + 4 * s, R_K + 16 * x + 4 * s + 3, R_Q + 4 * s, R_Q + 4 * s + 3, c))

    XO = (0, 2, 1)
    pend = [(s, x) for s in range(4) for x in (-1,) + XO]
    for _ in range(12):
        kread(*pend.pop(0))
    for s in range(4):
        for x in XO:
            lwait([('Q', s), ('K', s, x)])
            qk(s, x)
            if pend:
                kread(*pend.pop(0))
                if pend and pend[0][1] == XO[0]:
                    kread(*pend.pop(0))
    fstamp(6)
    SA, SB, SC = V_S, V_S + 4, V_S + 8
    a('s_add_u32 s%d, s%d, 4' % (S_TH, S_TH))
    a('ds_read_b32 v8, v%d' % V_FLAG)
    for r in range(4):
        a('v_cndmask_b32 v%d, v%d, v%d, s[%d:%d]' % (SA + r, SA + r, SC + r, S_MASK + 2 * r, S_MASK + 2 * r + 1))
    a('v_max3_f32 v%d, v%d, v%d, v%d' % (V_T2, SA, SA + 1, SA + 2))
    a('v_max3_f32 v%d, v%d, v%d, v%d' % (V_T3, SA + 3, SB, SB + 1))
    a('v_max3_f32 v%d, v%d, v%d, v%d' % (V_T2, V_T2, SB + 2, SB + 3))

    def xreduce(op, fill):
        a('%s v%d, v%d, v%d' % (op, V_T0, V_T2, V_T3))
        a('%s v%d, v%d, v%d' % (op, V_T1, V_T2, V_T3))
        fill()
        a('v_permlane32_swap_b32 v%d, v%d' % (V_T0, V_T1))
        a('%s v%d, v%d, v%d' % (op, V_T2, V_T0, V_T1))
        a('%s v%d, v%d, v%d' % (op, V_T3, V_T0, V_T1))
        fill()
        a('v_permlane16_swap_b32 v%d, v%d' % (V_T2, V_T3))
        a('%s v%d, v%d, v%d' % (op, V_T0, V_T2, V_T3))

    xreduce('v_max_f32', lambda: None)
    a('v_mul_f32 v%d, s%d, v%d' % (V_T0, S_C, V_T0))
    for r in range(8):
        a('v_fma_f32 v%d, v%d, s%d, -v%d' % (SA + r, SA + r, S_C, V_T0))
    for r in range(8):
        a('v_exp_f32 v%d, v%d' % (SA + r, SA + r))
        if r == 3:
            a('v_add_f32 v%d, v%d, v%d' % (V_T2, SA, SA + 1))
        if r == 4:
            a('v_add_f32 v%d, v%d, v%d' % (V_T3, SA + 2, SA + 3))
        if r == 6:
            a('v_add_f32 v%d, v%d, v%d' % (V_T2, V_T2, SA + 4))
            a('v_add_f32 v%d, v%d, v%d' % (V_T3, V_T3, SA + 5))
    a('L_poll2:')
    a('s_waitcnt lgkmcnt(0)')
    a('v_cmp_le_i32 vcc, s%d, v8' % S_TH)
    a('s_cbranch_vccnz L_poll2_x')
    a('ds_read_b32 v8, v%d' % V_FLAG)
    guard('L_poll2')
    a('s_branch L_poll2')
    a('L_poll2_x:')
    stamp(1)
    del lds_q[:]
    vreads[:] = [(t, 2) for t in range(4)] + [(t, x) for t in range(4) for x in (0, 1)] + \
                [(t, 2) for t in range(4, 8)] + [(t, x) for t in range(4, 8) for x in (0, 1)]
    vread(8)
    a('v_add_f32 v%d, v%d, v%d' % (V_T2, V_T2, SA + 6))
    a('v_add_f32 v%d, v%d, v%d' % (V_T3, V_T3, SA + 7))
    xreduce('v_add_f32', lambda: vread(2))
    a('v_rcp_f32 v%d, v%d' % (V_T0, V_T0))
    PA, PB, PC = V_P, V_P + 2, V_P + 4
    lwait([('V', 3, 2)])
    vread(2)
    for r in range(4):
        a('v_mul_f32 v%d, v%d, v%d' % (SA + r, SA + r, V_T0))
    vread(2)
    for w in range(2):
        a('v_cvt_pk_bf16_f32 v%d, v%d, v%d' % (PA + w, SA + 2 * w, SA + 2 * w + 1))
    for w, vm in ((0, V_M0), (1, V_M1)):
        a('v_and_b32 v%d, v%d, v%d' % (PC + w, PA + w, vm))
    fstamp(7)

    def pv16(t):
        a('v_mfma_f32_16x16x16_bf16 v[%d:%d], v[%d:%d], v[%d:%d], 0' % (
            V_O + 4 * t, V_O + 4 * t + 3, R_V + 6 * t + 4, R_V + 6 * t + 5, PC, PC + 1))

    def pv32(t):
        a('v_mfma_f32_16x16x32_bf16 v[%d:%d], v[%d:%d], v[%d:%d], v[%d:%d]' % (
            V_O + 4 * t, V_O + 4 * t + 3, R_V + 6 * t, R_V + 6 * t + 3, PA, PA + 3, V_O + 4 * t, V_O + 4 * t + 3))

    def cvt(t):
        a('v_cvt_pk_bf16_f32 v%d, v%d, v%d' % (R_OUT + 2 * t, V_O + 4 * t, V_O + 4 * t + 1))
        a('v_cvt_pk_bf16_f32 v%d, v%d, v%d' % (R_OUT + 2 * t + 1, V_O + 4 * t + 2, V_O + 4 * t + 3))

    def owr(t):
        a('ds_write_b64 v%d, v[%d:%d] offset:%d' % (A_O + (t & 3), R_OUT + 2 * t, R_OUT + 2 * t + 1, 128 * (t >> 2)))

    a('v_mul_f32 v%d, v%d, v%d' % (SB, SB, V_T0))
    a('v_mul_f32 v%d, v%d, v%d' % (SB + 1, SB + 1, V_T0))
    pv16(0)
    lwait([('V', 2, 1)])
    vread(2)
    a('v_mul_f32 v%d, v%d, v%d' % (SB + 2, SB + 2, V_T0))
    a('v_mul_f32 v%d, v%d, v%d' % (SB + 3, SB + 3, V_T0))
    pv16(1)
    vread(2)
    for w in range(2):
        a('v_cvt_pk_bf16_f32 v%d, v%d, v%d' % (PB + w, SB + 2 * w, SB + 2 * w + 1))
    pv16(2)
    vread(2)
    for w in range(2):
        a('v_xor_b32 v%d, v%d, v%d' % (PA + w, PA + w, PC + w))
    pv16(3)
    vread(2)
    assert not vreads
    lwait([('V', 7, 2)])
    pv32(0); pv16(4); pv32(1); pv16(5); pv32(2); pv16(6); pv32(3); pv16(7)
    a('s_waitcnt lgkmcnt(0)')
    a('s_addk_i32 s%d, %d' % (S_QS, NC * 4096))
    cvt(0); pv32(4); owr(0)
    cvt(1); pv32(5); owr(1)
    cvt(2); pv32(6); owr(2)
    cvt(3); pv32(7); owr(3)
    for t in range(4, 8):
        cvt(t); owr(t)
    fstamp(8)
    a('ds_write_b32 v15, v13')
    a('s_add_u32 s%d, s%d, %d' % (S_X, S_X, NC * 8192))
    a('s_cmp_ge_u32 s%d, %d' % (S_X, KVEND))
    a('s_cselect_b32 s60, %d, 0' % (NSLOT * 8192))
    a('s_sub_u32 s%d, s%d, s60' % (S_X, S_X))
    a('s_add_u32 s%d, s%d, 8' % (S_TH, S_TH))
    a('s_add_u32 s%d, s%d, %d' % (S_STEP, S_STEP, NC))
    a('s_cmp_lt_u32 s%d, %d' % (S_STEP, 18))
    a('s_cbranch_scc1 L_round')
    stamp(2)
    RB = R_K
    for n in range(4):
        a('ds_read_b128 v[%d:%d], v%d offset:%d' % (RB + 4 * n, RB + 4 * n + 3, V_LIN, 49152 + 1024 * n))
    if ctrig:
        wait_flag('L_ctrig', ctrig, ctmo)
    stamp(3)
    for n in range(4):
        if not ctrig:
            a('s_waitcnt lgkmcnt(%d)' % (3 - n))
        a('buffer_store_dwordx4 v[%d:%d], v%d, %s, s%d offen offset:%d%s' % (
            RB + 4 * n, RB + 4 * n + 3, V_ST0 + (n & 1), srd(S_O), S_QO, 1024 * n, st if stc is None else stc))
    fstamp(9)
    stamp(4)
    if fine:
        nst[0] = 10
    if diag:
        dump()
    a('L_end:')
    a('s_endpgm')
    dump_code()
    s, info = finish(a, NWG, 64 * (NC + 2), LDS)
    if pad:
        s = s.replace('.p2align 8\n.type', '.p2align 12\n.fill %d, 4, 0xbf800000\n.p2align 8\n.type' % (pad // 4))
    return s, info


if __name__ == '__main__':
    out = sys.argv[1]
    kw = {}
    for x in sys.argv[2:]:
        k, v = x.split('=')
        try:
            v = int(v)
        except ValueError:
            v = v.replace('+', ' ')
        kw[k] = v
    s, info = gen(**kw)
    open(out, 'w').write(s)
    print(out, info)
```

```python
import sys
import math
import struct
from asmlib import Asm, finish

NBYTES = 32 * 2048 * 128 * 2


def f32(x):
    return '0x%08x' % struct.unpack('<I', struct.pack('<f', x))[0]


def gen(D=32, xmap=3, alt=1, ld=' nt', ld_first=None, st=' sc1', trig=17, W=63, ctrig=17, ctmo=0, sched=1, fine=0, E2=18, G=4, De=0, par=0, topen=48, tbase=44, p2=1, padn=0, oob=0, roll=0, rv=0, al=-1, padodd=0, late2=0, ka=0, slp=0, clk=0, trigodd=0, vmlog=0, stc=None, nsp=48, padto=52, padfrom=0, sync=0, lstamp=0, prio=3, safe=1,
        diag='', arole='L', aidx=0, aop='max', aref=-1, pad=0xd00, tmo=0, tmo_from=15):
    a = Asm()
    NWG = 256
    NC = 4
    NSLOT = 10 if rv & 8 else 11
    KV0 = 65536
    KVEND = KV0 + NSLOT * 8192
    FLAG = KVEND + 12
    LDS = KVEND + 256
    if ld_first is None:
        ld_first = ld
    RW = D - G
    OFFW = -(-RW // 4)
    OFFN = -(-(De - G) // 4) if De else OFFW
    assert OFFW <= 14
    S_Q, S_K, S_V, S_O = 12, 16, 20, 24
    srd = lambda b: 's[%d:%d]' % (b, b + 3)
    S_W, S_STR, S_KVO, S_QO, S_POS = 3, 37, 38, 39, 40
    V_FLAG = 1
    nst = [0]
    role = ['L']
    uid = [0]

    def stamp(idx=None):
        i = nst[0] if idx is None else idx
        if diag == 'stamp' or (diag == 'amp' and (i == 0 or (role[0] in arole and i in (aidx, aref)))):
            a('s_memrealtime s[%d:%d]' % (64 + 2 * i, 65 + 2 * i))
        nst[0] = max(nst[0], i + 1)

    def stamp_if(sreg, val, idx):
        if diag == 'stamp' or (diag == 'amp' and role[0] in arole and idx in (aidx, aref)):
            uid[0] += 1
            a('s_cmp_lg_u32 s%d, %d' % (sreg, val))
            a('s_cbranch_scc1 L_ns%d' % uid[0])
            stamp(idx)
            a('L_ns%d:' % uid[0])

    def spin(lab, ref, lim):
        a('%s:' % lab)
        a('s_memrealtime s[94:95]')
        a('s_waitcnt lgkmcnt(0)')
        a('s_sub_u32 s96, s94, %s' % ref)
        a('s_cmp_lt_u32 s96, %s' % lim)
        a('s_cbranch_scc1 %s' % lab)

    tails = []

    def dump():
        if diag == 'stamp' or (diag == 'amp' and role[0] in arole):
            if role[0] != 'L':
                a('s_waitcnt vmcnt(0)')
            stamp()
            a('s_branch L_dump')
        else:
            a('s_endpgm')

    def dump_code():
        if diag == 'amp':
            a('L_dump:')
            a('s_load_dwordx2 s[62:63], s[0:1], 32')
            a('s_waitcnt lgkmcnt(0)')
            spin('L_sp0', 's64', '2000')
            a('s_not_b32 s93, s64')
            if aref >= 0:
                a('s_sub_u32 s%d, s%d, s%d' % (64 + 2 * aidx, 64 + 2 * aidx, 64 + 2 * aref))
            a('s_and_b32 s92, s%d, 0xfffff' % (64 + 2 * aidx))
            a('v_mov_b32 v8, s93')
            a('v_mov_b32 v9, s%d' % (64 + 2 * aidx))
            a('v_mov_b32 v10, s92')
            a('v_not_b32 v11, v9')
            a('v_mov_b32 v12, 0')
            a('s_mov_b64 exec, 1')
            a('global_atomic_umax v12, v8, s[62:63]')
            a('global_atomic_umax v12, v9, s[62:63] offset:4')
            if len(arole) == 1:
                a('global_atomic_add v12, v10, s[62:63] offset:8')
                a('global_atomic_umax v12, v11, s[62:63] offset:12')
            a('s_mov_b64 exec, -1')
            a('s_waitcnt vmcnt(0)')
            spin('L_sp1', 's64', '4500' if len(arole) == 1 else '7500')
            a('global_load_dwordx4 v[8:11], v12, s[62:63] sc1')
            a('s_waitcnt vmcnt(0)')
            a('v_readfirstlane_b32 s93, v8')
            a('v_readfirstlane_b32 s97, v9')
            a('v_readfirstlane_b32 s98, v10')
            a('v_readfirstlane_b32 s99, v11')
            a('s_not_b32 s93, s93')
            if aref >= 0:
                if aop == 'avg':
                    a('s_lshr_b32 s97, s98, 8')
                elif aop == 'min':
                    a('s_not_b32 s97, s99')
            elif aop == 'max':
                a('s_sub_u32 s97, s97, s93')
            elif aop == 'min':
                a('s_not_b32 s99, s99')
                a('s_sub_u32 s97, s99, s93')
            else:
                a('s_lshr_b32 s98, s98, 8')
                a('s_and_b32 s97, s93, 0xfffff')
                a('s_sub_u32 s97, s98, s97')
            a('s_min_u32 s97, s97, 3000')
            a('s_mul_i32 s97, s97, 10')
            a('s_add_u32 s97, s97, %d' % (5000 if len(arole) == 1 else 8000))
            spin('L_sp2', 's93', 's97')
            a('s_endpgm')
        if diag == 'stamp':
            a('L_dump:')
            a('s_load_dwordx2 s[62:63], s[0:1], 40')
            a('s_getreg_b32 s60, hwreg(HW_REG_XCC_ID)')
            a('s_waitcnt lgkmcnt(0)')
            spin('L_sp0', 's64', '2000')
            a('v_mov_b32 v5, 0')
            for i in range(12):
                a('v_writelane_b32 v5, s%d, %d' % (64 + 2 * i, i))
            a('v_writelane_b32 v5, s60, 30')
            a('v_writelane_b32 v5, s%d, 31' % S_W)
            a('s_lshl_b32 s61, s2, 3')
            a('s_add_u32 s61, s61, s%d' % S_W)
            a('s_lshl_b32 s61, s61, 8')
            a('v_lshl_add_u32 v6, v0, 2, s61')
            a('global_store_dword v6, v5, s[62:63]')
            a('s_endpgm')

    def guard(lab):
        if slp:
            a('s_sleep %d' % slp)
        if safe:
            a('s_add_u32 s56, s56, 1')
            a('s_cmp_ge_u32 s56, 0x20000')
            a('s_cbranch_scc1 %s_x' % lab)

    def wait_flag(lab, what, limit=0):
        if limit:
            a('s_mov_b32 s46, %d' % limit)
        a('%s:' % lab)
        if what >= 100:
            a('ds_read_b128 v[8:11], v%d offset:4' % V_FLAG)
        else:
            a('ds_read_b32 v8, v%d' % V_FLAG)
        if limit:
            a('s_sub_u32 s46, s46, 1')
            a('s_cbranch_scc1 %s_x' % lab)
        else:
            guard(lab)
        a('s_waitcnt lgkmcnt(0)')
        if what >= 100:
            a('v_min3_i32 v8, v8, v9, v10')
            a('v_min_i32 v8, v8, v11')
            a('v_cmp_ge_i32 vcc, %d, v8' % (what - 100))
        else:
            a('v_cmp_gt_i32 vcc, %d, v8' % what)
        a('s_cbranch_vccnz %s' % lab)
        if safe or limit:
            a('%s_x:' % lab)

    stamp()
    if ka == 0:
        a('s_load_dwordx2 s[%d:%d], s[0:1], 8' % (S_K, S_K + 1))
        a('s_load_dwordx2 s[%d:%d], s[0:1], 16' % (S_V, S_V + 1))
        a('s_load_dwordx2 s[%d:%d], s[0:1], 0' % (S_Q, S_Q + 1))
        a('s_load_dwordx2 s[%d:%d], s[0:1], 24' % (S_O, S_O + 1))
    else:
        a('s_load_dwordx8 s[4:11], s[0:1], 0')
    a('s_cmp_ge_u32 s2, %d' % NWG)
    a('s_cbranch_scc1 L_end')
    a('v_lshrrev_b32 v5, 6, v0')
    a('v_and_b32 v0, 63, v0')
    a('v_readfirstlane_b32 s%d, v5' % S_W)
    a('v_mov_b32 v%d, %d' % (V_FLAG, FLAG))
    a('v_lshl_add_u32 v15, v5, 2, v%d' % V_FLAG)
    a('v_add_u32 v5, 1, v5')
    a('ds_write_b32 v15, v5')
    if safe:
        a('s_mov_b32 s56, 0')
    if xmap == 1:
        a('s_and_b32 s60, s2, 7')
        a('s_lshr_b32 s61, s2, 3')
        a('s_lshl_b32 s60, s60, 5')
        a('s_add_u32 s2, s60, s61')
    elif xmap == 3:
        a('s_bfe_u32 s60, s2, 0x40003')
        a('s_and_b32 s61, s2, 1')
        a('s_lshl4_add_u32 s60, s61, s60')
        a('s_lshr_b32 s61, s2, 7')
        a('s_and_b32 s2, s2, 6')
        a('s_or_b32 s2, s2, s61')
        a('s_lshl_b32 s2, s2, 5')
        a('s_or_b32 s2, s2, s60')
    elif xmap in (4, 5, 6):
        tab = {4: (0, 1, 4, 5), 5: (0, 0, 0, 0), 6: (0, 3, 5, 6)}[xmap]
        a('s_lshr_b32 s60, s2, 6')
        a('s_lshl_b32 s60, s60, 2')
        a('s_lshr_b32 s60, 0x%x, s60' % sum(v << (4 * k) for k, v in enumerate(tab)))
        a('s_xor_b32 s60, s60, s2')
        a('s_and_b32 s60, s60, 7')
        a('s_bfe_u32 s61, s2, 0x30003')
        a('s_and_b32 s2, s2, 0xc0')
        a('s_or_b32 s2, s2, s61')
        a('s_lshl3_add_u32 s2, s60, s2')
    elif xmap == 7:
        a('s_and_b32 s60, s2, 7')
        a('s_bfe_u32 s61, s2, 0x10003')
        a('s_lshl1_add_u32 s60, s60, s61')
        a('s_and_b32 s2, s2, 0xf0')
        a('s_or_b32 s2, s2, s60')
    a('s_lshl_b32 s%d, s2, 16' % S_QO)
    a('s_movk_i32 s%d, 4096' % S_STR)
    a('s_movk_i32 s61, -8192')
    a('s_and_b32 s60, s2, %d' % (1 if alt else 0))
    a('s_cmovk_i32 s%d, -4096' % S_STR)
    a('s_cselect_b32 s60, %d, 0' % (15 * 4096))
    a('s_cselect_b32 s61, s60, s61')
    a('s_cselect_b64 s[42:43], -1, 0')
    a('s_add_u32 s%d, s%d, s61' % (S_KVO, S_QO))
    a('s_add_u32 s%d, s%d, s60' % (S_QO, S_QO))
    a('v_lshrrev_b32 v6, 4, v0')
    a('v_and_b32 v7, 15, v0')
    a('s_mov_b32 s%d, %d' % (S_Q + 2, 0 if oob else NBYTES))
    a('s_mov_b32 s%d, 0x20000' % (S_Q + 3))
    a('s_mov_b64 s[%d:%d], s[%d:%d]' % (S_O + 2, S_O + 3, S_Q + 2, S_Q + 3))
    a('v_lshlrev_b32 v5, 1, v6')
    a('v_xor_b32 v5, v5, v7')
    a('v_lshlrev_b32 v5, 4, v5')
    a('v_lshl_add_u32 v2, v6, 8, v5')
    a('v_xor_b32 v3, 128, v2')
    a('s_add_u32 s45, s%d, s%d' % (S_KVO, S_STR))
    a('s_and_b32 s%d, s2, 7' % S_POS)
    a('s_cselect_b32 s44, s%d, 0' % S_KVO)
    a('s_cselect_b32 s45, s45, 0')
    a('s_cselect_b32 s%d, s%d, 0' % (S_K + 2, S_Q + 2))
    a('s_mov_b32 s%d, 0x20000' % (S_K + 3))
    a('s_mov_b64 s[%d:%d], s[%d:%d]' % (S_V + 2, S_V + 3, S_K + 2, S_K + 3))
    a('s_mov_b32 m0, %d' % KV0)
    a('s_cmp_lg_u32 s%d, 0' % S_W)
    a('s_waitcnt lgkmcnt(0)')
    if ka:
        a('s_mov_b64 s[%d:%d], s[6:7]' % (S_K, S_K + 1))
    a('s_cbranch_scc1 L_other')

    stamp()

    if clk:
        a('s_memtime s[80:81]')

    def dma(i, r, so, fl):
        a('buffer_load_dwordx4 v%d, %s, s%d offen offset:%d%s lds' % (2 + (i & 1), srd(r), so, i * 1024, fl))

    S_N, S_STEPL, S_OPEN, S_T = 52, 53, 54, 55
    fill = ['s_setprio %d' % prio, 's_mov_b32 s46, s%d' % S_QO, 's_mov_b32 s47, 0']
    if ka:
        fill[0] = 's_mov_b64 s[%d:%d], s[8:9]' % (S_V, S_V + 1)
        fill[1] += '\ns_setprio %d' % prio
        fill[2] += '\ns_mov_b64 s[%d:%d], s[4:5]' % (S_Q, S_Q + 1)
    for n in range(4):
        for i in range(4):
            dma(i, S_V if n & 1 else S_K, 44 + (n >> 1), ld_first)
        if n < 3:
            a('s_addk_i32 m0, 4096')
            a(fill[n])
    a('s_lshl1_add_u32 s48, s%d, s%d' % (S_STR, S_KVO))
    a('s_mov_b32 s50, s48')
    a('s_mov_b32 s49, %d' % (KV0 + 2 * 8192))
    a('s_add_u32 s51, s49, 4096')
    a('s_mov_b32 s%d, 4' % S_N)
    a('s_movk_i32 s%d, 4096' % S_STEPL)
    if De:
        a('s_getreg_b32 s%d, hwreg(HW_REG_XCC_ID, 0, 1)' % S_OPEN)
        a('s_cmp_eq_u32 s%d, %d' % (S_OPEN, par))
        a('s_cselect_b32 s%d, %d, 0' % (S_OPEN, topen))
    a('v_mov_b32 v4, %d' % (3 - OFFW if rv & 4 else 0))
    if rv & 2:
        a('s_movk_i32 s58, 128')
        a('v_mov_b32 v5, 1024')
    if sync:
        a('s_mov_b32 s57, 0')
    if padodd:
        a('s_getreg_b32 s59, hwreg(HW_REG_XCC_ID, 0, 1)')
        a('s_cmp_eq_u32 s59, 0')
        a('s_cselect_b32 s59, %d, %d' % (padto, padodd))
    a('s_barrier')
    if al >= 0:
        a('s_branch L_ld')
        a('.p2align 6')
        if al:
            a('.fill %d, 4, 0xbf800000' % al)

    def throttle(j):
        a('s_waitcnt vmcnt(%d)' % RW)
        if De:
            a('s_cmp_ge_u32 s%d, s%d' % (S_N, S_OPEN))
            if j == 0:
                a('s_cselect_b32 s%d, %d, %d' % (S_T, OFFW, OFFN))
            a('s_cbranch_scc1 L_nw%d' % j)
            a('s_waitcnt vmcnt(%d)' % (De - G))
            a('L_nw%d:' % j)

    a('L_ld:')
    a('s_mov_b32 m0, s47')
    throttle(0)
    if rv & 4:
        a('v_add_u32 v4, 1, v4')
    else:
        a('s_sub_u32 s%d, s%d, %s' % (S_T, S_N, 's%d' % S_T if De else OFFW))
        a('v_max_i32 v4, s%d, v4' % S_T)
    a('ds_write_b32 v%d, v4' % V_FLAG)
    for k, x in enumerate((8, 16, 28, 40)):
        if lstamp:
            stamp_if(S_T, x, 2 + k)
    if roll:
        a('ds_read_b128 v[8:11], v%d offset:4' % V_FLAG)
        a('s_cmp_ge_u32 s%d, %s' % (S_N, 's59' if padodd else padto))
        a('s_cbranch_scc1 L_fast')
        if not rv & 2:
            a('s_mov_b32 s58, s46')
        a('L_row:')
        if rv & 1:
            a('s_waitcnt vmcnt(%d)' % (RW + 3))
        if rv & 2:
            a('buffer_load_dwordx4 v2, %s, s46 offen%s lds' % (srd(S_Q), ld))
            a('v_xad_u32 v2, v2, s58, v5')
        else:
            a('buffer_load_dwordx4 v2, %s, s58 offen%s lds' % (srd(S_Q), ld))
            a('v_xor_b32 v2, 128, v2')
            a('s_addk_i32 s58, 1024')
        a('s_addk_i32 m0, 1024')
        a('s_and_b32 s60, m0, 4095')
        a('s_cbranch_scc1 L_row')
        if rv & 2:
            a('v_xor_b32 v2, s58, v3')
        a('L_next:')
    else:
        if padto < 52:
            a('s_cmp_ge_u32 s%d, %d' % (S_N, padto))
            a('s_cbranch_scc1 L_np')
        if padfrom:
            a('s_cmp_lt_u32 s%d, %d' % (S_N, padfrom))
            a('s_cbranch_scc1 L_np')
        for k in range(padn // 16):
            a('s_nop 15')
        if padn % 16:
            a('s_nop %d' % (padn % 16 - 1))
        if sync:
            a('L_free:')
            a('ds_read_b128 v[8:11], v%d offset:4' % V_FLAG)
            guard('L_free')
            a('s_waitcnt lgkmcnt(0)')
            a('v_min3_i32 v8, v8, v9, v10')
            a('v_min_i32 v8, v8, v11')
            a('v_cmp_ge_i32 vcc, s57, v8')
            a('s_cbranch_vccnz L_free')
            if safe:
                a('L_free_x:')
        if padto < 52 or padfrom:
            a('L_np:')
        for i in range(4):
            if i and i % G == 0:
                throttle(i)
            dma(i, S_Q, 46, ld)
            if i == 0 and not sync:
                a('ds_read_b128 v[8:11], v%d offset:4' % V_FLAG)
    a('s_add_u32 s46, s46, s%d' % S_STR)
    a('s_add_u32 s47, s47, s%d' % S_STEPL)
    if not rv & 8:
        a('s_cmp_ge_u32 s47, %d' % KVEND)
        a('s_cselect_b32 s60, %d, 0' % (NSLOT * 8192))
        a('s_sub_u32 s47, s47, s60')
    a('s_add_u32 s%d, s%d, 1' % (S_N, S_N))
    a('s_and_b32 s60, s%d, 3' % S_N)
    a('s_cbranch_scc1 L_ld')
    if rv & 8:
        a('s_cmp_ge_u32 s47, %d' % KVEND)
        a('s_cselect_b32 s60, %d, 0' % (NSLOT * 8192))
        a('s_sub_u32 s47, s47, s60')
    if vmlog:
        a('s_getreg_b32 s60, hwreg(HW_REG_IB_STS)')
        a('s_lshr_b32 s61, s60, 30')
        a('s_bfe_u32 s60, s60, 0x30001')
        a('s_lshl3_add_u32 s60, s61, s60')
        a('s_lshl_b64 s[68:69], s[68:69], 5')
        a('s_or_b32 s68, s68, s60')
        a('s_mov_b32 s70, s69')
    if clk:
        a('s_cmp_lg_u32 s%d, 44' % S_N)
        a('s_cbranch_scc1 L_nclk')
        a('s_memtime s[82:83]')
        stamp(5)
        a('L_nclk:')
    for x, y, z in ((S_Q, S_K, S_V), (46, 48, 50)):
        a('s_mov_b64 s[60:61], s[%d:%d]' % (x, x + 1))
        a('s_mov_b64 s[%d:%d], s[%d:%d]' % (x, x + 1, y, y + 1))
        a('s_mov_b64 s[%d:%d], s[%d:%d]' % (y, y + 1, z, z + 1))
        a('s_mov_b64 s[%d:%d], s[60:61]' % (z, z + 1))
    a('s_movk_i32 s%d, 4096' % S_STEPL)
    a('s_cmp_ge_u32 s47, %d' % KV0)
    a('s_cmovk_i32 s%d, 8192' % S_STEPL)
    if rv & 8:
        a('s_cmp_ge_u32 s%d, 44' % S_N)
        a('s_cselect_b32 s%d, 9, 5' % S_T)
        a('s_cmp_lt_u32 s%d, 32' % S_N)
        a('s_cmov_b32 s%d, 0' % S_T)
    else:
        a('s_sub_u32 s%d, s%d, 20' % (S_T, S_N))
        a('s_mul_i32 s%d, s%d, 43' % (S_T, S_T))
    if sync:
        a('s_ashr_i32 s57, s%d, 7' % S_T)
        a('s_cmp_lg_u32 s%d, 52' % S_N)
        a('s_cbranch_scc1 L_ld')
    else:
        if not rv & 8:
            a('s_ashr_i32 s%d, s%d, 7' % (S_T, S_T))
        a('s_cmp_eq_u32 s%d, 52' % S_N)
        a('s_cbranch_scc1 L_drain')
        a('L_free:')
        a('s_waitcnt lgkmcnt(0)')
        a('v_min3_i32 v8, v8, v9, v10')
        a('v_min_i32 v8, v8, v11')
        a('v_cmp_lt_i32 vcc, s%d, v8' % S_T)
        a('s_cbranch_vccnz L_ld')
        a('ds_read_b128 v[8:11], v%d offset:4' % V_FLAG)
        if safe:
            a('s_add_u32 s56, s56, 1')
            a('s_cmp_ge_u32 s56, 0x20000')
            a('s_cbranch_scc1 L_ld')
        a('s_branch L_free')
    if roll:
        a('L_fast:')
        for i in range(4):
            dma(i, S_Q, 46, ld)
        a('s_branch L_next')
    a('L_drain:')
    stamp(6)
    for left in range(OFFW, -1, -1):
        a('v_max_i32 v4, %d, v4' % (52 - left))
        a('s_waitcnt vmcnt(%d)' % (4 * left))
        a('ds_write_b32 v%d, v4' % V_FLAG)
    nst[0] = 7
    dump()

    role[0] = 'C'
    nst[0] = 1
    a('L_other:')
    a('s_barrier')
    if ka:
        a('s_mov_b64 s[%d:%d], s[10:11]' % (S_O, S_O + 1))
    V_LIN, V_ST0, V_ST1 = 2, 3, 4
    a('v_xor_b32 v5, v7, v6')
    a('v_lshlrev_b32 v5, 4, v5')
    a('v_lshl_add_u32 v%d, v6, 8, v5' % V_ST0)
    a('v_xor_b32 v%d, 64, v%d' % (V_ST1, V_ST0))
    a('s_cmp_le_u32 s%d, %d' % (S_W, NC))
    a('s_cbranch_scc1 L_consumer')
    role[0] = 'S'
    a('v_lshlrev_b32 v%d, 4, v0' % V_LIN)
    def sread(r):
        wait_flag('L_sr%d' % r, 100 + 5 + 4 * r)
        for n in range(16 * r, 16 * r + 16):
            if n % 16 == 14:
                a('s_waitcnt lgkmcnt(6)')
            a('ds_read_b128 v[%d:%d], v%d offset:%d' % (16 + 4 * n, 19 + 4 * n, V_LIN, 1024 * n))

    for r in range(2 if late2 else 3):
        sread(r)
    stamp(1)
    if tbase:
        wait_flag('L_sbase', tbase)
    stamp(2)
    if trigodd:
        a('s_getreg_b32 s59, hwreg(HW_REG_XCC_ID, 0, 1)')
        a('s_cmp_eq_u32 s59, 0')
        a('s_cselect_b32 s59, %d, %d' % (trig, trigodd))
        a('L_strig:')
        a('ds_read_b32 v8, v%d' % V_FLAG)
        a('s_waitcnt lgkmcnt(0)')
        a('v_cmp_gt_i32 vcc, s59, v8')
        a('s_cbranch_vccnz L_strig')
    else:
        wait_flag('L_strig', trig, tmo)
    stamp(3)
    for n in range(48):
        if late2 and n == 32:
            sread(2)
        if late2 and n in (40, 44):
            a('s_waitcnt lgkmcnt(%d)' % (44 - n))
        a('buffer_store_dwordx4 v[%d:%d], v%d, %s, s%d offen offset:%d%s' % (
            16 + 4 * n, 19 + 4 * n, V_ST0 + (n & 1), srd(S_O), S_QO, 1024 * (n & 3), st if n < nsp else stc))
        if n & 3 == 3 and n < 47:
            a('s_add_u32 s%d, s%d, s%d' % (S_QO, S_QO, S_STR))
    stamp(4)
    dump()
    role[0] = 'C'
    nst[0] = 1
    a('L_consumer:')
    S_STEP, S_X, S_Y, S_Z, S_QS, S_C, S_NEG, S_TH = 44, 45, 46, 47, 48, 51, 52, 53
    S_MASK = 28
    V_M0, V_M1, V_T0, V_T1, V_T2, V_T3 = 5, 6, 10, 11, 12, 14
    C_K, C_V, C_O = 16, 20, 28
    A_Q, A_K, A_V, A_O = 32, 36, 48, 72
    R_Q, R_K, R_V = 76, 92, 140
    V_S, V_P, V_O = 188, 200, 208
    R_OUT = R_Q
    a('v_and_b32 v13, 7, v7')
    a('v_lshlrev_b32 v5, 1, v13')
    a('v_xor_b32 v5, v5, v6')
    a('v_lshlrev_b32 v5, 4, v5')
    a('v_lshl_add_u32 v%d, v7, 8, v5' % C_K)
    a('v_xor_b32 v%d, 64, v%d' % (C_K + 1, C_K))
    a('v_xor_b32 v%d, 128, v%d' % (C_K + 2, C_K))
    a('v_xor_b32 v%d, 64, v%d' % (C_K + 3, C_K + 2))
    a('v_lshrrev_b32 v14, 2, v0')
    a('v_and_b32 v5, 7, v14')
    a('v_lshlrev_b32 v5, 5, v5')
    a('v_lshl_add_u32 v5, v14, 8, v5')
    a('v_and_b32 v14, 3, v0')
    a('v_lshl_add_u32 v%d, v14, 3, v5' % C_V)
    a('v_xor_b32 v%d, 128, v%d' % (C_V + 4, C_V))
    for t in (0, 4):
        a('v_xor_b32 v%d, 64, v%d' % (C_V + t + 2, C_V + t))
    for t in (0, 2, 4, 6):
        a('v_xor_b32 v%d, 32, v%d' % (C_V + t + 1, C_V + t))
    a('v_lshrrev_b32 v5, 1, v6')
    a('v_xor_b32 v5, v5, v13')
    a('v_lshlrev_b32 v5, 4, v5')
    a('v_lshl_add_u32 v5, v7, 8, v5')
    a('v_and_b32 v14, 1, v6')
    a('v_lshl_add_u32 v%d, v14, 3, v5' % C_O)
    a('v_xor_b32 v%d, 64, v%d' % (C_O + 2, C_O))
    for t in (0, 2):
        a('v_xor_b32 v%d, 32, v%d' % (C_O + t + 1, C_O + t))
    a('v_lshlrev_b32 v13, 2, v6')
    a('v_sub_u32 v13, v7, v13')
    for r in range(4):
        a('v_cmp_le_i32 vcc, %d, v13' % r)
        a('s_xor_b64 s[%d:%d], vcc, s[42:43]' % (S_MASK + 2 * r, S_MASK + 2 * r + 1))
    a('v_mov_b32 v13, 0xffff')
    for w, vm in ((0, V_M0), (1, V_M1)):
        a('v_cndmask_b32 v10, 0, v13, s[%d:%d]' % (S_MASK + 4 * w, S_MASK + 4 * w + 1))
        a('v_cndmask_b32 v14, 0, v13, s[%d:%d]' % (S_MASK + 4 * w + 2, S_MASK + 4 * w + 3))
        a('v_lshl_or_b32 v%d, v14, 16, v10' % vm)
    a('s_mov_b32 s%d, %s' % (S_C, f32(math.log2(math.e) / math.sqrt(128.0))))
    a('s_cmp_eq_u32 s%d, 0' % S_POS)
    a('s_cselect_b32 s%d, %s, 0' % (S_NEG, f32(-1e30)))
    a('s_sub_u32 s60, s%d, 1' % S_W)
    a('s_add_u32 s%d, s60, 2' % S_STEP)
    a('s_add_u32 s%d, s60, 9' % S_TH)
    a('s_lshl_b32 s%d, s60, 12' % S_QS)
    a('s_lshl_b32 s61, s60, 13')
    a('s_add_u32 s%d, s61, %d' % (S_X, KV0))
    a('v_lshl_add_u32 v%d, v0, 4, s%d' % (V_LIN, S_QS))
    a('s_add_u32 s60, s60, 12')
    a('s_mul_i32 s61, s60, s%d' % S_STR)
    a('s_add_u32 s%d, s%d, s61' % (S_QO, S_QO))

    a('L_round:')
    for x in (1, 2):
        a('s_add_u32 s%d, s%d, 8192' % (S_X + x, S_X + x - 1))
        a('s_cmp_eq_u32 s%d, %d' % (S_X + x, KVEND))
        a('s_cmov_b32 s%d, %d' % (S_X + x, KV0))
    for s in range(4):
        a('v_add_u32 v%d, s%d, v%d' % (A_Q + s, S_QS, C_K + s))
        for x in range(3):
            a('v_add_u32 v%d, s%d, v%d' % (A_K + 4 * x + s, S_X + x, C_K + s))
    for t in range(8):
        for x in range(3):
            a('v_add_u32 v%d, s%d, v%d' % (A_V + 8 * x + t, S_X + x, C_V + t))
    for t in range(4):
        a('v_add_u32 v%d, s%d, v%d' % (A_O + t, S_QS, C_O + t))
    a('s_cmp_lt_u32 s%d, %d' % (S_STEP, 4))
    a('s_cselect_b32 s60, s%d, 0' % S_NEG)
    a('s_cmp_lt_u32 s%d, %d' % (S_STEP, 3))
    a('s_cselect_b32 s61, s%d, 0' % S_NEG)
    for r in range(4):
        a('v_mov_b32 v%d, s60' % (V_S + r))
        a('v_mov_b32 v%d, s61' % (V_S + 4 + r))
    a('s_add_u32 s60, s%d, %d' % (S_STEP, NC))
    a('v_mov_b32 v13, s60')
    a('L_poll:')
    a('ds_read_b32 v%d, v%d' % (V_T0, V_FLAG))
    guard('L_poll')
    a('s_waitcnt lgkmcnt(0)')
    a('v_cmp_gt_i32 vcc, s%d, v%d' % (S_TH, V_T0))
    a('s_cbranch_vccnz L_poll')
    if safe:
        a('L_poll_x:')
    def fstamp(i):
        if fine:
            a('s_memtime s[%d:%d]' % (64 + 2 * i, 65 + 2 * i))

    fstamp(5)
    lds_q = []

    def lds(text, tag):
        a(text)
        lds_q.append(tag)

    def lwait(tags):
        last = max(i for i, t in enumerate(lds_q) if t in tags)
        a('s_waitcnt lgkmcnt(%d)' % (len(lds_q) - 1 - last))

    def kread(s, x):
        if x < 0:
            lds('ds_read_b128 v[%d:%d], v%d' % (R_Q + 4 * s, R_Q + 4 * s + 3, A_Q + s), ('Q', s))
        else:
            lds('ds_read_b128 v[%d:%d], v%d' % (R_K + 16 * x + 4 * s, R_K + 16 * x + 4 * s + 3, A_K + 4 * x + s), ('K', s, x))

    vreads = [(t, x) for t in range(8) for x in range(3)]

    def vread(n):
        for _ in range(n):
            t, x = vreads.pop(0)
            lds('ds_read_b64_tr_b16 v[%d:%d], v%d offset:4096' % (R_V + 6 * t + 2 * x, R_V + 6 * t + 2 * x + 1, A_V + 8 * x + t), ('V', t, x))

    def qk(s, x):
        d = 'v[%d:%d]' % (V_S + 4 * x, V_S + 4 * x + 3)
        c = '0' if (s == 0 and x == 2) else d
        a('v_mfma_f32_16x16x32_bf16 %s, v[%d:%d], v[%d:%d], %s' % (
            d, R_K + 16 * x + 4 * s, R_K + 16 * x + 4 * s + 3, R_Q + 4 * s, R_Q + 4 * s + 3, c))

    XO = (0, 2, 1)
    pend = [(s, x) for s in range(4) for x in (-1,) + XO]
    for _ in range(12):
        kread(*pend.pop(0))
    for s in range(4):
        for x in XO:
            lwait([('Q', s), ('K', s, x)])
            qk(s, x)
            if pend:
                kread(*pend.pop(0))
                if pend and pend[0][1] == XO[0]:
                    kread(*pend.pop(0))
    fstamp(6)
    SA, SB, SC = V_S, V_S + 4, V_S + 8
    a('s_add_u32 s%d, s%d, 4' % (S_TH, S_TH))
    a('ds_read_b32 v8, v%d' % V_FLAG)
    for r in range(4):
        a('v_cndmask_b32 v%d, v%d, v%d, s[%d:%d]' % (SA + r, SA + r, SC + r, S_MASK + 2 * r, S_MASK + 2 * r + 1))
    a('v_max3_f32 v%d, v%d, v%d, v%d' % (V_T2, SA, SA + 1, SA + 2))
    a('v_max3_f32 v%d, v%d, v%d, v%d' % (V_T3, SA + 3, SB, SB + 1))
    a('v_max3_f32 v%d, v%d, v%d, v%d' % (V_T2, V_T2, SB + 2, SB + 3))

    def xreduce(op, fill):
        a('%s v%d, v%d, v%d' % (op, V_T0, V_T2, V_T3))
        a('%s v%d, v%d, v%d' % (op, V_T1, V_T2, V_T3))
        fill()
        a('v_permlane32_swap_b32 v%d, v%d' % (V_T0, V_T1))
        a('%s v%d, v%d, v%d' % (op, V_T2, V_T0, V_T1))
        a('%s v%d, v%d, v%d' % (op, V_T3, V_T0, V_T1))
        fill()
        a('v_permlane16_swap_b32 v%d, v%d' % (V_T2, V_T3))
        a('%s v%d, v%d, v%d' % (op, V_T0, V_T2, V_T3))

    xreduce('v_max_f32', lambda: None)
    a('v_mul_f32 v%d, s%d, v%d' % (V_T0, S_C, V_T0))
    for r in range(8):
        a('v_fma_f32 v%d, v%d, s%d, -v%d' % (SA + r, SA + r, S_C, V_T0))
    for r in range(8):
        a('v_exp_f32 v%d, v%d' % (SA + r, SA + r))
        if r == 3:
            a('v_add_f32 v%d, v%d, v%d' % (V_T2, SA, SA + 1))
        if r == 4:
            a('v_add_f32 v%d, v%d, v%d' % (V_T3, SA + 2, SA + 3))
        if r == 6:
            a('v_add_f32 v%d, v%d, v%d' % (V_T2, V_T2, SA + 4))
            a('v_add_f32 v%d, v%d, v%d' % (V_T3, V_T3, SA + 5))
    a('L_poll2:')
    a('s_waitcnt lgkmcnt(0)')
    a('v_cmp_le_i32 vcc, s%d, v8' % S_TH)
    a('s_cbranch_vccnz L_poll2_x')
    a('ds_read_b32 v8, v%d' % V_FLAG)
    guard('L_poll2')
    a('s_branch L_poll2')
    a('L_poll2_x:')
    stamp(1)
    del lds_q[:]
    vreads[:] = [(t, 2) for t in range(4)] + [(t, x) for t in range(4) for x in (0, 1)] + \
                [(t, 2) for t in range(4, 8)] + [(t, x) for t in range(4, 8) for x in (0, 1)]
    vread(8)
    a('v_add_f32 v%d, v%d, v%d' % (V_T2, V_T2, SA + 6))
    a('v_add_f32 v%d, v%d, v%d' % (V_T3, V_T3, SA + 7))
    xreduce('v_add_f32', lambda: vread(2))
    a('v_rcp_f32 v%d, v%d' % (V_T0, V_T0))
    PA, PB, PC = V_P, V_P + 2, V_P + 4
    lwait([('V', 3, 2)])
    vread(2)
    for r in range(4):
        a('v_mul_f32 v%d, v%d, v%d' % (SA + r, SA + r, V_T0))
    vread(2)
    for w in range(2):
        a('v_cvt_pk_bf16_f32 v%d, v%d, v%d' % (PA + w, SA + 2 * w, SA + 2 * w + 1))
    for w, vm in ((0, V_M0), (1, V_M1)):
        a('v_and_b32 v%d, v%d, v%d' % (PC + w, PA + w, vm))
    fstamp(7)

    def pv16(t):
        a('v_mfma_f32_16x16x16_bf16 v[%d:%d], v[%d:%d], v[%d:%d], 0' % (
            V_O + 4 * t, V_O + 4 * t + 3, R_V + 6 * t + 4, R_V + 6 * t + 5, PC, PC + 1))

    def pv32(t):
        a('v_mfma_f32_16x16x32_bf16 v[%d:%d], v[%d:%d], v[%d:%d], v[%d:%d]' % (
            V_O + 4 * t, V_O + 4 * t + 3, R_V + 6 * t, R_V + 6 * t + 3, PA, PA + 3, V_O + 4 * t, V_O + 4 * t + 3))

    def cvt(t):
        a('v_cvt_pk_bf16_f32 v%d, v%d, v%d' % (R_OUT + 2 * t, V_O + 4 * t, V_O + 4 * t + 1))
        a('v_cvt_pk_bf16_f32 v%d, v%d, v%d' % (R_OUT + 2 * t + 1, V_O + 4 * t + 2, V_O + 4 * t + 3))

    def owr(t):
        a('ds_write_b64 v%d, v[%d:%d] offset:%d' % (A_O + (t & 3), R_OUT + 2 * t, R_OUT + 2 * t + 1, 128 * (t >> 2)))

    a('v_mul_f32 v%d, v%d, v%d' % (SB, SB, V_T0))
    a('v_mul_f32 v%d, v%d, v%d' % (SB + 1, SB + 1, V_T0))
    pv16(0)
    lwait([('V', 2, 1)])
    vread(2)
    a('v_mul_f32 v%d, v%d, v%d' % (SB + 2, SB + 2, V_T0))
    a('v_mul_f32 v%d, v%d, v%d' % (SB + 3, SB + 3, V_T0))
    pv16(1)
    vread(2)
    for w in range(2):
        a('v_cvt_pk_bf16_f32 v%d, v%d, v%d' % (PB + w, SB + 2 * w, SB + 2 * w + 1))
    pv16(2)
    vread(2)
    for w in range(2):
        a('v_xor_b32 v%d, v%d, v%d' % (PA + w, PA + w, PC + w))
    pv16(3)
    vread(2)
    assert not vreads
    lwait([('V', 7, 2)])
    pv32(0); pv16(4); pv32(1); pv16(5); pv32(2); pv16(6); pv32(3); pv16(7)
    a('s_waitcnt lgkmcnt(0)')
    a('s_addk_i32 s%d, %d' % (S_QS, NC * 4096))
    cvt(0); pv32(4); owr(0)
    cvt(1); pv32(5); owr(1)
    cvt(2); pv32(6); owr(2)
    cvt(3); pv32(7); owr(3)
    for t in range(4, 8):
        cvt(t); owr(t)
    fstamp(8)
    a('ds_write_b32 v15, v13')
    a('s_add_u32 s%d, s%d, %d' % (S_X, S_X, NC * 8192))
    a('s_cmp_ge_u32 s%d, %d' % (S_X, KVEND))
    a('s_cselect_b32 s60, %d, 0' % (NSLOT * 8192))
    a('s_sub_u32 s%d, s%d, s60' % (S_X, S_X))
    a('s_add_u32 s%d, s%d, 8' % (S_TH, S_TH))
    a('s_add_u32 s%d, s%d, %d' % (S_STEP, S_STEP, NC))
    a('s_cmp_lt_u32 s%d, %d' % (S_STEP, 18))
    a('s_cbranch_scc1 L_round')
    stamp(2)
    RB = R_K
    for n in range(4):
        a('ds_read_b128 v[%d:%d], v%d offset:%d' % (RB + 4 * n, RB + 4 * n + 3, V_LIN, 49152 + 1024 * n))
    if ctrig:
        wait_flag('L_ctrig', ctrig, ctmo)
    stamp(3)
    for n in range(4):
        if not ctrig:
            a('s_waitcnt lgkmcnt(%d)' % (3 - n))
        a('buffer_store_dwordx4 v[%d:%d], v%d, %s, s%d offen offset:%d%s' % (
            RB + 4 * n, RB + 4 * n + 3, V_ST0 + (n & 1), srd(S_O), S_QO, 1024 * n, st if stc is None else stc))
    fstamp(9)
    stamp(4)
    if fine:
        nst[0] = 10
    if diag:
        dump()
    a('L_end:')
    a('s_endpgm')
    dump_code()
    s, info = finish(a, NWG, 64 * (NC + 2), LDS)
    if pad:
        s = s.replace('.p2align 8\n.type', '.p2align 12\n.fill %d, 4, 0xbf800000\n.p2align 8\n.type' % (pad // 4))
    return s, info


if __name__ == '__main__':
    out = sys.argv[1]
    kw = {}
    for x in sys.argv[2:]:
        k, v = x.split('=')
        try:
            v = int(v)
        except ValueError:
            v = v.replace('+', ' ')
        kw[k] = v
    s, info = gen(**kw)
    open(out, 'w').write(s)
    print(out, info)
```

```python
import sys
import math
import struct
from asmlib import Asm, finish

NBYTES = 32 * 2048 * 128 * 2


def f32(x):
    return '0x%08x' % struct.unpack('<I', struct.pack('<f', x))[0]


def gen(D=32, xmap=3, alt=1, ld=' nt', ld_first=None, st=' sc1', trig=17, W=63, ctrig=17, ctmo=0, sched=1, fine=0, E2=18, G=4, De=0, par=0, topen=48, tbase=44, p2=1, padn=0, oob=0, roll=0, rv=0, al=-1, padodd=0, late2=0, thr=20, force=-1, rows=2, alc=0, sy=0, soft=0, softk=1, al2=-1, ka=0, slp=0, clk=0, trigodd=0, vmlog=0, stc=None, nsp=48, padto=52, padfrom=0, sync=0, lstamp=0, prio=3, safe=1,
        diag='', arole='L', aidx=0, aop='max', aref=-1, pad=0xd00, tmo=0, tmo_from=15):
    a = Asm()
    NWG = 256
    NC = 4
    NSLOT = 10 if rv & 8 else 11
    KV0 = 65536
    KVEND = KV0 + NSLOT * 8192
    FLAG = KVEND + 12
    LDS = KVEND + 256
    if ld_first is None:
        ld_first = ld
    RW = D - G
    OFFW = -(-RW // 4)
    OFFN = -(-(De - G) // 4) if De else OFFW
    assert OFFW <= 14
    S_Q, S_K, S_V, S_O = 12, 16, 20, 24
    srd = lambda b: 's[%d:%d]' % (b, b + 3)
    S_W, S_STR, S_KVO, S_QO, S_POS = 3, 37, 38, 39, 40
    V_FLAG = 1
    nst = [0]
    role = ['L']
    uid = [0]

    def stamp(idx=None):
        i = nst[0] if idx is None else idx
        if diag == 'stamp' or (diag == 'amp' and (i == 0 or (role[0] in arole and i in (aidx, aref)))):
            a('s_memrealtime s[%d:%d]' % (64 + 2 * i, 65 + 2 * i))
        nst[0] = max(nst[0], i + 1)

    def stamp_if(sreg, val, idx):
        if diag == 'stamp' or (diag == 'amp' and role[0] in arole and idx in (aidx, aref)):
            uid[0] += 1
            a('s_cmp_lg_u32 s%d, %d' % (sreg, val))
            a('s_cbranch_scc1 L_ns%d' % uid[0])
            stamp(idx)
            a('L_ns%d:' % uid[0])

    def spin(lab, ref, lim):
        a('%s:' % lab)
        a('s_memrealtime s[94:95]')
        a('s_waitcnt lgkmcnt(0)')
        a('s_sub_u32 s96, s94, %s' % ref)
        a('s_cmp_lt_u32 s96, %s' % lim)
        a('s_cbranch_scc1 %s' % lab)

    tails = []

    def dump():
        if diag == 'stamp' or (diag == 'amp' and role[0] in arole):
            if role[0] != 'L':
                a('s_waitcnt vmcnt(0)')
            stamp()
            a('s_branch L_dump')
        else:
            a('s_endpgm')

    def dump_code():
        if diag == 'amp':
            a('L_dump:')
            a('s_load_dwordx2 s[62:63], s[0:1], 32')
            a('s_waitcnt lgkmcnt(0)')
            spin('L_sp0', 's64', '2000')
            a('s_not_b32 s93, s64')
            if aref >= 0:
                a('s_sub_u32 s%d, s%d, s%d' % (64 + 2 * aidx, 64 + 2 * aidx, 64 + 2 * aref))
            a('s_and_b32 s92, s%d, 0xfffff' % (64 + 2 * aidx))
            a('v_mov_b32 v8, s93')
            a('v_mov_b32 v9, s%d' % (64 + 2 * aidx))
            a('v_mov_b32 v10, s92')
            a('v_not_b32 v11, v9')
            a('v_mov_b32 v12, 0')
            a('s_mov_b64 exec, 1')
            a('global_atomic_umax v12, v8, s[62:63]')
            a('global_atomic_umax v12, v9, s[62:63] offset:4')
            if len(arole) == 1:
                a('global_atomic_add v12, v10, s[62:63] offset:8')
                a('global_atomic_umax v12, v11, s[62:63] offset:12')
            a('s_mov_b64 exec, -1')
            a('s_waitcnt vmcnt(0)')
            spin('L_sp1', 's64', '4500' if len(arole) == 1 else '7500')
            a('global_load_dwordx4 v[8:11], v12, s[62:63] sc1')
            a('s_waitcnt vmcnt(0)')
            a('v_readfirstlane_b32 s93, v8')
            a('v_readfirstlane_b32 s97, v9')
            a('v_readfirstlane_b32 s98, v10')
            a('v_readfirstlane_b32 s99, v11')
            a('s_not_b32 s93, s93')
            if aref >= 0:
                if aop == 'avg':
                    a('s_lshr_b32 s97, s98, 8')
                elif aop == 'min':
                    a('s_not_b32 s97, s99')
            elif aop == 'max':
                a('s_sub_u32 s97, s97, s93')
            elif aop == 'min':
                a('s_not_b32 s99, s99')
                a('s_sub_u32 s97, s99, s93')
            else:
                a('s_lshr_b32 s98, s98, 8')
                a('s_and_b32 s97, s93, 0xfffff')
                a('s_sub_u32 s97, s98, s97')
            a('s_min_u32 s97, s97, 3000')
            a('s_mul_i32 s97, s97, 10')
            a('s_add_u32 s97, s97, %d' % (5000 if len(arole) == 1 else 8000))
            spin('L_sp2', 's93', 's97')
            a('s_endpgm')
        if diag == 'stamp':
            a('L_dump:')
            a('s_load_dwordx2 s[62:63], s[0:1], 40')
            a('s_getreg_b32 s60, hwreg(HW_REG_XCC_ID)')
            a('s_waitcnt lgkmcnt(0)')
            spin('L_sp0', 's64', '2000')
            a('v_mov_b32 v5, 0')
            for i in range(12):
                a('v_writelane_b32 v5, s%d, %d' % (64 + 2 * i, i))
            a('v_writelane_b32 v5, s60, 30')
            a('v_writelane_b32 v5, s%d, 31' % S_W)
            a('s_lshl_b32 s61, s2, 3')
            a('s_add_u32 s61, s61, s%d' % S_W)
            a('s_lshl_b32 s61, s61, 8')
            a('v_lshl_add_u32 v6, v0, 2, s61')
            a('global_store_dword v6, v5, s[62:63]')
            a('s_endpgm')

    def guard(lab):
        if slp:
            a('s_sleep %d' % slp)
        if safe:
            a('s_add_u32 s56, s56, 1')
            a('s_cmp_ge_u32 s56, 0x20000')
            a('s_cbranch_scc1 %s_x' % lab)

    def wait_flag(lab, what, limit=0):
        if limit:
            a('s_mov_b32 s46, %d' % limit)
        a('%s:' % lab)
        if what >= 100:
            a('ds_read_b128 v[8:11], v%d offset:4' % V_FLAG)
        else:
            a('ds_read_b32 v8, v%d' % V_FLAG)
        if limit:
            a('s_sub_u32 s46, s46, 1')
            a('s_cbranch_scc1 %s_x' % lab)
        else:
            guard(lab)
        a('s_waitcnt lgkmcnt(0)')
        if what >= 100:
            a('v_min3_i32 v8, v8, v9, v10')
            a('v_min_i32 v8, v8, v11')
            a('v_cmp_ge_i32 vcc, %d, v8' % (what - 100))
        else:
            a('v_cmp_gt_i32 vcc, %d, v8' % what)
        a('s_cbranch_vccnz %s' % lab)
        if safe or limit:
            a('%s_x:' % lab)

    stamp()
    if ka == 0:
        a('s_load_dwordx2 s[%d:%d], s[0:1], 8' % (S_K, S_K + 1))
        a('s_load_dwordx2 s[%d:%d], s[0:1], 16' % (S_V, S_V + 1))
        a('s_load_dwordx2 s[%d:%d], s[0:1], 0' % (S_Q, S_Q + 1))
        a('s_load_dwordx2 s[%d:%d], s[0:1], 24' % (S_O, S_O + 1))
    else:
        a('s_load_dwordx8 s[4:11], s[0:1], 0')
    a('s_cmp_ge_u32 s2, %d' % NWG)
    a('s_cbranch_scc1 L_end')
    a('v_lshrrev_b32 v5, 6, v0')
    a('v_and_b32 v0, 63, v0')
    a('v_readfirstlane_b32 s%d, v5' % S_W)
    a('v_mov_b32 v%d, %d' % (V_FLAG, FLAG))
    a('v_lshl_add_u32 v15, v5, 2, v%d' % V_FLAG)
    a('v_add_u32 v5, 1, v5')
    a('ds_write_b32 v15, v5')
    if safe:
        a('s_mov_b32 s56, 0')
    if xmap == 1:
        a('s_and_b32 s60, s2, 7')
        a('s_lshr_b32 s61, s2, 3')
        a('s_lshl_b32 s60, s60, 5')
        a('s_add_u32 s2, s60, s61')
    elif xmap == 3:
        a('s_bfe_u32 s60, s2, 0x40003')
        a('s_and_b32 s61, s2, 1')
        a('s_lshl4_add_u32 s60, s61, s60')
        a('s_lshr_b32 s61, s2, 7')
        a('s_and_b32 s2, s2, 6')
        a('s_or_b32 s2, s2, s61')
        a('s_lshl_b32 s2, s2, 5')
        a('s_or_b32 s2, s2, s60')
    elif xmap in (4, 5, 6):
        tab = {4: (0, 1, 4, 5), 5: (0, 0, 0, 0), 6: (0, 3, 5, 6)}[xmap]
        a('s_lshr_b32 s60, s2, 6')
        a('s_lshl_b32 s60, s60, 2')
        a('s_lshr_b32 s60, 0x%x, s60' % sum(v << (4 * k) for k, v in enumerate(tab)))
        a('s_xor_b32 s60, s60, s2')
        a('s_and_b32 s60, s60, 7')
        a('s_bfe_u32 s61, s2, 0x30003')
        a('s_and_b32 s2, s2, 0xc0')
        a('s_or_b32 s2, s2, s61')
        a('s_lshl3_add_u32 s2, s60, s2')
    elif xmap == 7:
        a('s_and_b32 s60, s2, 7')
        a('s_bfe_u32 s61, s2, 0x10003')
        a('s_lshl1_add_u32 s60, s60, s61')
        a('s_and_b32 s2, s2, 0xf0')
        a('s_or_b32 s2, s2, s60')
    a('s_lshl_b32 s%d, s2, 16' % S_QO)
    a('s_movk_i32 s%d, 4096' % S_STR)
    a('s_movk_i32 s61, -8192')
    a('s_and_b32 s60, s2, %d' % (1 if alt else 0))
    a('s_cmovk_i32 s%d, -4096' % S_STR)
    a('s_cselect_b32 s60, %d, 0' % (15 * 4096))
    a('s_cselect_b32 s61, s60, s61')
    a('s_cselect_b64 s[42:43], -1, 0')
    a('s_add_u32 s%d, s%d, s61' % (S_KVO, S_QO))
    a('s_add_u32 s%d, s%d, s60' % (S_QO, S_QO))
    a('v_lshrrev_b32 v6, 4, v0')
    a('v_and_b32 v7, 15, v0')
    a('s_mov_b32 s%d, %d' % (S_Q + 2, 0 if oob else NBYTES))
    a('s_mov_b32 s%d, 0x20000' % (S_Q + 3))
    a('s_mov_b64 s[%d:%d], s[%d:%d]' % (S_O + 2, S_O + 3, S_Q + 2, S_Q + 3))
    a('v_lshlrev_b32 v5, 1, v6')
    a('v_xor_b32 v5, v5, v7')
    a('v_lshlrev_b32 v5, 4, v5')
    a('v_lshl_add_u32 v2, v6, 8, v5')
    a('v_xor_b32 v3, 128, v2')
    a('s_add_u32 s45, s%d, s%d' % (S_KVO, S_STR))
    a('s_and_b32 s%d, s2, 7' % S_POS)
    a('s_cselect_b32 s44, s%d, 0' % S_KVO)
    a('s_cselect_b32 s45, s45, 0')
    a('s_cselect_b32 s%d, s%d, 0' % (S_K + 2, S_Q + 2))
    a('s_mov_b32 s%d, 0x20000' % (S_K + 3))
    a('s_mov_b64 s[%d:%d], s[%d:%d]' % (S_V + 2, S_V + 3, S_K + 2, S_K + 3))
    a('s_mov_b32 m0, %d' % KV0)
    a('s_cmp_lg_u32 s%d, 0' % S_W)
    a('s_waitcnt lgkmcnt(0)')
    if ka:
        a('s_mov_b64 s[%d:%d], s[6:7]' % (S_K, S_K + 1))
    a('s_cbranch_scc1 L_other')

    stamp()

    if clk:
        a('s_memtime s[80:81]')

    def dma(i, r, so, fl):
        a('buffer_load_dwordx4 v%d, %s, s%d offen offset:%d%s lds' % (2 + (i & 1), srd(r), so, i * 1024, fl))

    S_N, S_STEPL, S_OPEN, S_T = 52, 53, 54, 55
    fill = ['s_setprio %d' % prio, 's_mov_b32 s46, s%d' % S_QO, 's_mov_b32 s47, 0']
    if ka:
        fill[0] = 's_mov_b64 s[%d:%d], s[8:9]' % (S_V, S_V + 1)
        fill[1] += '\ns_setprio %d' % prio
        fill[2] += '\ns_mov_b64 s[%d:%d], s[4:5]' % (S_Q, S_Q + 1)
    for n in range(4):
        for i in range(4):
            dma(i, S_V if n & 1 else S_K, 44 + (n >> 1), ld_first)
        if n < 3:
            a('s_addk_i32 m0, 4096')
            a(fill[n])
    a('s_lshl1_add_u32 s48, s%d, s%d' % (S_STR, S_KVO))
    a('s_mov_b32 s50, s48')
    a('s_mov_b32 s49, %d' % (KV0 + 2 * 8192))
    a('s_add_u32 s51, s49, 4096')
    a('s_mov_b32 s%d, 4' % S_N)
    a('s_movk_i32 s%d, 4096' % S_STEPL)
    if De:
        a('s_getreg_b32 s%d, hwreg(HW_REG_XCC_ID, 0, 1)' % S_OPEN)
        a('s_cmp_eq_u32 s%d, %d' % (S_OPEN, par))
        a('s_cselect_b32 s%d, %d, 0' % (S_OPEN, topen))
    a('v_mov_b32 v4, 0')
    if rv & 2:
        a('s_movk_i32 s58, 128')
        a('v_mov_b32 v5, 1024')
    a('s_mov_b32 s57, 0')
    if padodd:
        a('s_getreg_b32 s59, hwreg(HW_REG_XCC_ID, 0, 1)')
        a('s_cmp_eq_u32 s59, 0')
        a('s_cselect_b32 s59, %d, %d' % (padto, padodd))
    a('s_barrier')
    if al >= 0:
        a('s_branch L_ld')
        a('.p2align 6')
        if al:
            a('.fill %d, 4, 0xbf800000' % al)

    def throttle(j):
        a('s_waitcnt vmcnt(%d)' % RW)
        if De:
            a('s_cmp_ge_u32 s%d, s%d' % (S_N, S_OPEN))
            if j == 0:
                a('s_cselect_b32 s%d, %d, %d' % (S_T, OFFW, OFFN))
            a('s_cbranch_scc1 L_nw%d' % j)
            a('s_waitcnt vmcnt(%d)' % (De - G))
            a('L_nw%d:' % j)

    cmpv = thr if force < 0 else force
    a('L_ld:')
    a('s_getreg_b32 s60, hwreg(HW_REG_IB_STS, 0, 24)')
    a('s_mov_b32 m0, s47')
    a('s_and_b32 s60, s60, 0xc0000f')
    a('s_cmp_ge_u32 s60, 0x%x' % ((cmpv & 15) | ((cmpv >> 4) << 22) | (0x30 if cmpv == 0 else 0) * 0) if cmpv else 's_cmp_lg_u32 s60, 0x400400')
    a('s_cbranch_scc1 L_busy')
    a('s_waitcnt vmcnt(%d)' % thr)
    a('s_sub_u32 s%d, s%d, %d' % (S_T, S_N, -(-thr // 4)))
    a('L_pub:')
    a('v_max_i32 v4, s%d, v4' % S_T)
    a('ds_write_b32 v%d, v4' % V_FLAG)
    if not sy:
        a('ds_read_b128 v[8:11], v%d offset:4' % V_FLAG)
    a('s_cmp_ge_u32 s%d, %d' % (S_N, padto))
    a('s_cbranch_scc1 L_fast')
    if sy:
        a('L_free:')
        a('ds_read_b128 v[8:11], v%d offset:4' % V_FLAG)
        guard('L_free')
        a('s_waitcnt lgkmcnt(0)')
        a('v_min3_i32 v8, v8, v9, v10')
        a('v_min_i32 v8, v8, v11')
        a('v_cmp_ge_i32 vcc, s57, v8')
        a('s_cbranch_vccnz L_free')
        if safe:
            a('L_free_x:')
    if rows == 4:
        a('L_fast:')
        for i in range(4):
            dma(i, S_Q, 46, ld)
    elif rows == 2:
        a('s_mov_b32 s59, s46')
        a('L_row:')
        if rv & 1:
            a('s_waitcnt vmcnt(%d)' % (RW + 2))
        dma(0, S_Q, 59, ld)
        dma(1, S_Q, 59, ld)
        a('s_addk_i32 s59, 2048')
        a('s_addk_i32 m0, 2048')
        a('s_bitcmp1_b32 m0, 11')
        a('s_cbranch_scc1 L_row')
    else:
        a('L_row:')
        if rv & 1:
            a('s_waitcnt vmcnt(%d)' % (RW + 3))
        a('buffer_load_dwordx4 v2, %s, s46 offen%s lds' % (srd(S_Q), ld))
        a('v_xad_u32 v2, v2, s58, v5')
        a('s_addk_i32 m0, 1024')
        if rows == 1:
            a('s_and_b32 s60, m0, 4095')
            a('s_cbranch_scc1 L_row')
        else:
            a('s_bitcmp0_b32 m0, 11')
            a('s_cbranch_scc1 L_row')
            a('buffer_load_dwordx4 v2, %s, s46 offen%s lds' % (srd(S_Q), ld))
            a('v_xad_u32 v2, v2, s58, v5')
            a('s_addk_i32 m0, 1024')
            a('buffer_load_dwordx4 v2, %s, s46 offen%s lds' % (srd(S_Q), ld))
        a('v_xor_b32 v2, s58, v3')
    a('L_next:')
    a('s_add_u32 s46, s46, s%d' % S_STR)
    a('s_add_u32 s47, s47, s%d' % S_STEPL)

    def wrap():
        a('s_cmp_ge_u32 s47, %d' % KVEND)
        a('s_cselect_b32 s60, %d, 0' % (NSLOT * 8192))
        a('s_sub_u32 s47, s47, s60')

    if rv & 16:
        wrap()
    a('s_add_u32 s%d, s%d, 1' % (S_N, S_N))
    a('s_and_b32 s60, s%d, 3' % S_N)
    a('s_cbranch_scc1 L_ld')
    if not rv & 16:
        wrap()
    if clk:
        a('s_cmp_lg_u32 s%d, 44' % S_N)
        a('s_cbranch_scc1 L_nclk')
        a('s_memtime s[82:83]')
        stamp(5)
        a('L_nclk:')
    for x, y, z in ((S_Q, S_K, S_V), (46, 48, 50)):
        a('s_mov_b64 s[60:61], s[%d:%d]' % (x, x + 1))
        a('s_mov_b64 s[%d:%d], s[%d:%d]' % (x, x + 1, y, y + 1))
        a('s_mov_b64 s[%d:%d], s[%d:%d]' % (y, y + 1, z, z + 1))
        a('s_mov_b64 s[%d:%d], s[60:61]' % (z, z + 1))
    a('s_movk_i32 s%d, 4096' % S_STEPL)
    a('s_cmp_ge_u32 s47, %d' % KV0)
    a('s_cmovk_i32 s%d, 8192' % S_STEPL)
    a('s_cmp_ge_u32 s%d, %d' % (S_N, 40 if sy else 44))
    a('s_cselect_b32 s57, 9, 5')
    a('s_cmp_lt_u32 s%d, 32' % S_N)
    a('s_cmov_b32 s57, 0')
    if sy:
        assert padto == 44
        a('s_cmp_lg_u32 s%d, 52' % S_N)
        a('s_cbranch_scc1 L_ld')
        a('s_branch L_drain')
    else:
        a('s_cmp_eq_u32 s%d, 52' % S_N)
        a('s_cbranch_scc1 L_drain')
        a('L_free:')
        a('s_waitcnt lgkmcnt(0)')
        a('v_min3_i32 v8, v8, v9, v10')
        a('v_min_i32 v8, v8, v11')
        a('v_cmp_lt_i32 vcc, s57, v8')
        a('s_cbranch_vccnz L_ld')
        a('ds_read_b128 v[8:11], v%d offset:4' % V_FLAG)
        if safe:
            a('s_add_u32 s56, s56, 1')
            a('s_cmp_ge_u32 s56, 0x20000')
            a('s_cbranch_scc1 L_ld')
        a('s_branch L_free')
    if rows != 4:
        a('L_fast:')
        for i in range(4):
            dma(i, S_Q, 46, ld)
        a('s_branch L_next')
    a('.p2align 5')
    if alc:
        a('.fill %d, 4, 0xbf800000' % alc)
    a('L_busy:')
    a('s_waitcnt vmcnt(%d)' % RW)
    a('s_sub_u32 s%d, s%d, %d' % (S_T, S_N, OFFW))
    a('s_branch L_pub')
    a('L_drain:')
    stamp(6)
    for left in range(OFFW, -1, -1):
        a('v_max_i32 v4, %d, v4' % (52 - left))
        a('s_waitcnt vmcnt(%d)' % (4 * left))
        a('ds_write_b32 v%d, v4' % V_FLAG)
    nst[0] = 7
    dump()

    role[0] = 'C'
    nst[0] = 1
    a('L_other:')
    a('s_barrier')
    if ka:
        a('s_mov_b64 s[%d:%d], s[10:11]' % (S_O, S_O + 1))
    V_LIN, V_ST0, V_ST1 = 2, 3, 4
    a('v_xor_b32 v5, v7, v6')
    a('v_lshlrev_b32 v5, 4, v5')
    a('v_lshl_add_u32 v%d, v6, 8, v5' % V_ST0)
    a('v_xor_b32 v%d, 64, v%d' % (V_ST1, V_ST0))
    a('s_cmp_le_u32 s%d, %d' % (S_W, NC))
    a('s_cbranch_scc1 L_consumer')
    role[0] = 'S'
    a('v_lshlrev_b32 v%d, 4, v0' % V_LIN)
    def sread(r):
        wait_flag('L_sr%d' % r, 100 + 5 + 4 * r)
        for n in range(16 * r, 16 * r + 16):
            if n % 16 == 14:
                a('s_waitcnt lgkmcnt(6)')
            a('ds_read_b128 v[%d:%d], v%d offset:%d' % (16 + 4 * n, 19 + 4 * n, V_LIN, 1024 * n))

    for r in range(2 if late2 else 3):
        sread(r)
    stamp(1)
    if tbase:
        wait_flag('L_sbase', tbase)
    stamp(2)
    if trigodd:
        a('s_getreg_b32 s59, hwreg(HW_REG_XCC_ID, 0, 1)')
        a('s_cmp_eq_u32 s59, 0')
        a('s_cselect_b32 s59, %d, %d' % (trig, trigodd))
        a('L_strig:')
        a('ds_read_b32 v8, v%d' % V_FLAG)
        a('s_waitcnt lgkmcnt(0)')
        a('v_cmp_gt_i32 vcc, s59, v8')
        a('s_cbranch_vccnz L_strig')
    else:
        wait_flag('L_strig', trig, tmo)
    stamp(3)
    for n in range(48):
        if late2 and n == 32:
            sread(2)
        if late2 and n in (40, 44):
            a('s_waitcnt lgkmcnt(%d)' % (44 - n))
        a('buffer_store_dwordx4 v[%d:%d], v%d, %s, s%d offen offset:%d%s' % (
            16 + 4 * n, 19 + 4 * n, V_ST0 + (n & 1), srd(S_O), S_QO, 1024 * (n & 3), st if n < nsp else stc))
        if n & 3 == 3 and n < 47:
            a('s_add_u32 s%d, s%d, s%d' % (S_QO, S_QO, S_STR))
    stamp(4)
    dump()
    role[0] = 'C'
    nst[0] = 1
    a('L_consumer:')
    S_STEP, S_X, S_Y, S_Z, S_QS, S_C, S_NEG, S_TH = 44, 45, 46, 47, 48, 51, 52, 53
    S_MASK = 28
    V_M0, V_M1, V_T0, V_T1, V_T2, V_T3 = 5, 6, 10, 11, 12, 14
    C_K, C_V, C_O = 16, 20, 28
    A_Q, A_K, A_V, A_O = 32, 36, 48, 72
    R_Q, R_K, R_V = 76, 92, 140
    V_S, V_P, V_O = 188, 200, 208
    R_OUT = R_Q
    a('v_and_b32 v13, 7, v7')
    a('v_lshlrev_b32 v5, 1, v13')
    a('v_xor_b32 v5, v5, v6')
    a('v_lshlrev_b32 v5, 4, v5')
    a('v_lshl_add_u32 v%d, v7, 8, v5' % C_K)
    a('v_xor_b32 v%d, 64, v%d' % (C_K + 1, C_K))
    a('v_xor_b32 v%d, 128, v%d' % (C_K + 2, C_K))
    a('v_xor_b32 v%d, 64, v%d' % (C_K + 3, C_K + 2))
    a('v_lshrrev_b32 v14, 2, v0')
    a('v_and_b32 v5, 7, v14')
    a('v_lshlrev_b32 v5, 5, v5')
    a('v_lshl_add_u32 v5, v14, 8, v5')
    a('v_and_b32 v14, 3, v0')
    a('v_lshl_add_u32 v%d, v14, 3, v5' % C_V)
    a('v_xor_b32 v%d, 128, v%d' % (C_V + 4, C_V))
    for t in (0, 4):
        a('v_xor_b32 v%d, 64, v%d' % (C_V + t + 2, C_V + t))
    for t in (0, 2, 4, 6):
        a('v_xor_b32 v%d, 32, v%d' % (C_V + t + 1, C_V + t))
    a('v_lshrrev_b32 v5, 1, v6')
    a('v_xor_b32 v5, v5, v13')
    a('v_lshlrev_b32 v5, 4, v5')
    a('v_lshl_add_u32 v5, v7, 8, v5')
    a('v_and_b32 v14, 1, v6')
    a('v_lshl_add_u32 v%d, v14, 3, v5' % C_O)
    a('v_xor_b32 v%d, 64, v%d' % (C_O + 2, C_O))
    for t in (0, 2):
        a('v_xor_b32 v%d, 32, v%d' % (C_O + t + 1, C_O + t))
    a('v_lshlrev_b32 v13, 2, v6')
    a('v_sub_u32 v13, v7, v13')
    for r in range(4):
        a('v_cmp_le_i32 vcc, %d, v13' % r)
        a('s_xor_b64 s[%d:%d], vcc, s[42:43]' % (S_MASK + 2 * r, S_MASK + 2 * r + 1))
    a('v_mov_b32 v13, 0xffff')
    for w, vm in ((0, V_M0), (1, V_M1)):
        a('v_cndmask_b32 v10, 0, v13, s[%d:%d]' % (S_MASK + 4 * w, S_MASK + 4 * w + 1))
        a('v_cndmask_b32 v14, 0, v13, s[%d:%d]' % (S_MASK + 4 * w + 2, S_MASK + 4 * w + 3))
        a('v_lshl_or_b32 v%d, v14, 16, v10' % vm)
    a('s_mov_b32 s%d, %s' % (S_C, f32(math.log2(math.e) / math.sqrt(128.0))))
    a('s_cmp_eq_u32 s%d, 0' % S_POS)
    a('s_cselect_b32 s%d, %s, 0' % (S_NEG, f32(-1e30)))
    a('s_sub_u32 s60, s%d, 1' % S_W)
    a('s_add_u32 s%d, s60, 2' % S_STEP)
    a('s_add_u32 s%d, s60, 9' % S_TH)
    a('s_lshl_b32 s%d, s60, 12' % S_QS)
    a('s_lshl_b32 s61, s60, 13')
    a('s_add_u32 s%d, s61, %d' % (S_X, KV0))
    a('v_lshl_add_u32 v%d, v0, 4, s%d' % (V_LIN, S_QS))
    a('s_add_u32 s60, s60, 12')
    a('s_mul_i32 s61, s60, s%d' % S_STR)
    a('s_add_u32 s%d, s%d, s61' % (S_QO, S_QO))

    a('L_round:')
    for x in (1, 2):
        a('s_add_u32 s%d, s%d, 8192' % (S_X + x, S_X + x - 1))
        a('s_cmp_eq_u32 s%d, %d' % (S_X + x, KVEND))
        a('s_cmov_b32 s%d, %d' % (S_X + x, KV0))
    for s in range(4):
        a('v_add_u32 v%d, s%d, v%d' % (A_Q + s, S_QS, C_K + s))
        for x in range(3):
            a('v_add_u32 v%d, s%d, v%d' % (A_K + 4 * x + s, S_X + x, C_K + s))
    for t in range(8):
        for x in range(3):
            a('v_add_u32 v%d, s%d, v%d' % (A_V + 8 * x + t, S_X + x, C_V + t))
    for t in range(4):
        a('v_add_u32 v%d, s%d, v%d' % (A_O + t, S_QS, C_O + t))
    a('s_cmp_lt_u32 s%d, %d' % (S_STEP, 4))
    a('s_cselect_b32 s60, s%d, 0' % S_NEG)
    a('s_cmp_lt_u32 s%d, %d' % (S_STEP, 3))
    a('s_cselect_b32 s61, s%d, 0' % S_NEG)
    for r in range(4):
        a('v_mov_b32 v%d, s60' % (V_S + r))
        a('v_mov_b32 v%d, s61' % (V_S + 4 + r))
    a('s_add_u32 s60, s%d, %d' % (S_STEP, NC))
    a('v_mov_b32 v13, s60')
    a('L_poll:')
    a('ds_read_b32 v%d, v%d' % (V_T0, V_FLAG))
    guard('L_poll')
    a('s_waitcnt lgkmcnt(0)')
    a('v_cmp_gt_i32 vcc, s%d, v%d' % (S_TH, V_T0))
    a('s_cbranch_vccnz L_poll')
    if safe:
        a('L_poll_x:')
    def fstamp(i):
        if fine:
            a('s_memtime s[%d:%d]' % (64 + 2 * i, 65 + 2 * i))

    fstamp(5)
    lds_q = []

    def lds(text, tag):
        a(text)
        lds_q.append(tag)

    def lwait(tags):
        last = max(i for i, t in enumerate(lds_q) if t in tags)
        a('s_waitcnt lgkmcnt(%d)' % (len(lds_q) - 1 - last))

    def kread(s, x):
        if x < 0:
            lds('ds_read_b128 v[%d:%d], v%d' % (R_Q + 4 * s, R_Q + 4 * s + 3, A_Q + s), ('Q', s))
        else:
            lds('ds_read_b128 v[%d:%d], v%d' % (R_K + 16 * x + 4 * s, R_K + 16 * x + 4 * s + 3, A_K + 4 * x + s), ('K', s, x))

    vreads = [(t, x) for t in range(8) for x in range(3)]

    def vread(n):
        for _ in range(n):
            t, x = vreads.pop(0)
            lds('ds_read_b64_tr_b16 v[%d:%d], v%d offset:4096' % (R_V + 6 * t + 2 * x, R_V + 6 * t + 2 * x + 1, A_V + 8 * x + t), ('V', t, x))

    def qk(s, x):
        d = 'v[%d:%d]' % (V_S + 4 * x, V_S + 4 * x + 3)
        c = '0' if (s == 0 and x == 2) else d
        a('v_mfma_f32_16x16x32_bf16 %s, v[%d:%d], v[%d:%d], %s' % (
            d, R_K + 16 * x + 4 * s, R_K + 16 * x + 4 * s + 3, R_Q + 4 * s, R_Q + 4 * s + 3, c))

    XO = (0, 2, 1)
    pend = [(s, x) for s in range(4) for x in (-1,) + XO]
    for _ in range(12):
        kread(*pend.pop(0))
    for s in range(4):
        for x in XO:
            lwait([('Q', s), ('K', s, x)])
            qk(s, x)
            if pend:
                kread(*pend.pop(0))
                if pend and pend[0][1] == XO[0]:
                    kread(*pend.pop(0))
    fstamp(6)
    SA, SB, SC = V_S, V_S + 4, V_S + 8
    a('s_add_u32 s%d, s%d, 4' % (S_TH, S_TH))
    a('ds_read_b32 v8, v%d' % V_FLAG)
    for r in range(4):
        a('v_cndmask_b32 v%d, v%d, v%d, s[%d:%d]' % (SA + r, SA + r, SC + r, S_MASK + 2 * r, S_MASK + 2 * r + 1))
    a('v_max3_f32 v%d, v%d, v%d, v%d' % (V_T2, SA, SA + 1, SA + 2))
    a('v_max3_f32 v%d, v%d, v%d, v%d' % (V_T3, SA + 3, SB, SB + 1))
    a('v_max3_f32 v%d, v%d, v%d, v%d' % (V_T2, V_T2, SB + 2, SB + 3))

    def xreduce(op, fill):
        a('%s v%d, v%d, v%d' % (op, V_T0, V_T2, V_T3))
        a('%s v%d, v%d, v%d' % (op, V_T1, V_T2, V_T3))
        fill()
        a('v_permlane32_swap_b32 v%d, v%d' % (V_T0, V_T1))
        a('%s v%d, v%d, v%d' % (op, V_T2, V_T0, V_T1))
        a('%s v%d, v%d, v%d' % (op, V_T3, V_T0, V_T1))
        fill()
        a('v_permlane16_swap_b32 v%d, v%d' % (V_T2, V_T3))
        a('%s v%d, v%d, v%d' % (op, V_T0, V_T2, V_T3))

    xreduce('v_max_f32', lambda: None)
    a('v_mul_f32 v%d, s%d, v%d' % (V_T0, S_C, V_T0))
    for r in range(8):
        a('v_fma_f32 v%d, v%d, s%d, -v%d' % (SA + r, SA + r, S_C, V_T0))
    for r in range(8):
        a('v_exp_f32 v%d, v%d' % (SA + r, SA + r))
        if r == 3:
            a('v_add_f32 v%d, v%d, v%d' % (V_T2, SA, SA + 1))
        if r == 4:
            a('v_add_f32 v%d, v%d, v%d' % (V_T3, SA + 2, SA + 3))
        if r == 6:
            a('v_add_f32 v%d, v%d, v%d' % (V_T2, V_T2, SA + 4))
            a('v_add_f32 v%d, v%d, v%d' % (V_T3, V_T3, SA + 5))
    a('L_poll2:')
    a('s_waitcnt lgkmcnt(0)')
    a('v_cmp_le_i32 vcc, s%d, v8' % S_TH)
    a('s_cbranch_vccnz L_poll2_x')
    a('ds_read_b32 v8, v%d' % V_FLAG)
    guard('L_poll2')
    a('s_branch L_poll2')
    a('L_poll2_x:')
    stamp(1)
    del lds_q[:]
    vreads[:] = [(t, 2) for t in range(4)] + [(t, x) for t in range(4) for x in (0, 1)] + \
                [(t, 2) for t in range(4, 8)] + [(t, x) for t in range(4, 8) for x in (0, 1)]
    vread(8)
    a('v_add_f32 v%d, v%d, v%d' % (V_T2, V_T2, SA + 6))
    a('v_add_f32 v%d, v%d, v%d' % (V_T3, V_T3, SA + 7))
    xreduce('v_add_f32', lambda: vread(2))
    a('v_rcp_f32 v%d, v%d' % (V_T0, V_T0))
    PA, PB, PC = V_P, V_P + 2, V_P + 4
    lwait([('V', 3, 2)])
    vread(2)
    for r in range(4):
        a('v_mul_f32 v%d, v%d, v%d' % (SA + r, SA + r, V_T0))
    vread(2)
    for w in range(2):
        a('v_cvt_pk_bf16_f32 v%d, v%d, v%d' % (PA + w, SA + 2 * w, SA + 2 * w + 1))
    for w, vm in ((0, V_M0), (1, V_M1)):
        a('v_and_b32 v%d, v%d, v%d' % (PC + w, PA + w, vm))
    fstamp(7)

    def pv16(t):
        a('v_mfma_f32_16x16x16_bf16 v[%d:%d], v[%d:%d], v[%d:%d], 0' % (
            V_O + 4 * t, V_O + 4 * t + 3, R_V + 6 * t + 4, R_V + 6 * t + 5, PC, PC + 1))

    def pv32(t):
        a('v_mfma_f32_16x16x32_bf16 v[%d:%d], v[%d:%d], v[%d:%d], v[%d:%d]' % (
            V_O + 4 * t, V_O + 4 * t + 3, R_V + 6 * t, R_V + 6 * t + 3, PA, PA + 3, V_O + 4 * t, V_O + 4 * t + 3))

    def cvt(t):
        a('v_cvt_pk_bf16_f32 v%d, v%d, v%d' % (R_OUT + 2 * t, V_O + 4 * t, V_O + 4 * t + 1))
        a('v_cvt_pk_bf16_f32 v%d, v%d, v%d' % (R_OUT + 2 * t + 1, V_O + 4 * t + 2, V_O + 4 * t + 3))

    def owr(t):
        a('ds_write_b64 v%d, v[%d:%d] offset:%d' % (A_O + (t & 3), R_OUT + 2 * t, R_OUT + 2 * t + 1, 128 * (t >> 2)))

    a('v_mul_f32 v%d, v%d, v%d' % (SB, SB, V_T0))
    a('v_mul_f32 v%d, v%d, v%d' % (SB + 1, SB + 1, V_T0))
    pv16(0)
    lwait([('V', 2, 1)])
    vread(2)
    a('v_mul_f32 v%d, v%d, v%d' % (SB + 2, SB + 2, V_T0))
    a('v_mul_f32 v%d, v%d, v%d' % (SB + 3, SB + 3, V_T0))
    pv16(1)
    vread(2)
    for w in range(2):
        a('v_cvt_pk_bf16_f32 v%d, v%d, v%d' % (PB + w, SB + 2 * w, SB + 2 * w + 1))
    pv16(2)
    vread(2)
    for w in range(2):
        a('v_xor_b32 v%d, v%d, v%d' % (PA + w, PA + w, PC + w))
    pv16(3)
    vread(2)
    assert not vreads
    lwait([('V', 7, 2)])
    pv32(0); pv16(4); pv32(1); pv16(5); pv32(2); pv16(6); pv32(3); pv16(7)
    a('s_waitcnt lgkmcnt(0)')
    a('s_addk_i32 s%d, %d' % (S_QS, NC * 4096))
    cvt(0); pv32(4); owr(0)
    cvt(1); pv32(5); owr(1)
    cvt(2); pv32(6); owr(2)
    cvt(3); pv32(7); owr(3)
    for t in range(4, 8):
        cvt(t); owr(t)
    fstamp(8)
    a('ds_write_b32 v15, v13')
    a('s_add_u32 s%d, s%d, %d' % (S_X, S_X, NC * 8192))
    a('s_cmp_ge_u32 s%d, %d' % (S_X, KVEND))
    a('s_cselect_b32 s60, %d, 0' % (NSLOT * 8192))
    a('s_sub_u32 s%d, s%d, s60' % (S_X, S_X))
    a('s_add_u32 s%d, s%d, 8' % (S_TH, S_TH))
    a('s_add_u32 s%d, s%d, %d' % (S_STEP, S_STEP, NC))
    a('s_cmp_lt_u32 s%d, %d' % (S_STEP, 18))
    a('s_cbranch_scc1 L_round')
    stamp(2)
    RB = R_K
    for n in range(4):
        a('ds_read_b128 v[%d:%d], v%d offset:%d' % (RB + 4 * n, RB + 4 * n + 3, V_LIN, 49152 + 1024 * n))
    if ctrig:
        wait_flag('L_ctrig', ctrig, ctmo)
    stamp(3)
    for n in range(4):
        if not ctrig:
            a('s_waitcnt lgkmcnt(%d)' % (3 - n))
        a('buffer_store_dwordx4 v[%d:%d], v%d, %s, s%d offen offset:%d%s' % (
            RB + 4 * n, RB + 4 * n + 3, V_ST0 + (n & 1), srd(S_O), S_QO, 1024 * n, st if stc is None else stc))
    fstamp(9)
    stamp(4)
    if fine:
        nst[0] = 10
    if diag:
        dump()
    a('L_end:')
    a('s_endpgm')
    dump_code()
    s, info = finish(a, NWG, 64 * (NC + 2), LDS)
    if pad:
        s = s.replace('.p2align 8\n.type', '.p2align 12\n.fill %d, 4, 0xbf800000\n.p2align 8\n.type' % (pad // 4))
    return s, info


if __name__ == '__main__':
    out = sys.argv[1]
    kw = {}
    for x in sys.argv[2:]:
        k, v = x.split('=')
        try:
            v = int(v)
        except ValueError:
            v = v.replace('+', ' ')
        kw[k] = v
    s, info = gen(**kw)
    open(out, 'w').write(s)
    print(out, info)
```

```python
import sys
import math
import struct
from asmlib import Asm, finish

NBYTES = 32 * 2048 * 128 * 2


def f32(x):
    return '0x%08x' % struct.unpack('<I', struct.pack('<f', x))[0]


def gen(D=32, xmap=3, alt=1, ld=' nt', ld_first=None, st=' sc1', trig=17, W=63, ctrig=17, ctmo=0, sched=1, fine=0, E2=18, G=4, De=0, par=0, topen=48, tbase=44, p2=1, padn=0, oob=0, roll=0, rv=0, al=-1, padodd=0, late2=0, soft=0, softk=1, al2=-1, ka=0, slp=0, clk=0, trigodd=0, vmlog=0, stc=None, nsp=48, padto=52, padfrom=0, sync=0, lstamp=0, prio=3, safe=1,
        diag='', arole='L', aidx=0, aop='max', aref=-1, pad=0xd00, tmo=0, tmo_from=15):
    a = Asm()
    NWG = 256
    NC = 4
    NSLOT = 10 if rv & 8 else 11
    KV0 = 65536
    KVEND = KV0 + NSLOT * 8192
    FLAG = KVEND + 12
    LDS = KVEND + 256
    if ld_first is None:
        ld_first = ld
    RW = D - G
    OFFW = -(-RW // 4)
    OFFN = -(-(De - G) // 4) if De else OFFW
    assert OFFW <= 14
    S_Q, S_K, S_V, S_O = 12, 16, 20, 24
    srd = lambda b: 's[%d:%d]' % (b, b + 3)
    S_W, S_STR, S_KVO, S_QO, S_POS = 3, 37, 38, 39, 40
    V_FLAG = 1
    nst = [0]
    role = ['L']
    uid = [0]

    def stamp(idx=None):
        i = nst[0] if idx is None else idx
        if diag == 'stamp' or (diag == 'amp' and (i == 0 or (role[0] in arole and i in (aidx, aref)))):
            a('s_memrealtime s[%d:%d]' % (64 + 2 * i, 65 + 2 * i))
        nst[0] = max(nst[0], i + 1)

    def stamp_if(sreg, val, idx):
        if diag == 'stamp' or (diag == 'amp' and role[0] in arole and idx in (aidx, aref)):
            uid[0] += 1
            a('s_cmp_lg_u32 s%d, %d' % (sreg, val))
            a('s_cbranch_scc1 L_ns%d' % uid[0])
            stamp(idx)
            a('L_ns%d:' % uid[0])

    def spin(lab, ref, lim):
        a('%s:' % lab)
        a('s_memrealtime s[94:95]')
        a('s_waitcnt lgkmcnt(0)')
        a('s_sub_u32 s96, s94, %s' % ref)
        a('s_cmp_lt_u32 s96, %s' % lim)
        a('s_cbranch_scc1 %s' % lab)

    tails = []

    def dump():
        if diag == 'stamp' or (diag == 'amp' and role[0] in arole):
            if role[0] != 'L':
                a('s_waitcnt vmcnt(0)')
            stamp()
            a('s_branch L_dump')
        else:
            a('s_endpgm')

    def dump_code():
        if diag == 'amp':
            a('L_dump:')
            a('s_load_dwordx2 s[62:63], s[0:1], 32')
            a('s_waitcnt lgkmcnt(0)')
            spin('L_sp0', 's64', '2000')
            a('s_not_b32 s93, s64')
            if aref >= 0:
                a('s_sub_u32 s%d, s%d, s%d' % (64 + 2 * aidx, 64 + 2 * aidx, 64 + 2 * aref))
            a('s_and_b32 s92, s%d, 0xfffff' % (64 + 2 * aidx))
            a('v_mov_b32 v8, s93')
            a('v_mov_b32 v9, s%d' % (64 + 2 * aidx))
            a('v_mov_b32 v10, s92')
            a('v_not_b32 v11, v9')
            a('v_mov_b32 v12, 0')
            a('s_mov_b64 exec, 1')
            a('global_atomic_umax v12, v8, s[62:63]')
            a('global_atomic_umax v12, v9, s[62:63] offset:4')
            if len(arole) == 1:
                a('global_atomic_add v12, v10, s[62:63] offset:8')
                a('global_atomic_umax v12, v11, s[62:63] offset:12')
            a('s_mov_b64 exec, -1')
            a('s_waitcnt vmcnt(0)')
            spin('L_sp1', 's64', '4500' if len(arole) == 1 else '7500')
            a('global_load_dwordx4 v[8:11], v12, s[62:63] sc1')
            a('s_waitcnt vmcnt(0)')
            a('v_readfirstlane_b32 s93, v8')
            a('v_readfirstlane_b32 s97, v9')
            a('v_readfirstlane_b32 s98, v10')
            a('v_readfirstlane_b32 s99, v11')
            a('s_not_b32 s93, s93')
            if aref >= 0:
                if aop == 'avg':
                    a('s_lshr_b32 s97, s98, 8')
                elif aop == 'min':
                    a('s_not_b32 s97, s99')
            elif aop == 'max':
                a('s_sub_u32 s97, s97, s93')
            elif aop == 'min':
                a('s_not_b32 s99, s99')
                a('s_sub_u32 s97, s99, s93')
            else:
                a('s_lshr_b32 s98, s98, 8')
                a('s_and_b32 s97, s93, 0xfffff')
                a('s_sub_u32 s97, s98, s97')
            a('s_min_u32 s97, s97, 3000')
            a('s_mul_i32 s97, s97, 10')
            a('s_add_u32 s97, s97, %d' % (5000 if len(arole) == 1 else 8000))
            spin('L_sp2', 's93', 's97')
            a('s_endpgm')
        if diag == 'stamp':
            a('L_dump:')
            a('s_load_dwordx2 s[62:63], s[0:1], 40')
            a('s_getreg_b32 s60, hwreg(HW_REG_XCC_ID)')
            a('s_waitcnt lgkmcnt(0)')
            spin('L_sp0', 's64', '2000')
            a('v_mov_b32 v5, 0')
            for i in range(12):
                a('v_writelane_b32 v5, s%d, %d' % (64 + 2 * i, i))
            a('v_writelane_b32 v5, s60, 30')
            a('v_writelane_b32 v5, s%d, 31' % S_W)
            a('s_lshl_b32 s61, s2, 3')
            a('s_add_u32 s61, s61, s%d' % S_W)
            a('s_lshl_b32 s61, s61, 8')
            a('v_lshl_add_u32 v6, v0, 2, s61')
            a('global_store_dword v6, v5, s[62:63]')
            a('s_endpgm')

    def guard(lab):
        if slp:
            a('s_sleep %d' % slp)
        if safe:
            a('s_add_u32 s56, s56, 1')
            a('s_cmp_ge_u32 s56, 0x20000')
            a('s_cbranch_scc1 %s_x' % lab)

    def wait_flag(lab, what, limit=0):
        if limit:
            a('s_mov_b32 s46, %d' % limit)
        a('%s:' % lab)
        if what >= 100:
            a('ds_read_b128 v[8:11], v%d offset:4' % V_FLAG)
        else:
            a('ds_read_b32 v8, v%d' % V_FLAG)
        if limit:
            a('s_sub_u32 s46, s46, 1')
            a('s_cbranch_scc1 %s_x' % lab)
        else:
            guard(lab)
        a('s_waitcnt lgkmcnt(0)')
        if what >= 100:
            a('v_min3_i32 v8, v8, v9, v10')
            a('v_min_i32 v8, v8, v11')
            a('v_cmp_ge_i32 vcc, %d, v8' % (what - 100))
        else:
            a('v_cmp_gt_i32 vcc, %d, v8' % what)
        a('s_cbranch_vccnz %s' % lab)
        if safe or limit:
            a('%s_x:' % lab)

    stamp()
    if ka == 0:
        a('s_load_dwordx2 s[%d:%d], s[0:1], 8' % (S_K, S_K + 1))
        a('s_load_dwordx2 s[%d:%d], s[0:1], 16' % (S_V, S_V + 1))
        a('s_load_dwordx2 s[%d:%d], s[0:1], 0' % (S_Q, S_Q + 1))
        a('s_load_dwordx2 s[%d:%d], s[0:1], 24' % (S_O, S_O + 1))
    else:
        a('s_load_dwordx8 s[4:11], s[0:1], 0')
    a('s_cmp_ge_u32 s2, %d' % NWG)
    a('s_cbranch_scc1 L_end')
    a('v_lshrrev_b32 v5, 6, v0')
    a('v_and_b32 v0, 63, v0')
    a('v_readfirstlane_b32 s%d, v5' % S_W)
    a('v_mov_b32 v%d, %d' % (V_FLAG, FLAG))
    a('v_lshl_add_u32 v15, v5, 2, v%d' % V_FLAG)
    a('v_add_u32 v5, 1, v5')
    a('ds_write_b32 v15, v5')
    if safe:
        a('s_mov_b32 s56, 0')
    if xmap == 1:
        a('s_and_b32 s60, s2, 7')
        a('s_lshr_b32 s61, s2, 3')
        a('s_lshl_b32 s60, s60, 5')
        a('s_add_u32 s2, s60, s61')
    elif xmap == 3:
        a('s_bfe_u32 s60, s2, 0x40003')
        a('s_and_b32 s61, s2, 1')
        a('s_lshl4_add_u32 s60, s61, s60')
        a('s_lshr_b32 s61, s2, 7')
        a('s_and_b32 s2, s2, 6')
        a('s_or_b32 s2, s2, s61')
        a('s_lshl_b32 s2, s2, 5')
        a('s_or_b32 s2, s2, s60')
    elif xmap in (4, 5, 6):
        tab = {4: (0, 1, 4, 5), 5: (0, 0, 0, 0), 6: (0, 3, 5, 6)}[xmap]
        a('s_lshr_b32 s60, s2, 6')
        a('s_lshl_b32 s60, s60, 2')
        a('s_lshr_b32 s60, 0x%x, s60' % sum(v << (4 * k) for k, v in enumerate(tab)))
        a('s_xor_b32 s60, s60, s2')
        a('s_and_b32 s60, s60, 7')
        a('s_bfe_u32 s61, s2, 0x30003')
        a('s_and_b32 s2, s2, 0xc0')
        a('s_or_b32 s2, s2, s61')
        a('s_lshl3_add_u32 s2, s60, s2')
    elif xmap == 7:
        a('s_and_b32 s60, s2, 7')
        a('s_bfe_u32 s61, s2, 0x10003')
        a('s_lshl1_add_u32 s60, s60, s61')
        a('s_and_b32 s2, s2, 0xf0')
        a('s_or_b32 s2, s2, s60')
    a('s_lshl_b32 s%d, s2, 16' % S_QO)
    a('s_movk_i32 s%d, 4096' % S_STR)
    a('s_movk_i32 s61, -8192')
    a('s_and_b32 s60, s2, %d' % (1 if alt else 0))
    a('s_cmovk_i32 s%d, -4096' % S_STR)
    a('s_cselect_b32 s60, %d, 0' % (15 * 4096))
    a('s_cselect_b32 s61, s60, s61')
    a('s_cselect_b64 s[42:43], -1, 0')
    a('s_add_u32 s%d, s%d, s61' % (S_KVO, S_QO))
    a('s_add_u32 s%d, s%d, s60' % (S_QO, S_QO))
    a('v_lshrrev_b32 v6, 4, v0')
    a('v_and_b32 v7, 15, v0')
    a('s_mov_b32 s%d, %d' % (S_Q + 2, 0 if oob else NBYTES))
    a('s_mov_b32 s%d, 0x20000' % (S_Q + 3))
    a('s_mov_b64 s[%d:%d], s[%d:%d]' % (S_O + 2, S_O + 3, S_Q + 2, S_Q + 3))
    a('v_lshlrev_b32 v5, 1, v6')
    a('v_xor_b32 v5, v5, v7')
    a('v_lshlrev_b32 v5, 4, v5')
    a('v_lshl_add_u32 v2, v6, 8, v5')
    a('v_xor_b32 v3, 128, v2')
    a('s_add_u32 s45, s%d, s%d' % (S_KVO, S_STR))
    a('s_and_b32 s%d, s2, 7' % S_POS)
    a('s_cselect_b32 s44, s%d, 0' % S_KVO)
    a('s_cselect_b32 s45, s45, 0')
    a('s_cselect_b32 s%d, s%d, 0' % (S_K + 2, S_Q + 2))
    a('s_mov_b32 s%d, 0x20000' % (S_K + 3))
    a('s_mov_b64 s[%d:%d], s[%d:%d]' % (S_V + 2, S_V + 3, S_K + 2, S_K + 3))
    a('s_mov_b32 m0, %d' % KV0)
    a('s_cmp_lg_u32 s%d, 0' % S_W)
    a('s_waitcnt lgkmcnt(0)')
    if ka:
        a('s_mov_b64 s[%d:%d], s[6:7]' % (S_K, S_K + 1))
    a('s_cbranch_scc1 L_other')

    stamp()

    if clk:
        a('s_memtime s[80:81]')

    def dma(i, r, so, fl):
        a('buffer_load_dwordx4 v%d, %s, s%d offen offset:%d%s lds' % (2 + (i & 1), srd(r), so, i * 1024, fl))

    S_N, S_STEPL, S_OPEN, S_T = 52, 53, 54, 55
    fill = ['s_setprio %d' % prio, 's_mov_b32 s46, s%d' % S_QO, 's_mov_b32 s47, 0']
    if ka:
        fill[0] = 's_mov_b64 s[%d:%d], s[8:9]' % (S_V, S_V + 1)
        fill[1] += '\ns_setprio %d' % prio
        fill[2] += '\ns_mov_b64 s[%d:%d], s[4:5]' % (S_Q, S_Q + 1)
    for n in range(4):
        for i in range(4):
            dma(i, S_V if n & 1 else S_K, 44 + (n >> 1), ld_first)
        if n < 3:
            a('s_addk_i32 m0, 4096')
            a(fill[n])
    a('s_lshl1_add_u32 s48, s%d, s%d' % (S_STR, S_KVO))
    a('s_mov_b32 s50, s48')
    a('s_mov_b32 s49, %d' % (KV0 + 2 * 8192))
    a('s_add_u32 s51, s49, 4096')
    a('s_mov_b32 s%d, 4' % S_N)
    a('s_movk_i32 s%d, 4096' % S_STEPL)
    if De:
        a('s_getreg_b32 s%d, hwreg(HW_REG_XCC_ID, 0, 1)' % S_OPEN)
        a('s_cmp_eq_u32 s%d, %d' % (S_OPEN, par))
        a('s_cselect_b32 s%d, %d, 0' % (S_OPEN, topen))
    a('v_mov_b32 v4, %d' % (3 - OFFW if rv & 4 else 0))
    if rv & 2:
        a('s_movk_i32 s58, 128')
        a('v_mov_b32 v5, 1024')
    if sync:
        a('s_mov_b32 s57, 0')
    if padodd:
        a('s_getreg_b32 s59, hwreg(HW_REG_XCC_ID, 0, 1)')
        a('s_cmp_eq_u32 s59, 0')
        a('s_cselect_b32 s59, %d, %d' % (padto, padodd))
    a('s_barrier')
    if al >= 0:
        a('s_branch L_ld')
        a('.p2align 6')
        if al:
            a('.fill %d, 4, 0xbf800000' % al)

    def throttle(j):
        a('s_waitcnt vmcnt(%d)' % RW)
        if De:
            a('s_cmp_ge_u32 s%d, s%d' % (S_N, S_OPEN))
            if j == 0:
                a('s_cselect_b32 s%d, %d, %d' % (S_T, OFFW, OFFN))
            a('s_cbranch_scc1 L_nw%d' % j)
            a('s_waitcnt vmcnt(%d)' % (De - G))
            a('L_nw%d:' % j)

    a('L_ld:')
    a('s_mov_b32 m0, s47')
    throttle(0)
    if rv & 4:
        a('v_add_u32 v4, 1, v4')
    else:
        a('s_sub_u32 s%d, s%d, %s' % (S_T, S_N, 's%d' % S_T if De else OFFW))
        a('v_max_i32 v4, s%d, v4' % S_T)
    a('ds_write_b32 v%d, v4' % V_FLAG)
    for k, x in enumerate((8, 16, 28, 40)):
        if lstamp:
            stamp_if(S_T, x, 2 + k)
    if roll:
        a('ds_read_b128 v[8:11], v%d offset:4' % V_FLAG)
        a('s_cmp_ge_u32 s%d, %s' % (S_N, 's59' if padodd else padto))
        a('s_cbranch_scc1 L_fast')
        if not rv & 2:
            a('s_mov_b32 s58, s46')
        a('L_row:')
        if rv & 1:
            a('s_waitcnt vmcnt(%d)' % (RW + 3))
        if rv & 2:
            a('buffer_load_dwordx4 v2, %s, s46 offen%s lds' % (srd(S_Q), ld))
            a('v_xad_u32 v2, v2, s58, v5')
        else:
            a('buffer_load_dwordx4 v2, %s, s58 offen%s lds' % (srd(S_Q), ld))
            a('v_xor_b32 v2, 128, v2')
            a('s_addk_i32 s58, 1024')
        a('s_addk_i32 m0, 1024')
        a('s_and_b32 s60, m0, 4095')
        a('s_cbranch_scc1 L_row')
        if rv & 2:
            a('v_xor_b32 v2, s58, v3')
        a('L_next:')
    else:
        if padto < 52:
            a('s_cmp_ge_u32 s%d, %d' % (S_N, padto))
            a('s_cbranch_scc1 L_np')
        if padfrom:
            a('s_cmp_lt_u32 s%d, %d' % (S_N, padfrom))
            a('s_cbranch_scc1 L_np')
        for k in range(padn // 16):
            a('s_nop 15')
        if padn % 16:
            a('s_nop %d' % (padn % 16 - 1))
        if sync:
            a('L_free:')
            a('ds_read_b128 v[8:11], v%d offset:4' % V_FLAG)
            guard('L_free')
            a('s_waitcnt lgkmcnt(0)')
            a('v_min3_i32 v8, v8, v9, v10')
            a('v_min_i32 v8, v8, v11')
            a('v_cmp_ge_i32 vcc, s57, v8')
            a('s_cbranch_vccnz L_free')
            if safe:
                a('L_free_x:')
        if soft:
            a('s_getreg_b32 s60, hwreg(HW_REG_IB_STS, 0, 24)')
            a('s_and_b32 s60, s60, 0xc0000f')
            a('s_cmp_ge_u32 s60, 0x%x' % ((soft & 15) | ((soft >> 4) << 22)))
            a('s_cbranch_scc1 L_cong')
        if padto < 52 or padfrom:
            a('L_np:')
        for i in range(4):
            if i and i % G == 0:
                throttle(i)
            dma(i, S_Q, 46, ld)
            if i == 0 and not sync:
                a('ds_read_b128 v[8:11], v%d offset:4' % V_FLAG)
    a('s_add_u32 s46, s46, s%d' % S_STR)
    a('s_add_u32 s47, s47, s%d' % S_STEPL)
    if not rv & 8:
        a('s_cmp_ge_u32 s47, %d' % KVEND)
        a('s_cselect_b32 s60, %d, 0' % (NSLOT * 8192))
        a('s_sub_u32 s47, s47, s60')
    a('s_add_u32 s%d, s%d, 1' % (S_N, S_N))
    a('s_and_b32 s60, s%d, 3' % S_N)
    a('s_cbranch_scc1 L_ld')
    if rv & 8:
        a('s_cmp_ge_u32 s47, %d' % KVEND)
        a('s_cselect_b32 s60, %d, 0' % (NSLOT * 8192))
        a('s_sub_u32 s47, s47, s60')
    if vmlog:
        a('s_getreg_b32 s60, hwreg(HW_REG_IB_STS)')
        a('s_lshr_b32 s61, s60, 30')
        a('s_bfe_u32 s60, s60, 0x30001')
        a('s_lshl3_add_u32 s60, s61, s60')
        a('s_lshl_b64 s[68:69], s[68:69], 5')
        a('s_or_b32 s68, s68, s60')
        a('s_mov_b32 s70, s69')
    if clk:
        a('s_cmp_lg_u32 s%d, 44' % S_N)
        a('s_cbranch_scc1 L_nclk')
        a('s_memtime s[82:83]')
        stamp(5)
        a('L_nclk:')
    for x, y, z in ((S_Q, S_K, S_V), (46, 48, 50)):
        a('s_mov_b64 s[60:61], s[%d:%d]' % (x, x + 1))
        a('s_mov_b64 s[%d:%d], s[%d:%d]' % (x, x + 1, y, y + 1))
        a('s_mov_b64 s[%d:%d], s[%d:%d]' % (y, y + 1, z, z + 1))
        a('s_mov_b64 s[%d:%d], s[60:61]' % (z, z + 1))
    a('s_movk_i32 s%d, 4096' % S_STEPL)
    a('s_cmp_ge_u32 s47, %d' % KV0)
    a('s_cmovk_i32 s%d, 8192' % S_STEPL)
    if rv & 8:
        a('s_cmp_ge_u32 s%d, 44' % S_N)
        a('s_cselect_b32 s%d, 9, 5' % S_T)
        a('s_cmp_lt_u32 s%d, 32' % S_N)
        a('s_cmov_b32 s%d, 0' % S_T)
    else:
        a('s_sub_u32 s%d, s%d, 20' % (S_T, S_N))
        a('s_mul_i32 s%d, s%d, 43' % (S_T, S_T))
    if sync:
        a('s_ashr_i32 s57, s%d, 7' % S_T)
        a('s_cmp_lg_u32 s%d, 52' % S_N)
        a('s_cbranch_scc1 L_ld')
    else:
        if not rv & 8:
            a('s_ashr_i32 s%d, s%d, 7' % (S_T, S_T))
        a('s_cmp_eq_u32 s%d, 52' % S_N)
        a('s_cbranch_scc1 L_drain')
        a('L_free:')
        a('s_waitcnt lgkmcnt(0)')
        a('v_min3_i32 v8, v8, v9, v10')
        a('v_min_i32 v8, v8, v11')
        a('v_cmp_lt_i32 vcc, s%d, v8' % S_T)
        a('s_cbranch_vccnz L_ld')
        a('ds_read_b128 v[8:11], v%d offset:4' % V_FLAG)
        if safe:
            a('s_add_u32 s56, s56, 1')
            a('s_cmp_ge_u32 s56, 0x20000')
            a('s_cbranch_scc1 L_ld')
        a('s_branch L_free')
    if soft:
        a('L_cong:')
        if softk:
            a('s_nop %d' % (softk - 1))
        a('s_branch L_np')
    if roll:
        a('L_fast:')
        for i in range(4):
            dma(i, S_Q, 46, ld)
        a('s_branch L_next')
    a('L_drain:')
    stamp(6)
    for left in range(OFFW, -1, -1):
        a('v_max_i32 v4, %d, v4' % (52 - left))
        a('s_waitcnt vmcnt(%d)' % (4 * left))
        a('ds_write_b32 v%d, v4' % V_FLAG)
    nst[0] = 7
    dump()

    role[0] = 'C'
    nst[0] = 1
    a('L_other:')
    a('s_barrier')
    if ka:
        a('s_mov_b64 s[%d:%d], s[10:11]' % (S_O, S_O + 1))
    V_LIN, V_ST0, V_ST1 = 2, 3, 4
    a('v_xor_b32 v5, v7, v6')
    a('v_lshlrev_b32 v5, 4, v5')
    a('v_lshl_add_u32 v%d, v6, 8, v5' % V_ST0)
    a('v_xor_b32 v%d, 64, v%d' % (V_ST1, V_ST0))
    a('s_cmp_le_u32 s%d, %d' % (S_W, NC))
    a('s_cbranch_scc1 L_consumer')
    role[0] = 'S'
    a('v_lshlrev_b32 v%d, 4, v0' % V_LIN)
    def sread(r):
        wait_flag('L_sr%d' % r, 100 + 5 + 4 * r)
        for n in range(16 * r, 16 * r + 16):
            if n % 16 == 14:
                a('s_waitcnt lgkmcnt(6)')
            a('ds_read_b128 v[%d:%d], v%d offset:%d' % (16 + 4 * n, 19 + 4 * n, V_LIN, 1024 * n))

    for r in range(2 if late2 else 3):
        sread(r)
    stamp(1)
    if tbase:
        wait_flag('L_sbase', tbase)
    stamp(2)
    if trigodd:
        a('s_getreg_b32 s59, hwreg(HW_REG_XCC_ID, 0, 1)')
        a('s_cmp_eq_u32 s59, 0')
        a('s_cselect_b32 s59, %d, %d' % (trig, trigodd))
        a('L_strig:')
        a('ds_read_b32 v8, v%d' % V_FLAG)
        a('s_waitcnt lgkmcnt(0)')
        a('v_cmp_gt_i32 vcc, s59, v8')
        a('s_cbranch_vccnz L_strig')
    else:
        wait_flag('L_strig', trig, tmo)
    stamp(3)
    for n in range(48):
        if late2 and n == 32:
            sread(2)
        if late2 and n in (40, 44):
            a('s_waitcnt lgkmcnt(%d)' % (44 - n))
        a('buffer_store_dwordx4 v[%d:%d], v%d, %s, s%d offen offset:%d%s' % (
            16 + 4 * n, 19 + 4 * n, V_ST0 + (n & 1), srd(S_O), S_QO, 1024 * (n & 3), st if n < nsp else stc))
        if n & 3 == 3 and n < 47:
            a('s_add_u32 s%d, s%d, s%d' % (S_QO, S_QO, S_STR))
    stamp(4)
    dump()
    role[0] = 'C'
    nst[0] = 1
    a('L_consumer:')
    S_STEP, S_X, S_Y, S_Z, S_QS, S_C, S_NEG, S_TH = 44, 45, 46, 47, 48, 51, 52, 53
    S_MASK = 28
    V_M0, V_M1, V_T0, V_T1, V_T2, V_T3 = 5, 6, 10, 11, 12, 14
    C_K, C_V, C_O = 16, 20, 28
    A_Q, A_K, A_V, A_O = 32, 36, 48, 72
    R_Q, R_K, R_V = 76, 92, 140
    V_S, V_P, V_O = 188, 200, 208
    R_OUT = R_Q
    a('v_and_b32 v13, 7, v7')
    a('v_lshlrev_b32 v5, 1, v13')
    a('v_xor_b32 v5, v5, v6')
    a('v_lshlrev_b32 v5, 4, v5')
    a('v_lshl_add_u32 v%d, v7, 8, v5' % C_K)
    a('v_xor_b32 v%d, 64, v%d' % (C_K + 1, C_K))
    a('v_xor_b32 v%d, 128, v%d' % (C_K + 2, C_K))
    a('v_xor_b32 v%d, 64, v%d' % (C_K + 3, C_K + 2))
    a('v_lshrrev_b32 v14, 2, v0')
    a('v_and_b32 v5, 7, v14')
    a('v_lshlrev_b32 v5, 5, v5')
    a('v_lshl_add_u32 v5, v14, 8, v5')
    a('v_and_b32 v14, 3, v0')
    a('v_lshl_add_u32 v%d, v14, 3, v5' % C_V)
    a('v_xor_b32 v%d, 128, v%d' % (C_V + 4, C_V))
    for t in (0, 4):
        a('v_xor_b32 v%d, 64, v%d' % (C_V + t + 2, C_V + t))
    for t in (0, 2, 4, 6):
        a('v_xor_b32 v%d, 32, v%d' % (C_V + t + 1, C_V + t))
    a('v_lshrrev_b32 v5, 1, v6')
    a('v_xor_b32 v5, v5, v13')
    a('v_lshlrev_b32 v5, 4, v5')
    a('v_lshl_add_u32 v5, v7, 8, v5')
    a('v_and_b32 v14, 1, v6')
    a('v_lshl_add_u32 v%d, v14, 3, v5' % C_O)
    a('v_xor_b32 v%d, 64, v%d' % (C_O + 2, C_O))
    for t in (0, 2):
        a('v_xor_b32 v%d, 32, v%d' % (C_O + t + 1, C_O + t))
    a('v_lshlrev_b32 v13, 2, v6')
    a('v_sub_u32 v13, v7, v13')
    for r in range(4):
        a('v_cmp_le_i32 vcc, %d, v13' % r)
        a('s_xor_b64 s[%d:%d], vcc, s[42:43]' % (S_MASK + 2 * r, S_MASK + 2 * r + 1))
    a('v_mov_b32 v13, 0xffff')
    for w, vm in ((0, V_M0), (1, V_M1)):
        a('v_cndmask_b32 v10, 0, v13, s[%d:%d]' % (S_MASK + 4 * w, S_MASK + 4 * w + 1))
        a('v_cndmask_b32 v14, 0, v13, s[%d:%d]' % (S_MASK + 4 * w + 2, S_MASK + 4 * w + 3))
        a('v_lshl_or_b32 v%d, v14, 16, v10' % vm)
    a('s_mov_b32 s%d, %s' % (S_C, f32(math.log2(math.e) / math.sqrt(128.0))))
    a('s_cmp_eq_u32 s%d, 0' % S_POS)
    a('s_cselect_b32 s%d, %s, 0' % (S_NEG, f32(-1e30)))
    a('s_sub_u32 s60, s%d, 1' % S_W)
    a('s_add_u32 s%d, s60, 2' % S_STEP)
    a('s_add_u32 s%d, s60, 9' % S_TH)
    a('s_lshl_b32 s%d, s60, 12' % S_QS)
    a('s_lshl_b32 s61, s60, 13')
    a('s_add_u32 s%d, s61, %d' % (S_X, KV0))
    a('v_lshl_add_u32 v%d, v0, 4, s%d' % (V_LIN, S_QS))
    a('s_add_u32 s60, s60, 12')
    a('s_mul_i32 s61, s60, s%d' % S_STR)
    a('s_add_u32 s%d, s%d, s61' % (S_QO, S_QO))

    a('L_round:')
    for x in (1, 2):
        a('s_add_u32 s%d, s%d, 8192' % (S_X + x, S_X + x - 1))
        a('s_cmp_eq_u32 s%d, %d' % (S_X + x, KVEND))
        a('s_cmov_b32 s%d, %d' % (S_X + x, KV0))
    for s in range(4):
        a('v_add_u32 v%d, s%d, v%d' % (A_Q + s, S_QS, C_K + s))
        for x in range(3):
            a('v_add_u32 v%d, s%d, v%d' % (A_K + 4 * x + s, S_X + x, C_K + s))
    for t in range(8):
        for x in range(3):
            a('v_add_u32 v%d, s%d, v%d' % (A_V + 8 * x + t, S_X + x, C_V + t))
    for t in range(4):
        a('v_add_u32 v%d, s%d, v%d' % (A_O + t, S_QS, C_O + t))
    a('s_cmp_lt_u32 s%d, %d' % (S_STEP, 4))
    a('s_cselect_b32 s60, s%d, 0' % S_NEG)
    a('s_cmp_lt_u32 s%d, %d' % (S_STEP, 3))
    a('s_cselect_b32 s61, s%d, 0' % S_NEG)
    for r in range(4):
        a('v_mov_b32 v%d, s60' % (V_S + r))
        a('v_mov_b32 v%d, s61' % (V_S + 4 + r))
    a('s_add_u32 s60, s%d, %d' % (S_STEP, NC))
    a('v_mov_b32 v13, s60')
    a('L_poll:')
    a('ds_read_b32 v%d, v%d' % (V_T0, V_FLAG))
    guard('L_poll')
    a('s_waitcnt lgkmcnt(0)')
    a('v_cmp_gt_i32 vcc, s%d, v%d' % (S_TH, V_T0))
    a('s_cbranch_vccnz L_poll')
    if safe:
        a('L_poll_x:')
    def fstamp(i):
        if fine:
            a('s_memtime s[%d:%d]' % (64 + 2 * i, 65 + 2 * i))

    fstamp(5)
    lds_q = []

    def lds(text, tag):
        a(text)
        lds_q.append(tag)

    def lwait(tags):
        last = max(i for i, t in enumerate(lds_q) if t in tags)
        a('s_waitcnt lgkmcnt(%d)' % (len(lds_q) - 1 - last))

    def kread(s, x):
        if x < 0:
            lds('ds_read_b128 v[%d:%d], v%d' % (R_Q + 4 * s, R_Q + 4 * s + 3, A_Q + s), ('Q', s))
        else:
            lds('ds_read_b128 v[%d:%d], v%d' % (R_K + 16 * x + 4 * s, R_K + 16 * x + 4 * s + 3, A_K + 4 * x + s), ('K', s, x))

    vreads = [(t, x) for t in range(8) for x in range(3)]

    def vread(n):
        for _ in range(n):
            t, x = vreads.pop(0)
            lds('ds_read_b64_tr_b16 v[%d:%d], v%d offset:4096' % (R_V + 6 * t + 2 * x, R_V + 6 * t + 2 * x + 1, A_V + 8 * x + t), ('V', t, x))

    def qk(s, x):
        d = 'v[%d:%d]' % (V_S + 4 * x, V_S + 4 * x + 3)
        c = '0' if (s == 0 and x == 2) else d
        a('v_mfma_f32_16x16x32_bf16 %s, v[%d:%d], v[%d:%d], %s' % (
            d, R_K + 16 * x + 4 * s, R_K + 16 * x + 4 * s + 3, R_Q + 4 * s, R_Q + 4 * s + 3, c))

    XO = (0, 2, 1)
    pend = [(s, x) for s in range(4) for x in (-1,) + XO]
    for _ in range(12):
        kread(*pend.pop(0))
    for s in range(4):
        for x in XO:
            lwait([('Q', s), ('K', s, x)])
            qk(s, x)
            if pend:
                kread(*pend.pop(0))
                if pend and pend[0][1] == XO[0]:
                    kread(*pend.pop(0))
    fstamp(6)
    SA, SB, SC = V_S, V_S + 4, V_S + 8
    a('s_add_u32 s%d, s%d, 4' % (S_TH, S_TH))
    a('ds_read_b32 v8, v%d' % V_FLAG)
    for r in range(4):
        a('v_cndmask_b32 v%d, v%d, v%d, s[%d:%d]' % (SA + r, SA + r, SC + r, S_MASK + 2 * r, S_MASK + 2 * r + 1))
    a('v_max3_f32 v%d, v%d, v%d, v%d' % (V_T2, SA, SA + 1, SA + 2))
    a('v_max3_f32 v%d, v%d, v%d, v%d' % (V_T3, SA + 3, SB, SB + 1))
    a('v_max3_f32 v%d, v%d, v%d, v%d' % (V_T2, V_T2, SB + 2, SB + 3))

    def xreduce(op, fill):
        a('%s v%d, v%d, v%d' % (op, V_T0, V_T2, V_T3))
        a('%s v%d, v%d, v%d' % (op, V_T1, V_T2, V_T3))
        fill()
        a('v_permlane32_swap_b32 v%d, v%d' % (V_T0, V_T1))
        a('%s v%d, v%d, v%d' % (op, V_T2, V_T0, V_T1))
        a('%s v%d, v%d, v%d' % (op, V_T3, V_T0, V_T1))
        fill()
        a('v_permlane16_swap_b32 v%d, v%d' % (V_T2, V_T3))
        a('%s v%d, v%d, v%d' % (op, V_T0, V_T2, V_T3))

    xreduce('v_max_f32', lambda: None)
    a('v_mul_f32 v%d, s%d, v%d' % (V_T0, S_C, V_T0))
    for r in range(8):
        a('v_fma_f32 v%d, v%d, s%d, -v%d' % (SA + r, SA + r, S_C, V_T0))
    for r in range(8):
        a('v_exp_f32 v%d, v%d' % (SA + r, SA + r))
        if r == 3:
            a('v_add_f32 v%d, v%d, v%d' % (V_T2, SA, SA + 1))
        if r == 4:
            a('v_add_f32 v%d, v%d, v%d' % (V_T3, SA + 2, SA + 3))
        if r == 6:
            a('v_add_f32 v%d, v%d, v%d' % (V_T2, V_T2, SA + 4))
            a('v_add_f32 v%d, v%d, v%d' % (V_T3, V_T3, SA + 5))
    a('L_poll2:')
    a('s_waitcnt lgkmcnt(0)')
    a('v_cmp_le_i32 vcc, s%d, v8' % S_TH)
    a('s_cbranch_vccnz L_poll2_x')
    a('ds_read_b32 v8, v%d' % V_FLAG)
    guard('L_poll2')
    a('s_branch L_poll2')
    a('L_poll2_x:')
    stamp(1)
    del lds_q[:]
    vreads[:] = [(t, 2) for t in range(4)] + [(t, x) for t in range(4) for x in (0, 1)] + \
                [(t, 2) for t in range(4, 8)] + [(t, x) for t in range(4, 8) for x in (0, 1)]
    vread(8)
    a('v_add_f32 v%d, v%d, v%d' % (V_T2, V_T2, SA + 6))
    a('v_add_f32 v%d, v%d, v%d' % (V_T3, V_T3, SA + 7))
    xreduce('v_add_f32', lambda: vread(2))
    a('v_rcp_f32 v%d, v%d' % (V_T0, V_T0))
    PA, PB, PC = V_P, V_P + 2, V_P + 4
    lwait([('V', 3, 2)])
    vread(2)
    for r in range(4):
        a('v_mul_f32 v%d, v%d, v%d' % (SA + r, SA + r, V_T0))
    vread(2)
    for w in range(2):
        a('v_cvt_pk_bf16_f32 v%d, v%d, v%d' % (PA + w, SA + 2 * w, SA + 2 * w + 1))
    for w, vm in ((0, V_M0), (1, V_M1)):
        a('v_and_b32 v%d, v%d, v%d' % (PC + w, PA + w, vm))
    fstamp(7)

    def pv16(t):
        a('v_mfma_f32_16x16x16_bf16 v[%d:%d], v[%d:%d], v[%d:%d], 0' % (
            V_O + 4 * t, V_O + 4 * t + 3, R_V + 6 * t + 4, R_V + 6 * t + 5, PC, PC + 1))

    def pv32(t):
        a('v_mfma_f32_16x16x32_bf16 v[%d:%d], v[%d:%d], v[%d:%d], v[%d:%d]' % (
            V_O + 4 * t, V_O + 4 * t + 3, R_V + 6 * t, R_V + 6 * t + 3, PA, PA + 3, V_O + 4 * t, V_O + 4 * t + 3))

    def cvt(t):
        a('v_cvt_pk_bf16_f32 v%d, v%d, v%d' % (R_OUT + 2 * t, V_O + 4 * t, V_O + 4 * t + 1))
        a('v_cvt_pk_bf16_f32 v%d, v%d, v%d' % (R_OUT + 2 * t + 1, V_O + 4 * t + 2, V_O + 4 * t + 3))

    def owr(t):
        a('ds_write_b64 v%d, v[%d:%d] offset:%d' % (A_O + (t & 3), R_OUT + 2 * t, R_OUT + 2 * t + 1, 128 * (t >> 2)))

    a('v_mul_f32 v%d, v%d, v%d' % (SB, SB, V_T0))
    a('v_mul_f32 v%d, v%d, v%d' % (SB + 1, SB + 1, V_T0))
    pv16(0)
    lwait([('V', 2, 1)])
    vread(2)
    a('v_mul_f32 v%d, v%d, v%d' % (SB + 2, SB + 2, V_T0))
    a('v_mul_f32 v%d, v%d, v%d' % (SB + 3, SB + 3, V_T0))
    pv16(1)
    vread(2)
    for w in range(2):
        a('v_cvt_pk_bf16_f32 v%d, v%d, v%d' % (PB + w, SB + 2 * w, SB + 2 * w + 1))
    pv16(2)
    vread(2)
    for w in range(2):
        a('v_xor_b32 v%d, v%d, v%d' % (PA + w, PA + w, PC + w))
    pv16(3)
    vread(2)
    assert not vreads
    lwait([('V', 7, 2)])
    pv32(0); pv16(4); pv32(1); pv16(5); pv32(2); pv16(6); pv32(3); pv16(7)
    a('s_waitcnt lgkmcnt(0)')
    a('s_addk_i32 s%d, %d' % (S_QS, NC * 4096))
    cvt(0); pv32(4); owr(0)
    cvt(1); pv32(5); owr(1)
    cvt(2); pv32(6); owr(2)
    cvt(3); pv32(7); owr(3)
    for t in range(4, 8):
        cvt(t); owr(t)
    fstamp(8)
    a('ds_write_b32 v15, v13')
    a('s_add_u32 s%d, s%d, %d' % (S_X, S_X, NC * 8192))
    a('s_cmp_ge_u32 s%d, %d' % (S_X, KVEND))
    a('s_cselect_b32 s60, %d, 0' % (NSLOT * 8192))
    a('s_sub_u32 s%d, s%d, s60' % (S_X, S_X))
    a('s_add_u32 s%d, s%d, 8' % (S_TH, S_TH))
    a('s_add_u32 s%d, s%d, %d' % (S_STEP, S_STEP, NC))
    a('s_cmp_lt_u32 s%d, %d' % (S_STEP, 18))
    a('s_cbranch_scc1 L_round')
    stamp(2)
    RB = R_K
    for n in range(4):
        a('ds_read_b128 v[%d:%d], v%d offset:%d' % (RB + 4 * n, RB + 4 * n + 3, V_LIN, 49152 + 1024 * n))
    if ctrig:
        wait_flag('L_ctrig', ctrig, ctmo)
    stamp(3)
    for n in range(4):
        if not ctrig:
            a('s_waitcnt lgkmcnt(%d)' % (3 - n))
        a('buffer_store_dwordx4 v[%d:%d], v%d, %s, s%d offen offset:%d%s' % (
            RB + 4 * n, RB + 4 * n + 3, V_ST0 + (n & 1), srd(S_O), S_QO, 1024 * n, st if stc is None else stc))
    fstamp(9)
    stamp(4)
    if fine:
        nst[0] = 10
    if diag:
        dump()
    a('L_end:')
    a('s_endpgm')
    dump_code()
    s, info = finish(a, NWG, 64 * (NC + 2), LDS)
    if pad:
        s = s.replace('.p2align 8\n.type', '.p2align 12\n.fill %d, 4, 0xbf800000\n.p2align 8\n.type' % (pad // 4))
    return s, info


if __name__ == '__main__':
    out = sys.argv[1]
    kw = {}
    for x in sys.argv[2:]:
        k, v = x.split('=')
        try:
            v = int(v)
        except ValueError:
            v = v.replace('+', ' ')
        kw[k] = v
    s, info = gen(**kw)
    open(out, 'w').write(s)
    print(out, info)
```

```python
import sys
import math
import struct
from asmlib import Asm, finish

NBYTES = 32 * 2048 * 128 * 2


def f32(x):
    return '0x%08x' % struct.unpack('<I', struct.pack('<f', x))[0]


def gen(D=32, xmap=3, alt=1, ld=' nt', ld_first=None, st=' sc1', trig=17, W=63, ctrig=17, ctmo=0, sched=1, fine=0, E2=18, G=4, De=0, par=0, topen=48, tbase=44, p2=1, padn=0, oob=0, roll=0, rv=0, al=-1, padodd=0, late2=0, mimic=0, soft=0, softk=1, al2=-1, ka=0, slp=0, clk=0, trigodd=0, vmlog=0, stc=None, nsp=48, padto=52, padfrom=0, sync=0, lstamp=0, prio=3, safe=1,
        diag='', arole='L', aidx=0, aop='max', aref=-1, pad=0xd00, tmo=0, tmo_from=15):
    a = Asm()
    NWG = 256
    NC = 4
    NSLOT = 10 if rv & 8 else 11
    KV0 = 65536
    KVEND = KV0 + NSLOT * 8192
    FLAG = KVEND + 12
    LDS = KVEND + 256
    if ld_first is None:
        ld_first = ld
    RW = D - G
    OFFW = -(-RW // 4)
    OFFN = -(-(De - G) // 4) if De else OFFW
    assert OFFW <= 14
    S_Q, S_K, S_V, S_O = 12, 16, 20, 24
    srd = lambda b: 's[%d:%d]' % (b, b + 3)
    S_W, S_STR, S_KVO, S_QO, S_POS = 3, 37, 38, 39, 40
    V_FLAG = 1
    nst = [0]
    role = ['L']
    uid = [0]

    def stamp(idx=None):
        i = nst[0] if idx is None else idx
        if diag == 'stamp' or (diag == 'amp' and (i == 0 or (role[0] in arole and i in (aidx, aref)))):
            a('s_memrealtime s[%d:%d]' % (64 + 2 * i, 65 + 2 * i))
        nst[0] = max(nst[0], i + 1)

    def stamp_if(sreg, val, idx):
        if diag == 'stamp' or (diag == 'amp' and role[0] in arole and idx in (aidx, aref)):
            uid[0] += 1
            a('s_cmp_lg_u32 s%d, %d' % (sreg, val))
            a('s_cbranch_scc1 L_ns%d' % uid[0])
            stamp(idx)
            a('L_ns%d:' % uid[0])

    def spin(lab, ref, lim):
        a('%s:' % lab)
        a('s_memrealtime s[94:95]')
        a('s_waitcnt lgkmcnt(0)')
        a('s_sub_u32 s96, s94, %s' % ref)
        a('s_cmp_lt_u32 s96, %s' % lim)
        a('s_cbranch_scc1 %s' % lab)

    tails = []

    def dump():
        if diag == 'stamp' or (diag == 'amp' and role[0] in arole):
            if role[0] != 'L':
                a('s_waitcnt vmcnt(0)')
            stamp()
            a('s_branch L_dump')
        else:
            a('s_endpgm')

    def dump_code():
        if diag == 'amp':
            a('L_dump:')
            a('s_load_dwordx2 s[62:63], s[0:1], 32')
            a('s_waitcnt lgkmcnt(0)')
            spin('L_sp0', 's64', '2000')
            a('s_not_b32 s93, s64')
            if aref >= 0:
                a('s_sub_u32 s%d, s%d, s%d' % (64 + 2 * aidx, 64 + 2 * aidx, 64 + 2 * aref))
            a('s_and_b32 s92, s%d, 0xfffff' % (64 + 2 * aidx))
            a('v_mov_b32 v8, s93')
            a('v_mov_b32 v9, s%d' % (64 + 2 * aidx))
            a('v_mov_b32 v10, s92')
            a('v_not_b32 v11, v9')
            a('v_mov_b32 v12, 0')
            a('s_mov_b64 exec, 1')
            a('global_atomic_umax v12, v8, s[62:63]')
            a('global_atomic_umax v12, v9, s[62:63] offset:4')
            if len(arole) == 1:
                a('global_atomic_add v12, v10, s[62:63] offset:8')
                a('global_atomic_umax v12, v11, s[62:63] offset:12')
            a('s_mov_b64 exec, -1')
            a('s_waitcnt vmcnt(0)')
            spin('L_sp1', 's64', '4500' if len(arole) == 1 else '7500')
            a('global_load_dwordx4 v[8:11], v12, s[62:63] sc1')
            a('s_waitcnt vmcnt(0)')
            a('v_readfirstlane_b32 s93, v8')
            a('v_readfirstlane_b32 s97, v9')
            a('v_readfirstlane_b32 s98, v10')
            a('v_readfirstlane_b32 s99, v11')
            a('s_not_b32 s93, s93')
            if aref >= 0:
                if aop == 'avg':
                    a('s_lshr_b32 s97, s98, 8')
                elif aop == 'min':
                    a('s_not_b32 s97, s99')
            elif aop == 'max':
                a('s_sub_u32 s97, s97, s93')
            elif aop == 'min':
                a('s_not_b32 s99, s99')
                a('s_sub_u32 s97, s99, s93')
            else:
                a('s_lshr_b32 s98, s98, 8')
                a('s_and_b32 s97, s93, 0xfffff')
                a('s_sub_u32 s97, s98, s97')
            a('s_min_u32 s97, s97, 3000')
            a('s_mul_i32 s97, s97, 10')
            a('s_add_u32 s97, s97, %d' % (5000 if len(arole) == 1 else 8000))
            spin('L_sp2', 's93', 's97')
            a('s_endpgm')
        if diag == 'stamp':
            a('L_dump:')
            a('s_load_dwordx2 s[62:63], s[0:1], 40')
            a('s_getreg_b32 s60, hwreg(HW_REG_XCC_ID)')
            a('s_waitcnt lgkmcnt(0)')
            spin('L_sp0', 's64', '2000')
            a('v_mov_b32 v5, 0')
            for i in range(12):
                a('v_writelane_b32 v5, s%d, %d' % (64 + 2 * i, i))
            a('v_writelane_b32 v5, s60, 30')
            a('v_writelane_b32 v5, s%d, 31' % S_W)
            a('s_lshl_b32 s61, s2, 3')
            a('s_add_u32 s61, s61, s%d' % S_W)
            a('s_lshl_b32 s61, s61, 8')
            a('v_lshl_add_u32 v6, v0, 2, s61')
            a('global_store_dword v6, v5, s[62:63]')
            a('s_endpgm')

    def guard(lab):
        if slp:
            a('s_sleep %d' % slp)
        if safe:
            a('s_add_u32 s56, s56, 1')
            a('s_cmp_ge_u32 s56, 0x20000')
            a('s_cbranch_scc1 %s_x' % lab)

    def wait_flag(lab, what, limit=0):
        if limit:
            a('s_mov_b32 s46, %d' % limit)
        a('%s:' % lab)
        if what >= 100:
            a('ds_read_b128 v[8:11], v%d offset:4' % V_FLAG)
        else:
            a('ds_read_b32 v8, v%d' % V_FLAG)
        if limit:
            a('s_sub_u32 s46, s46, 1')
            a('s_cbranch_scc1 %s_x' % lab)
        else:
            guard(lab)
        a('s_waitcnt lgkmcnt(0)')
        if what >= 100:
            a('v_min3_i32 v8, v8, v9, v10')
            a('v_min_i32 v8, v8, v11')
            a('v_cmp_ge_i32 vcc, %d, v8' % (what - 100))
        else:
            a('v_cmp_gt_i32 vcc, %d, v8' % what)
        a('s_cbranch_vccnz %s' % lab)
        if safe or limit:
            a('%s_x:' % lab)

    stamp()
    if ka == 0:
        a('s_load_dwordx2 s[%d:%d], s[0:1], 8' % (S_K, S_K + 1))
        a('s_load_dwordx2 s[%d:%d], s[0:1], 16' % (S_V, S_V + 1))
        a('s_load_dwordx2 s[%d:%d], s[0:1], 0' % (S_Q, S_Q + 1))
        a('s_load_dwordx2 s[%d:%d], s[0:1], 24' % (S_O, S_O + 1))
    else:
        a('s_load_dwordx8 s[4:11], s[0:1], 0')
    a('s_cmp_ge_u32 s2, %d' % NWG)
    a('s_cbranch_scc1 L_end')
    a('v_lshrrev_b32 v5, 6, v0')
    a('v_and_b32 v0, 63, v0')
    a('v_readfirstlane_b32 s%d, v5' % S_W)
    a('v_mov_b32 v%d, %d' % (V_FLAG, FLAG))
    a('v_lshl_add_u32 v15, v5, 2, v%d' % V_FLAG)
    a('v_add_u32 v5, 1, v5')
    a('ds_write_b32 v15, v5')
    if safe:
        a('s_mov_b32 s56, 0')
    if xmap == 1:
        a('s_and_b32 s60, s2, 7')
        a('s_lshr_b32 s61, s2, 3')
        a('s_lshl_b32 s60, s60, 5')
        a('s_add_u32 s2, s60, s61')
    elif xmap == 3:
        a('s_bfe_u32 s60, s2, 0x40003')
        a('s_and_b32 s61, s2, 1')
        a('s_lshl4_add_u32 s60, s61, s60')
        a('s_lshr_b32 s61, s2, 7')
        a('s_and_b32 s2, s2, 6')
        a('s_or_b32 s2, s2, s61')
        a('s_lshl_b32 s2, s2, 5')
        a('s_or_b32 s2, s2, s60')
    elif xmap in (4, 5, 6):
        tab = {4: (0, 1, 4, 5), 5: (0, 0, 0, 0), 6: (0, 3, 5, 6)}[xmap]
        a('s_lshr_b32 s60, s2, 6')
        a('s_lshl_b32 s60, s60, 2')
        a('s_lshr_b32 s60, 0x%x, s60' % sum(v << (4 * k) for k, v in enumerate(tab)))
        a('s_xor_b32 s60, s60, s2')
        a('s_and_b32 s60, s60, 7')
        a('s_bfe_u32 s61, s2, 0x30003')
        a('s_and_b32 s2, s2, 0xc0')
        a('s_or_b32 s2, s2, s61')
        a('s_lshl3_add_u32 s2, s60, s2')
    elif xmap == 7:
        a('s_and_b32 s60, s2, 7')
        a('s_bfe_u32 s61, s2, 0x10003')
        a('s_lshl1_add_u32 s60, s60, s61')
        a('s_and_b32 s2, s2, 0xf0')
        a('s_or_b32 s2, s2, s60')
    a('s_lshl_b32 s%d, s2, 16' % S_QO)
    a('s_movk_i32 s%d, 4096' % S_STR)
    a('s_movk_i32 s61, -8192')
    a('s_and_b32 s60, s2, %d' % (1 if alt else 0))
    a('s_cmovk_i32 s%d, -4096' % S_STR)
    a('s_cselect_b32 s60, %d, 0' % (15 * 4096))
    a('s_cselect_b32 s61, s60, s61')
    a('s_cselect_b64 s[42:43], -1, 0')
    a('s_add_u32 s%d, s%d, s61' % (S_KVO, S_QO))
    a('s_add_u32 s%d, s%d, s60' % (S_QO, S_QO))
    a('v_lshrrev_b32 v6, 4, v0')
    a('v_and_b32 v7, 15, v0')
    a('s_mov_b32 s%d, %d' % (S_Q + 2, 0 if oob else NBYTES))
    a('s_mov_b32 s%d, 0x20000' % (S_Q + 3))
    a('s_mov_b64 s[%d:%d], s[%d:%d]' % (S_O + 2, S_O + 3, S_Q + 2, S_Q + 3))
    a('v_lshlrev_b32 v5, 1, v6')
    a('v_xor_b32 v5, v5, v7')
    a('v_lshlrev_b32 v5, 4, v5')
    a('v_lshl_add_u32 v2, v6, 8, v5')
    a('v_xor_b32 v3, 128, v2')
    a('s_add_u32 s45, s%d, s%d' % (S_KVO, S_STR))
    a('s_and_b32 s%d, s2, 7' % S_POS)
    a('s_cselect_b32 s44, s%d, 0' % S_KVO)
    a('s_cselect_b32 s45, s45, 0')
    a('s_cselect_b32 s%d, s%d, 0' % (S_K + 2, S_Q + 2))
    a('s_mov_b32 s%d, 0x20000' % (S_K + 3))
    a('s_mov_b64 s[%d:%d], s[%d:%d]' % (S_V + 2, S_V + 3, S_K + 2, S_K + 3))
    a('s_mov_b32 m0, %d' % KV0)
    a('s_cmp_lg_u32 s%d, 0' % S_W)
    a('s_waitcnt lgkmcnt(0)')
    if ka:
        a('s_mov_b64 s[%d:%d], s[6:7]' % (S_K, S_K + 1))
    a('s_cbranch_scc1 L_other')

    stamp()

    if clk:
        a('s_memtime s[80:81]')

    def dma(i, r, so, fl):
        a('buffer_load_dwordx4 v%d, %s, s%d offen offset:%d%s lds' % (2 + (i & 1), srd(r), so, i * 1024, fl))

    S_N, S_STEPL, S_OPEN, S_T = 52, 53, 54, 55
    fill = ['s_setprio %d' % prio, 's_mov_b32 s46, s%d' % S_QO, 's_mov_b32 s47, 0']
    if ka:
        fill[0] = 's_mov_b64 s[%d:%d], s[8:9]' % (S_V, S_V + 1)
        fill[1] += '\ns_setprio %d' % prio
        fill[2] += '\ns_mov_b64 s[%d:%d], s[4:5]' % (S_Q, S_Q + 1)
    for n in range(4):
        for i in range(4):
            dma(i, S_V if n & 1 else S_K, 44 + (n >> 1), ld_first)
        if n < 3:
            a('s_addk_i32 m0, 4096')
            a(fill[n])
    a('s_lshl1_add_u32 s48, s%d, s%d' % (S_STR, S_KVO))
    a('s_mov_b32 s50, s48')
    a('s_mov_b32 s49, %d' % (KV0 + 2 * 8192))
    a('s_add_u32 s51, s49, 4096')
    a('s_mov_b32 s%d, 4' % S_N)
    a('s_movk_i32 s%d, 4096' % S_STEPL)
    if De:
        a('s_getreg_b32 s%d, hwreg(HW_REG_XCC_ID, 0, 1)' % S_OPEN)
        a('s_cmp_eq_u32 s%d, %d' % (S_OPEN, par))
        a('s_cselect_b32 s%d, %d, 0' % (S_OPEN, topen))
    a('v_mov_b32 v4, %d' % (3 - OFFW if rv & 4 else 0))
    if rv & 2:
        a('s_movk_i32 s58, 128')
        a('v_mov_b32 v5, 1024')
    if sync:
        a('s_mov_b32 s57, 0')
    if padodd:
        a('s_getreg_b32 s59, hwreg(HW_REG_XCC_ID, 0, 1)')
        a('s_cmp_eq_u32 s59, 0')
        a('s_cselect_b32 s59, %d, %d' % (padto, padodd))
    a('s_barrier')
    if al >= 0:
        a('s_branch L_ld')
        a('.p2align 6')
        if al:
            a('.fill %d, 4, 0xbf800000' % al)

    def throttle(j):
        a('s_waitcnt vmcnt(%d)' % RW)
        if De:
            a('s_cmp_ge_u32 s%d, s%d' % (S_N, S_OPEN))
            if j == 0:
                a('s_cselect_b32 s%d, %d, %d' % (S_T, OFFW, OFFN))
            a('s_cbranch_scc1 L_nw%d' % j)
            a('s_waitcnt vmcnt(%d)' % (De - G))
            a('L_nw%d:' % j)

    a('L_ld:')
    a('s_mov_b32 m0, s47')
    throttle(0)
    if rv & 4:
        a('v_add_u32 v4, 1, v4')
    else:
        a('s_sub_u32 s%d, s%d, %s' % (S_T, S_N, 's%d' % S_T if De else OFFW))
        a('v_max_i32 v4, s%d, v4' % S_T)
    a('ds_write_b32 v%d, v4' % V_FLAG)
    for k, x in enumerate((8, 16, 28, 40)):
        if lstamp:
            stamp_if(S_T, x, 2 + k)
    if roll:
        a('ds_read_b128 v[8:11], v%d offset:4' % V_FLAG)
        a('s_cmp_ge_u32 s%d, %s' % (S_N, 's59' if padodd else padto))
        a('s_cbranch_scc1 L_fast')
        if not rv & 2:
            a('s_mov_b32 s58, s46')
        a('L_row:')
        if rv & 1:
            a('s_waitcnt vmcnt(%d)' % (RW + 3))
        if rv & 2:
            a('buffer_load_dwordx4 v2, %s, s46 offen%s lds' % (srd(S_Q), ld))
            a('v_xad_u32 v2, v2, s58, v5')
        else:
            a('buffer_load_dwordx4 v2, %s, s58 offen%s lds' % (srd(S_Q), ld))
            a('v_xor_b32 v2, 128, v2')
            a('s_addk_i32 s58, 1024')
        a('s_addk_i32 m0, 1024')
        a('s_and_b32 s60, m0, 4095')
        a('s_cbranch_scc1 L_row')
        if rv & 2:
            a('v_xor_b32 v2, s58, v3')
        a('L_next:')
    else:
        if padto < 52:
            a('s_cmp_ge_u32 s%d, %d' % (S_N, padto))
            a('s_cbranch_scc1 L_np')
        if padfrom:
            a('s_cmp_lt_u32 s%d, %d' % (S_N, padfrom))
            a('s_cbranch_scc1 L_np')
        for k in range(padn // 16):
            a('s_nop 15')
        if padn % 16:
            a('s_nop %d' % (padn % 16 - 1))
        if sync:
            a('L_free:')
            a('ds_read_b128 v[8:11], v%d offset:4' % V_FLAG)
            guard('L_free')
            a('s_waitcnt lgkmcnt(0)')
            a('v_min3_i32 v8, v8, v9, v10')
            a('v_min_i32 v8, v8, v11')
            a('v_cmp_ge_i32 vcc, s57, v8')
            a('s_cbranch_vccnz L_free')
            if safe:
                a('L_free_x:')
        if soft:
            a('s_getreg_b32 s60, hwreg(HW_REG_IB_STS, 0, 24)')
            a('s_and_b32 s60, s60, 0xc0000f')
            a('s_cmp_ge_u32 s60, 0x%x' % ((soft & 15) | ((soft >> 4) << 22)))
            a('s_cbranch_scc1 L_cong')
        if padto < 52 or padfrom:
            a('L_np:')
        for i in range(4):
            if i and i % G == 0:
                throttle(i)
            dma(i, S_Q, 46, ld)
            if i == 0 and not sync:
                a('ds_read_b128 v[8:11], v%d offset:4' % V_FLAG)
    a('s_add_u32 s46, s46, s%d' % S_STR)
    a('s_add_u32 s47, s47, s%d' % S_STEPL)
    if not rv & 8:
        a('s_cmp_ge_u32 s47, %d' % KVEND)
        a('s_cselect_b32 s60, %d, 0' % (NSLOT * 8192))
        a('s_sub_u32 s47, s47, s60')
    a('s_add_u32 s%d, s%d, 1' % (S_N, S_N))
    a('s_and_b32 s60, s%d, 3' % S_N)
    a('s_cbranch_scc1 L_ld')
    if rv & 8:
        a('s_cmp_ge_u32 s47, %d' % KVEND)
        a('s_cselect_b32 s60, %d, 0' % (NSLOT * 8192))
        a('s_sub_u32 s47, s47, s60')
    if vmlog:
        a('s_getreg_b32 s60, hwreg(HW_REG_IB_STS)')
        a('s_lshr_b32 s61, s60, 30')
        a('s_bfe_u32 s60, s60, 0x30001')
        a('s_lshl3_add_u32 s60, s61, s60')
        a('s_lshl_b64 s[68:69], s[68:69], 5')
        a('s_or_b32 s68, s68, s60')
        a('s_mov_b32 s70, s69')
    if clk:
        a('s_cmp_lg_u32 s%d, 44' % S_N)
        a('s_cbranch_scc1 L_nclk')
        a('s_memtime s[82:83]')
        stamp(5)
        a('L_nclk:')
    for x, y, z in ((S_Q, S_K, S_V), (46, 48, 50)):
        a('s_mov_b64 s[60:61], s[%d:%d]' % (x, x + 1))
        a('s_mov_b64 s[%d:%d], s[%d:%d]' % (x, x + 1, y, y + 1))
        a('s_mov_b64 s[%d:%d], s[%d:%d]' % (y, y + 1, z, z + 1))
        a('s_mov_b64 s[%d:%d], s[60:61]' % (z, z + 1))
    a('s_movk_i32 s%d, 4096' % S_STEPL)
    a('s_cmp_ge_u32 s47, %d' % KV0)
    a('s_cmovk_i32 s%d, 8192' % S_STEPL)
    if rv & 8:
        a('s_cmp_ge_u32 s%d, 44' % S_N)
        a('s_cselect_b32 s%d, 9, 5' % S_T)
        a('s_cmp_lt_u32 s%d, 32' % S_N)
        a('s_cmov_b32 s%d, 0' % S_T)
    else:
        a('s_sub_u32 s%d, s%d, 20' % (S_T, S_N))
        a('s_mul_i32 s%d, s%d, 43' % (S_T, S_T))
    if sync:
        a('s_ashr_i32 s57, s%d, 7' % S_T)
        a('s_cmp_lg_u32 s%d, 52' % S_N)
        a('s_cbranch_scc1 L_ld')
    else:
        if not rv & 8:
            a('s_ashr_i32 s%d, s%d, 7' % (S_T, S_T))
        a('s_cmp_eq_u32 s%d, 52' % S_N)
        a('s_cbranch_scc1 L_drain')
        a('L_free:')
        a('s_waitcnt lgkmcnt(0)')
        a('v_min3_i32 v8, v8, v9, v10')
        a('v_min_i32 v8, v8, v11')
        a('v_cmp_lt_i32 vcc, s%d, v8' % S_T)
        a('s_cbranch_vccnz L_ld')
        a('ds_read_b128 v[8:11], v%d offset:4' % V_FLAG)
        if safe:
            a('s_add_u32 s56, s56, 1')
            a('s_cmp_ge_u32 s56, 0x20000')
            a('s_cbranch_scc1 L_ld')
        a('s_branch L_free')
    if soft:
        a('L_cong:')
        if softk:
            a('s_nop %d' % (softk - 1))
        a('s_branch L_np')
    if roll:
        a('L_fast:')
        for i in range(4):
            dma(i, S_Q, 46, ld)
        a('s_branch L_next')
    a('L_drain:')
    stamp(6)
    for left in range(OFFW, -1, -1):
        a('v_max_i32 v4, %d, v4' % (52 - left))
        a('s_waitcnt vmcnt(%d)' % (4 * left))
        a('ds_write_b32 v%d, v4' % V_FLAG)
    nst[0] = 7
    dump()

    role[0] = 'C'
    nst[0] = 1
    a('L_other:')
    a('s_barrier')
    if ka:
        a('s_mov_b64 s[%d:%d], s[10:11]' % (S_O, S_O + 1))
    V_LIN, V_ST0, V_ST1 = 2, 3, 4
    a('v_xor_b32 v5, v7, v6')
    a('v_lshlrev_b32 v5, 4, v5')
    a('v_lshl_add_u32 v%d, v6, 8, v5' % V_ST0)
    a('v_xor_b32 v%d, 64, v%d' % (V_ST1, V_ST0))
    a('s_cmp_le_u32 s%d, %d' % (S_W, NC))
    a('s_cbranch_scc1 L_consumer')
    role[0] = 'S'
    a('v_lshlrev_b32 v%d, 4, v0' % V_LIN)
    def sread(r):
        wait_flag('L_sr%d' % r, 100 + 5 + 4 * r)
        for n in range(16 * r, 16 * r + 16):
            if n % 16 == 14:
                a('s_waitcnt lgkmcnt(6)')
            a('ds_read_b128 v[%d:%d], v%d offset:%d' % (16 + 4 * n, 19 + 4 * n, V_LIN, 1024 * n))

    for r in range(2 if late2 else 3):
        sread(r)
    stamp(1)
    if tbase:
        wait_flag('L_sbase', tbase)
    stamp(2)
    if trigodd:
        a('s_getreg_b32 s59, hwreg(HW_REG_XCC_ID, 0, 1)')
        a('s_cmp_eq_u32 s59, 0')
        a('s_cselect_b32 s59, %d, %d' % (trig, trigodd))
        a('L_strig:')
        a('ds_read_b32 v8, v%d' % V_FLAG)
        a('s_waitcnt lgkmcnt(0)')
        a('v_cmp_gt_i32 vcc, s59, v8')
        a('s_cbranch_vccnz L_strig')
    else:
        wait_flag('L_strig', trig, tmo)
    stamp(3)
    for n in range(48):
        if late2 and n == 32:
            sread(2)
        if late2 and n in (40, 44):
            a('s_waitcnt lgkmcnt(%d)' % (44 - n))
        a('buffer_store_dwordx4 v[%d:%d], v%d, %s, s%d offen offset:%d%s' % (
            16 + 4 * n, 19 + 4 * n, V_ST0 + (n & 1), srd(S_O), S_QO, 1024 * (n & 3), st if n < nsp else stc))
        if n & 3 == 3 and n < 47:
            a('s_add_u32 s%d, s%d, s%d' % (S_QO, S_QO, S_STR))
    stamp(4)
    dump()
    role[0] = 'C'
    nst[0] = 1
    a('L_consumer:')
    S_STEP, S_X, S_Y, S_Z, S_QS, S_C, S_NEG, S_TH = 44, 45, 46, 47, 48, 51, 52, 53
    S_MASK = 28
    V_M0, V_M1, V_T0, V_T1, V_T2, V_T3 = 5, 6, 10, 11, 12, 14
    C_K, C_V, C_O = 16, 20, 28
    A_Q, A_K, A_V, A_O = 32, 36, 48, 72
    R_Q, R_K, R_V = 76, 92, 140
    V_S, V_P, V_O = 188, 200, 208
    R_OUT = R_Q
    a('v_and_b32 v13, 7, v7')
    a('v_lshlrev_b32 v5, 1, v13')
    a('v_xor_b32 v5, v5, v6')
    a('v_lshlrev_b32 v5, 4, v5')
    a('v_lshl_add_u32 v%d, v7, 8, v5' % C_K)
    a('v_xor_b32 v%d, 64, v%d' % (C_K + 1, C_K))
    a('v_xor_b32 v%d, 128, v%d' % (C_K + 2, C_K))
    a('v_xor_b32 v%d, 64, v%d' % (C_K + 3, C_K + 2))
    a('v_lshrrev_b32 v14, 2, v0')
    a('v_and_b32 v5, 7, v14')
    a('v_lshlrev_b32 v5, 5, v5')
    a('v_lshl_add_u32 v5, v14, 8, v5')
    a('v_and_b32 v14, 3, v0')
    a('v_lshl_add_u32 v%d, v14, 3, v5' % C_V)
    a('v_xor_b32 v%d, 128, v%d' % (C_V + 4, C_V))
    for t in (0, 4):
        a('v_xor_b32 v%d, 64, v%d' % (C_V + t + 2, C_V + t))
    for t in (0, 2, 4, 6):
        a('v_xor_b32 v%d, 32, v%d' % (C_V + t + 1, C_V + t))
    a('v_lshrrev_b32 v5, 1, v6')
    a('v_xor_b32 v5, v5, v13')
    a('v_lshlrev_b32 v5, 4, v5')
    a('v_lshl_add_u32 v5, v7, 8, v5')
    a('v_and_b32 v14, 1, v6')
    a('v_lshl_add_u32 v%d, v14, 3, v5' % C_O)
    a('v_xor_b32 v%d, 64, v%d' % (C_O + 2, C_O))
    for t in (0, 2):
        a('v_xor_b32 v%d, 32, v%d' % (C_O + t + 1, C_O + t))
    a('v_lshlrev_b32 v13, 2, v6')
    a('v_sub_u32 v13, v7, v13')
    for r in range(4):
        a('v_cmp_le_i32 vcc, %d, v13' % r)
        a('s_xor_b64 s[%d:%d], vcc, s[42:43]' % (S_MASK + 2 * r, S_MASK + 2 * r + 1))
    a('v_mov_b32 v13, 0xffff')
    for w, vm in ((0, V_M0), (1, V_M1)):
        a('v_cndmask_b32 v10, 0, v13, s[%d:%d]' % (S_MASK + 4 * w, S_MASK + 4 * w + 1))
        a('v_cndmask_b32 v14, 0, v13, s[%d:%d]' % (S_MASK + 4 * w + 2, S_MASK + 4 * w + 3))
        a('v_lshl_or_b32 v%d, v14, 16, v10' % vm)
    if mimic:
        a('s_mov_b32 s%d, %s' % (S_C, f32(math.log2(math.e))))
        a('s_mov_b32 s54, %s' % f32(128.0 ** -0.5))
        a('s_mov_b32 s55, 0xffff0000')
    else:
        a('s_mov_b32 s%d, %s' % (S_C, f32(math.log2(math.e) / math.sqrt(128.0))))
    a('s_cmp_eq_u32 s%d, 0' % S_POS)
    a('s_cselect_b32 s%d, %s, 0' % (S_NEG, f32(-1e30)))
    a('s_sub_u32 s60, s%d, 1' % S_W)
    a('s_add_u32 s%d, s60, 2' % S_STEP)
    a('s_add_u32 s%d, s60, 9' % S_TH)
    a('s_lshl_b32 s%d, s60, 12' % S_QS)
    a('s_lshl_b32 s61, s60, 13')
    a('s_add_u32 s%d, s61, %d' % (S_X, KV0))
    a('v_lshl_add_u32 v%d, v0, 4, s%d' % (V_LIN, S_QS))
    a('s_add_u32 s60, s60, 12')
    a('s_mul_i32 s61, s60, s%d' % S_STR)
    a('s_add_u32 s%d, s%d, s61' % (S_QO, S_QO))

    a('L_round:')
    for x in (1, 2):
        a('s_add_u32 s%d, s%d, 8192' % (S_X + x, S_X + x - 1))
        a('s_cmp_eq_u32 s%d, %d' % (S_X + x, KVEND))
        a('s_cmov_b32 s%d, %d' % (S_X + x, KV0))
    for s in range(4):
        a('v_add_u32 v%d, s%d, v%d' % (A_Q + s, S_QS, C_K + s))
        for x in range(3):
            a('v_add_u32 v%d, s%d, v%d' % (A_K + 4 * x + s, S_X + x, C_K + s))
    for t in range(8):
        for x in range(3):
            a('v_add_u32 v%d, s%d, v%d' % (A_V + 8 * x + t, S_X + x, C_V + t))
    for t in range(4):
        a('v_add_u32 v%d, s%d, v%d' % (A_O + t, S_QS, C_O + t))
    a('s_cmp_lt_u32 s%d, %d' % (S_STEP, 4))
    a('s_cselect_b32 s60, s%d, 0' % S_NEG)
    a('s_cmp_lt_u32 s%d, %d' % (S_STEP, 3))
    a('s_cselect_b32 s61, s%d, 0' % S_NEG)
    for r in range(4):
        a('v_mov_b32 v%d, s60' % (V_S + r))
        a('v_mov_b32 v%d, s61' % (V_S + 4 + r))
    a('s_add_u32 s60, s%d, %d' % (S_STEP, NC))
    a('v_mov_b32 v13, s60')
    a('L_poll:')
    a('ds_read_b32 v%d, v%d' % (V_T0, V_FLAG))
    guard('L_poll')
    a('s_waitcnt lgkmcnt(0)')
    a('v_cmp_gt_i32 vcc, s%d, v%d' % (S_TH, V_T0))
    a('s_cbranch_vccnz L_poll')
    if safe:
        a('L_poll_x:')
    def fstamp(i):
        if fine:
            a('s_memtime s[%d:%d]' % (64 + 2 * i, 65 + 2 * i))

    fstamp(5)
    lds_q = []

    def lds(text, tag):
        a(text)
        lds_q.append(tag)

    def lwait(tags):
        last = max(i for i, t in enumerate(lds_q) if t in tags)
        a('s_waitcnt lgkmcnt(%d)' % (len(lds_q) - 1 - last))

    def kread(s, x):
        if x < 0:
            lds('ds_read_b128 v[%d:%d], v%d' % (R_Q + 4 * s, R_Q + 4 * s + 3, A_Q + s), ('Q', s))
        else:
            lds('ds_read_b128 v[%d:%d], v%d' % (R_K + 16 * x + 4 * s, R_K + 16 * x + 4 * s + 3, A_K + 4 * x + s), ('K', s, x))

    vreads = [(t, x) for t in range(8) for x in range(3)]

    def vread(n):
        for _ in range(n):
            t, x = vreads.pop(0)
            lds('ds_read_b64_tr_b16 v[%d:%d], v%d offset:4096' % (R_V + 6 * t + 2 * x, R_V + 6 * t + 2 * x + 1, A_V + 8 * x + t), ('V', t, x))

    def qk(s, x):
        d = 'v[%d:%d]' % (V_S + 4 * x, V_S + 4 * x + 3)
        c = '0' if (s == 0 and x == 2) else d
        a('v_mfma_f32_16x16x32_bf16 %s, v[%d:%d], v[%d:%d], %s' % (
            d, R_K + 16 * x + 4 * s, R_K + 16 * x + 4 * s + 3, R_Q + 4 * s, R_Q + 4 * s + 3, c))

    XO = (0, 2, 1)
    pend = [(s, x) for s in range(4) for x in (-1,) + XO]
    for _ in range(12):
        kread(*pend.pop(0))
    for s in range(4):
        for x in XO:
            lwait([('Q', s), ('K', s, x)])
            qk(s, x)
            if pend:
                kread(*pend.pop(0))
                if pend and pend[0][1] == XO[0]:
                    kread(*pend.pop(0))
    fstamp(6)
    SA, SB, SC = V_S, V_S + 4, V_S + 8
    a('s_add_u32 s%d, s%d, 4' % (S_TH, S_TH))
    a('ds_read_b32 v8, v%d' % V_FLAG)
    for r in range(4):
        a('v_cndmask_b32 v%d, v%d, v%d, s[%d:%d]' % (SA + r, SA + r, SC + r, S_MASK + 2 * r, S_MASK + 2 * r + 1))
    if mimic:
        for rep in range(2):
            for w in range(4):
                a('v_cvt_pk_bf16_f32 v%d, v%d, v%d' % (SA + 2 * w + 1, SA + 2 * w, SA + 2 * w + 1))
            for w in range(4):
                a('v_lshlrev_b32 v%d, 16, v%d' % (SA + 2 * w, SA + 2 * w + 1))
                a('v_and_b32 v%d, s55, v%d' % (SA + 2 * w + 1, SA + 2 * w + 1))
            if rep == 0:
                for r in range(8):
                    a('v_mul_f32 v%d, s54, v%d' % (SA + r, SA + r))
    a('v_max3_f32 v%d, v%d, v%d, v%d' % (V_T2, SA, SA + 1, SA + 2))
    a('v_max3_f32 v%d, v%d, v%d, v%d' % (V_T3, SA + 3, SB, SB + 1))
    a('v_max3_f32 v%d, v%d, v%d, v%d' % (V_T2, V_T2, SB + 2, SB + 3))

    def xreduce(op, fill):
        a('%s v%d, v%d, v%d' % (op, V_T0, V_T2, V_T3))
        a('%s v%d, v%d, v%d' % (op, V_T1, V_T2, V_T3))
        fill()
        a('v_permlane32_swap_b32 v%d, v%d' % (V_T0, V_T1))
        a('%s v%d, v%d, v%d' % (op, V_T2, V_T0, V_T1))
        a('%s v%d, v%d, v%d' % (op, V_T3, V_T0, V_T1))
        fill()
        a('v_permlane16_swap_b32 v%d, v%d' % (V_T2, V_T3))
        a('%s v%d, v%d, v%d' % (op, V_T0, V_T2, V_T3))

    xreduce('v_max_f32', lambda: None)
    a('v_mul_f32 v%d, s%d, v%d' % (V_T0, S_C, V_T0))
    for r in range(8):
        a('v_fma_f32 v%d, v%d, s%d, -v%d' % (SA + r, SA + r, S_C, V_T0))
    for r in range(8):
        a('v_exp_f32 v%d, v%d' % (SA + r, SA + r))
        if r == 3:
            a('v_add_f32 v%d, v%d, v%d' % (V_T2, SA, SA + 1))
        if r == 4:
            a('v_add_f32 v%d, v%d, v%d' % (V_T3, SA + 2, SA + 3))
        if r == 6:
            a('v_add_f32 v%d, v%d, v%d' % (V_T2, V_T2, SA + 4))
            a('v_add_f32 v%d, v%d, v%d' % (V_T3, V_T3, SA + 5))
    a('L_poll2:')
    a('s_waitcnt lgkmcnt(0)')
    a('v_cmp_le_i32 vcc, s%d, v8' % S_TH)
    a('s_cbranch_vccnz L_poll2_x')
    a('ds_read_b32 v8, v%d' % V_FLAG)
    guard('L_poll2')
    a('s_branch L_poll2')
    a('L_poll2_x:')
    stamp(1)
    del lds_q[:]
    vreads[:] = [(t, 2) for t in range(4)] + [(t, x) for t in range(4) for x in (0, 1)] + \
                [(t, 2) for t in range(4, 8)] + [(t, x) for t in range(4, 8) for x in (0, 1)]
    vread(8)
    a('v_add_f32 v%d, v%d, v%d' % (V_T2, V_T2, SA + 6))
    a('v_add_f32 v%d, v%d, v%d' % (V_T3, V_T3, SA + 7))
    xreduce('v_add_f32', lambda: vread(2))
    a('v_rcp_f32 v%d, v%d' % (V_T0, V_T0))
    PA, PB, PC = V_P, V_P + 2, V_P + 4
    lwait([('V', 3, 2)])
    vread(2)
    for r in range(4):
        a('v_mul_f32 v%d, v%d, v%d' % (SA + r, SA + r, V_T0))
    vread(2)
    for w in range(2):
        a('v_cvt_pk_bf16_f32 v%d, v%d, v%d' % (PA + w, SA + 2 * w, SA + 2 * w + 1))
    for w, vm in ((0, V_M0), (1, V_M1)):
        a('v_and_b32 v%d, v%d, v%d' % (PC + w, PA + w, vm))
    fstamp(7)

    def pv16(t):
        a('v_mfma_f32_16x16x16_bf16 v[%d:%d], v[%d:%d], v[%d:%d], 0' % (
            V_O + 4 * t, V_O + 4 * t + 3, R_V + 6 * t + 4, R_V + 6 * t + 5, PC, PC + 1))

    def pv32(t):
        a('v_mfma_f32_16x16x32_bf16 v[%d:%d], v[%d:%d], v[%d:%d], v[%d:%d]' % (
            V_O + 4 * t, V_O + 4 * t + 3, R_V + 6 * t, R_V + 6 * t + 3, PA, PA + 3, V_O + 4 * t, V_O + 4 * t + 3))

    def cvt(t):
        a('v_cvt_pk_bf16_f32 v%d, v%d, v%d' % (R_OUT + 2 * t, V_O + 4 * t, V_O + 4 * t + 1))
        a('v_cvt_pk_bf16_f32 v%d, v%d, v%d' % (R_OUT + 2 * t + 1, V_O + 4 * t + 2, V_O + 4 * t + 3))

    def owr(t):
        a('ds_write_b64 v%d, v[%d:%d] offset:%d' % (A_O + (t & 3), R_OUT + 2 * t, R_OUT + 2 * t + 1, 128 * (t >> 2)))

    a('v_mul_f32 v%d, v%d, v%d' % (SB, SB, V_T0))
    a('v_mul_f32 v%d, v%d, v%d' % (SB + 1, SB + 1, V_T0))
    pv16(0)
    lwait([('V', 2, 1)])
    vread(2)
    a('v_mul_f32 v%d, v%d, v%d' % (SB + 2, SB + 2, V_T0))
    a('v_mul_f32 v%d, v%d, v%d' % (SB + 3, SB + 3, V_T0))
    pv16(1)
    vread(2)
    for w in range(2):
        a('v_cvt_pk_bf16_f32 v%d, v%d, v%d' % (PB + w, SB + 2 * w, SB + 2 * w + 1))
    pv16(2)
    vread(2)
    for w in range(2):
        a('v_xor_b32 v%d, v%d, v%d' % (PA + w, PA + w, PC + w))
    pv16(3)
    vread(2)
    assert not vreads
    lwait([('V', 7, 2)])
    pv32(0); pv16(4); pv32(1); pv16(5); pv32(2); pv16(6); pv32(3); pv16(7)
    a('s_waitcnt lgkmcnt(0)')
    a('s_addk_i32 s%d, %d' % (S_QS, NC * 4096))
    cvt(0); pv32(4); owr(0)
    cvt(1); pv32(5); owr(1)
    cvt(2); pv32(6); owr(2)
    cvt(3); pv32(7); owr(3)
    for t in range(4, 8):
        cvt(t); owr(t)
    fstamp(8)
    a('ds_write_b32 v15, v13')
    a('s_add_u32 s%d, s%d, %d' % (S_X, S_X, NC * 8192))
    a('s_cmp_ge_u32 s%d, %d' % (S_X, KVEND))
    a('s_cselect_b32 s60, %d, 0' % (NSLOT * 8192))
    a('s_sub_u32 s%d, s%d, s60' % (S_X, S_X))
    a('s_add_u32 s%d, s%d, 8' % (S_TH, S_TH))
    a('s_add_u32 s%d, s%d, %d' % (S_STEP, S_STEP, NC))
    a('s_cmp_lt_u32 s%d, %d' % (S_STEP, 18))
    a('s_cbranch_scc1 L_round')
    stamp(2)
    RB = R_K
    for n in range(4):
        a('ds_read_b128 v[%d:%d], v%d offset:%d' % (RB + 4 * n, RB + 4 * n + 3, V_LIN, 49152 + 1024 * n))
    if ctrig:
        wait_flag('L_ctrig', ctrig, ctmo)
    stamp(3)
    for n in range(4):
        if not ctrig:
            a('s_waitcnt lgkmcnt(%d)' % (3 - n))
        a('buffer_store_dwordx4 v[%d:%d], v%d, %s, s%d offen offset:%d%s' % (
            RB + 4 * n, RB + 4 * n + 3, V_ST0 + (n & 1), srd(S_O), S_QO, 1024 * n, st if stc is None else stc))
    fstamp(9)
    stamp(4)
    if fine:
        nst[0] = 10
    if diag:
        dump()
    a('L_end:')
    a('s_endpgm')
    dump_code()
    s, info = finish(a, NWG, 64 * (NC + 2), LDS)
    if pad:
        s = s.replace('.p2align 8\n.type', '.p2align 12\n.fill %d, 4, 0xbf800000\n.p2align 8\n.type' % (pad // 4))
    return s, info


if __name__ == '__main__':
    out = sys.argv[1]
    kw = {}
    for x in sys.argv[2:]:
        k, v = x.split('=')
        try:
            v = int(v)
        except ValueError:
            v = v.replace('+', ' ')
        kw[k] = v
    s, info = gen(**kw)
    open(out, 'w').write(s)
    print(out, info)
```

```python
import sys
import math
import struct
from asmlib import Asm, finish

NBYTES = 32 * 2048 * 128 * 2
ENDPGM = '0xbf810000'

OVERVIEW = """
Sliding-window (w=32) causal attention, one workgroup per 256 query rows (16 tiles of 16 rows).
  wave 0     loader    streams K/V/Q tiles HBM -> LDS with LDS-DMA, publishes the landed-tile count
  waves 1-4  consumers S^T = K Q^T, softmax, O^T = V^T P^T on MFMA, output tile staged in LDS
  wave 5     storer    keeps the first 12 output tiles in registers, writes them after the reads
Query tile T needs key tiles T-2, T-1, T. "Step" s = 2..17 uses K/V entries s-2, s-1, s (X, Y, Z).
Even blocks walk their rows upwards, odd blocks downwards, so neighbours fetch shared tiles together.
Load order: K0 V0 K1 V1, then 4 rounds of (4 Q tiles, 4 K tiles, 4 V tiles): 52 tiles of 4 KiB.
LDS: [0, 64K) Q / output tiles, [64K, 144K) ring of 10 (K, V) slots, then the flag words:
  flag[0] = tiles landed, flag[1..4] = next unfinished step of each consumer.
Tiles are stored row-major with the 16-byte chunk index XOR-swizzled by the row (no bank conflicts).
The whole kernel fits one 4 KiB code page, the reach of the instruction prefetcher.
"""


def f32(x):
    return '0x%08x' % struct.unpack('<I', struct.pack('<f', x))[0]


def gen(al=1, fast_from=44, trig=48):
    a = Asm()
    c = lambda t: a('; ' + t)
    NWG, NC, NSLOT = 256, 4, 10
    KV0 = 65536
    KVEND = KV0 + NSLOT * 8192
    FLAG = KVEND + 12
    LDS = KVEND + 256
    RW = 36
    OFF = RW // 4
    S_Q, S_K, S_V, S_O = 12, 16, 20, 24
    srd = lambda b: 's[%d:%d]' % (b, b + 3)
    S_W, S_STR, S_KVO, S_QO, S_POS = 3, 37, 38, 39, 40
    V_FLAG = 1
    LD, ST = ' nt', ' sc1 nt'

    def wait_landed(lab, what, reg=8):
        a('%s:' % lab)
        a('ds_read_b32 v%d, v%d' % (reg, V_FLAG))
        a('s_waitcnt lgkmcnt(0)')
        a('v_cmp_gt_i32 vcc, %s, v%d' % (what, reg))
        a('s_cbranch_vccnz %s' % lab)

    def wait_steps(lab, step):
        a('%s:' % lab)
        a('ds_read_b128 v[8:11], v%d offset:4' % V_FLAG)
        a('s_waitcnt lgkmcnt(0)')
        a('v_min3_i32 v8, v8, v9, v10')
        a('v_min_i32 v8, v8, v11')
        a('v_cmp_ge_i32 vcc, %d, v8' % step)
        a('s_cbranch_vccnz %s' % lab)

    c('---- common prologue: pointers go straight into the SRD base words ----')
    a('s_load_dwordx2 s[%d:%d], s[0:1], 8' % (S_K, S_K + 1))
    a('s_load_dwordx2 s[%d:%d], s[0:1], 16' % (S_V, S_V + 1))
    a('s_load_dwordx2 s[%d:%d], s[0:1], 0' % (S_Q, S_Q + 1))
    a('s_load_dwordx2 s[%d:%d], s[0:1], 24' % (S_O, S_O + 1))
    a('s_cmp_ge_u32 s2, %d' % NWG)
    a('s_cbranch_scc1 L_end')
    c('s3 = wave, v0 = lane; flag[wave] = wave + 1')
    a('v_lshrrev_b32 v5, 6, v0')
    a('v_and_b32 v0, 63, v0')
    a('v_readfirstlane_b32 s%d, v5' % S_W)
    a('v_mov_b32 v%d, %d' % (V_FLAG, FLAG))
    a('v_lshl_add_u32 v15, v5, 2, v%d' % V_FLAG)
    a('v_add_u32 v5, 1, v5')
    a('ds_write_b32 v15, v5')
    c('block = 8 * head + position: head = 8j + (x ^ {0,1,4,5}[j]), x = wg & 7, j = wg >> 6, position = (wg >> 3) & 7')
    a('s_lshr_b32 s60, s2, 6')
    a('s_lshl_b32 s60, s60, 2')
    a('s_lshr_b32 s60, 0x5410, s60')
    a('s_xor_b32 s60, s60, s2')
    a('s_and_b32 s60, s60, 7')
    a('s_bfe_u32 s61, s2, 0x30003')
    a('s_and_b32 s2, s2, 0xc0')
    a('s_or_b32 s2, s2, s61')
    a('s_lshl3_add_u32 s2, s60, s2')
    a('s_lshl_b32 s%d, s2, 16' % S_QO)
    c('upwards: entry e = tile e-2, step s = tile s-2; downwards: entry e = tile 15-e, step s = tile 17-s')
    c('s37 = tile stride, s38 = offset of entry 0, s39 = offset of step 2, s[42:43] = downwards mask')
    a('s_movk_i32 s%d, 4096' % S_STR)
    a('s_movk_i32 s61, -8192')
    a('s_and_b32 s60, s2, 1')
    a('s_cmovk_i32 s%d, -4096' % S_STR)
    a('s_cselect_b32 s60, %d, 0' % (15 * 4096))
    a('s_cselect_b32 s61, s60, s61')
    a('s_cselect_b64 s[42:43], -1, 0')
    a('s_add_u32 s%d, s%d, s61' % (S_KVO, S_QO))
    a('s_add_u32 s%d, s%d, s60' % (S_QO, S_QO))
    c('v6 = g = lane >> 4, v7 = m = lane & 15')
    a('v_lshrrev_b32 v6, 4, v0')
    a('v_and_b32 v7, 15, v0')
    a('s_mov_b32 s%d, %d' % (S_Q + 2, NBYTES))
    a('s_mov_b32 s%d, 0x20000' % (S_Q + 3))
    a('s_mov_b64 s[%d:%d], s[%d:%d]' % (S_O + 2, S_O + 3, S_Q + 2, S_Q + 3))
    c('LDS-DMA source offsets for even / odd 4-row groups: row g, chunk m ^ 2 * (row & 7)')
    a('v_lshlrev_b32 v5, 1, v6')
    a('v_xor_b32 v5, v5, v7')
    a('v_lshlrev_b32 v5, 4, v5')
    a('v_lshl_add_u32 v2, v6, 8, v5')
    a('v_xor_b32 v3, 128, v2')
    c('first block of a head: entries 0 and 1 lie before the sequence, an empty SRD zero-fills them')
    a('s_add_u32 s45, s%d, s%d' % (S_KVO, S_STR))
    a('s_and_b32 s%d, s2, 7' % S_POS)
    a('s_cselect_b32 s44, s%d, 0' % S_KVO)
    a('s_cselect_b32 s45, s45, 0')
    a('s_cselect_b32 s%d, s%d, 0' % (S_K + 2, S_Q + 2))
    a('s_mov_b32 s%d, 0x20000' % (S_K + 3))
    a('s_mov_b64 s[%d:%d], s[%d:%d]' % (S_V + 2, S_V + 3, S_K + 2, S_K + 3))
    a('s_mov_b32 m0, %d' % KV0)
    a('s_cmp_lg_u32 s%d, 0' % S_W)
    a('s_waitcnt lgkmcnt(0)')
    a('s_cbranch_scc1 L_other')

    c('=================== loader ===================')

    def dma(i, r, so):
        a('buffer_load_dwordx4 v%d, %s, s%d offen offset:%d%s lds' % (2 + (i & 1), srd(r), so, i * 1024, LD))

    S_N, S_STEPL, S_T = 52, 53, 55
    c('entries 0 and 1')
    fill = ['s_setprio 3', 's_mov_b32 s46, s%d' % S_QO, 's_mov_b32 s47, 0']
    for n in range(4):
        for i in range(4):
            dma(i, S_V if n & 1 else S_K, 44 + (n >> 1))
        if n < 3:
            a('s_addk_i32 m0, 4096')
            a(fill[n])
    c('(memory offset, LDS address) of the current / next / third array: s[46:47], s[48:49], s[50:51]')
    c('s52 = tiles issued, s53 = LDS stride, v4 = published count')
    a('s_lshl1_add_u32 s48, s%d, s%d' % (S_STR, S_KVO))
    a('s_mov_b32 s50, s48')
    a('s_mov_b32 s49, %d' % (KV0 + 2 * 8192))
    a('s_add_u32 s51, s49, 4096')
    a('s_mov_b32 s%d, 4' % S_N)
    a('s_movk_i32 s%d, 4096' % S_STEPL)
    a('v_mov_b32 v4, %d' % (3 - OFF))
    a('s_movk_i32 s58, 128')
    a('v_mov_b32 v5, 1024')
    a('s_barrier')
    a('s_branch L_ld')
    a('.balignl 64, %s' % ENDPGM)
    if al:
        a('.fill %d, 4, %s' % (al, ENDPGM))
    c('one tile per pass: all but the youngest 9 tiles have landed after the wait')
    a('L_ld:')
    a('s_mov_b32 m0, s47')
    a('s_waitcnt vmcnt(%d)' % RW)
    a('v_add_u32 v4, 1, v4')
    a('ds_write_b32 v%d, v4' % V_FLAG)
    a('ds_read_b128 v[8:11], v%d offset:4' % V_FLAG)
    a('s_cmp_ge_u32 s%d, %d' % (S_N, fast_from))
    a('s_cbranch_scc1 L_tail')
    c('four rows (1 KiB) per request')
    a('L_row:')
    a('s_waitcnt vmcnt(%d)' % (RW + 3))
    a('buffer_load_dwordx4 v2, %s, s46 offen%s lds' % (srd(S_Q), LD))
    a('v_xad_u32 v2, v2, s58, v5')
    a('s_addk_i32 m0, 1024')
    a('s_and_b32 s60, m0, 4095')
    a('s_cbranch_scc1 L_row')
    a('v_xor_b32 v2, s58, v3')
    a('L_next:')
    a('s_add_u32 s46, s46, s%d' % S_STR)
    a('s_add_u32 s47, s47, s%d' % S_STEPL)
    a('s_add_u32 s%d, s%d, 1' % (S_N, S_N))
    a('s_and_b32 s60, s%d, 3' % S_N)
    a('s_cbranch_scc1 L_ld')
    c('chunk of four tiles done: wrap the ring, rotate Q -> K -> V')
    a('s_cmp_ge_u32 s47, %d' % KVEND)
    a('s_cselect_b32 s60, %d, 0' % (NSLOT * 8192))
    a('s_sub_u32 s47, s47, s60')
    for x, y, z in ((S_Q, S_K, S_V), (46, 48, 50)):
        a('s_mov_b64 s[60:61], s[%d:%d]' % (x, x + 1))
        a('s_mov_b64 s[%d:%d], s[%d:%d]' % (x, x + 1, y, y + 1))
        a('s_mov_b64 s[%d:%d], s[%d:%d]' % (y, y + 1, z, z + 1))
        a('s_mov_b64 s[%d:%d], s[60:61]' % (z, z + 1))
    a('s_movk_i32 s%d, 4096' % S_STEPL)
    a('s_cmp_ge_u32 s47, %d' % KV0)
    a('s_cmovk_i32 s%d, 8192' % S_STEPL)
    c('ring slots are reused from tile 32 (steps <= 5 must be done) and from tile 44 (steps <= 9)')
    a('s_cmp_ge_u32 s%d, 44' % S_N)
    a('s_cselect_b32 s%d, 9, 5' % S_T)
    a('s_cmp_lt_u32 s%d, 32' % S_N)
    a('s_cmov_b32 s%d, 0' % S_T)
    a('s_cmp_eq_u32 s%d, 52' % S_N)
    a('s_cbranch_scc1 L_drain')
    a('L_free:')
    a('s_waitcnt lgkmcnt(0)')
    a('v_min3_i32 v8, v8, v9, v10')
    a('v_min_i32 v8, v8, v11')
    a('v_cmp_lt_i32 vcc, s%d, v8' % S_T)
    a('s_cbranch_vccnz L_ld')
    a('ds_read_b128 v[8:11], v%d offset:4' % V_FLAG)
    a('s_branch L_free')
    c('last K and V chunks (half of them shared with the neighbour block): whole tile at once')
    a('L_tail:')
    for i in range(4):
        dma(i, S_Q, 46)
    a('s_branch L_next')
    c('publish the remaining tiles as they land')
    a('L_drain:')
    for left in range(OFF, -1, -1):
        a('v_max_i32 v4, %d, v4' % (52 - left))
        a('s_waitcnt vmcnt(%d)' % (4 * left))
        a('ds_write_b32 v%d, v4' % V_FLAG)
    a('s_endpgm')

    V_LIN, V_ST0, V_ST1 = 2, 3, 4
    a('L_other:')
    a('s_barrier')
    c('output store offsets for even / odd 4-row groups: row g, chunk m ^ (row & 7)')
    a('v_xor_b32 v5, v7, v6')
    a('v_lshlrev_b32 v5, 4, v5')
    a('v_lshl_add_u32 v%d, v6, 8, v5' % V_ST0)
    a('v_xor_b32 v%d, 64, v%d' % (V_ST1, V_ST0))
    a('s_cmp_le_u32 s%d, %d' % (S_W, NC))
    a('s_cbranch_scc1 L_consumer')

    c('=================== storer: steps 2..13 ===================')
    a('v_lshlrev_b32 v%d, 4, v0' % V_LIN)

    def sread(r):
        c('output tiles of steps %d..%d' % (4 * r + 2, 4 * r + 5))
        wait_steps('L_sr%d' % r, 5 + 4 * r)
        for n in range(16 * r, 16 * r + 16):
            if n % 16 == 14:
                a('s_waitcnt lgkmcnt(6)')
            a('ds_read_b128 v[%d:%d], v%d offset:%d' % (16 + 4 * n, 19 + 4 * n, V_LIN, 1024 * n))

    sread(0)
    sread(1)
    c('DRAM serves reads and writes best in separate phases: write once only the last V chunk is in flight')
    wait_landed('L_strig', trig)
    for n in range(48):
        if n == 32:
            sread(2)
        if n in (40, 44):
            a('s_waitcnt lgkmcnt(%d)' % (44 - n))
        a('buffer_store_dwordx4 v[%d:%d], v%d, %s, s%d offen offset:%d%s' % (
            16 + 4 * n, 19 + 4 * n, V_ST0 + (n & 1), srd(S_O), S_QO, 1024 * (n & 3), ST))
        if n & 3 == 3 and n < 47:
            a('s_add_u32 s%d, s%d, s%d' % (S_QO, S_QO, S_STR))
    a('s_endpgm')

    c('=================== consumer w: steps w+1, w+5, w+9, w+13 ===================')
    a('L_consumer:')
    S_STEP, S_X, S_QS, S_C, S_NEG, S_TH, S_SCALE, S_HI = 44, 45, 48, 51, 52, 53, 54, 55
    S_MASK = 28
    V_M0, V_M1, V_T0, V_T1, V_T2, V_T3 = 5, 6, 10, 11, 12, 14
    C_K, C_V, C_O = 16, 20, 28
    A_Q, A_K, A_V, A_O = 32, 36, 48, 72
    R_Q, R_K, R_V = 76, 92, 140
    V_S, V_P, V_O = 188, 200, 208
    R_OUT = R_Q
    c('K/Q fragment offsets: row m, chunk (4s + g) ^ 2 * (m & 7)')
    a('v_and_b32 v13, 7, v7')
    a('v_lshlrev_b32 v5, 1, v13')
    a('v_xor_b32 v5, v5, v6')
    a('v_lshlrev_b32 v5, 4, v5')
    a('v_lshl_add_u32 v%d, v7, 8, v5' % C_K)
    a('v_xor_b32 v%d, 64, v%d' % (C_K + 1, C_K))
    a('v_xor_b32 v%d, 128, v%d' % (C_K + 2, C_K))
    a('v_xor_b32 v%d, 64, v%d' % (C_K + 3, C_K + 2))
    c('V transpose-read offsets: row lane >> 2, 32-byte group t ^ (row & 7), 8-byte piece lane & 3')
    a('v_lshrrev_b32 v14, 2, v0')
    a('v_and_b32 v5, 7, v14')
    a('v_lshlrev_b32 v5, 5, v5')
    a('v_lshl_add_u32 v5, v14, 8, v5')
    a('v_and_b32 v14, 3, v0')
    a('v_lshl_add_u32 v%d, v14, 3, v5' % C_V)
    a('v_xor_b32 v%d, 128, v%d' % (C_V + 4, C_V))
    for t in (0, 4):
        a('v_xor_b32 v%d, 64, v%d' % (C_V + t + 2, C_V + t))
    for t in (0, 2, 4, 6):
        a('v_xor_b32 v%d, 32, v%d' % (C_V + t + 1, C_V + t))
    c('output staging offsets: row m, chunk (2t + (g >> 1)) ^ (m & 7), half g & 1')
    a('v_lshrrev_b32 v5, 1, v6')
    a('v_xor_b32 v5, v5, v13')
    a('v_lshlrev_b32 v5, 4, v5')
    a('v_lshl_add_u32 v5, v7, 8, v5')
    a('v_and_b32 v14, 1, v6')
    a('v_lshl_add_u32 v%d, v14, 3, v5' % C_O)
    a('v_xor_b32 v%d, 64, v%d' % (C_O + 2, C_O))
    for t in (0, 2):
        a('v_xor_b32 v%d, 32, v%d' % (C_O + t + 1, C_O + t))
    c('window masks: key 4g + r of entry Z is visible to query m iff (4g + r <= m) xor downwards,')
    c('otherwise the same key position of entry X is visible; entry Y is always visible')
    a('v_lshlrev_b32 v13, 2, v6')
    a('v_sub_u32 v13, v7, v13')
    for r in range(4):
        a('v_cmp_le_i32 vcc, %d, v13' % r)
        a('s_xor_b64 s[%d:%d], vcc, s[42:43]' % (S_MASK + 2 * r, S_MASK + 2 * r + 1))
    a('v_mov_b32 v13, 0xffff')
    for w, vm in ((0, V_M0), (1, V_M1)):
        a('v_cndmask_b32 v10, 0, v13, s[%d:%d]' % (S_MASK + 4 * w, S_MASK + 4 * w + 1))
        a('v_cndmask_b32 v14, 0, v13, s[%d:%d]' % (S_MASK + 4 * w + 2, S_MASK + 4 * w + 3))
        a('v_lshl_or_b32 v%d, v14, 16, v10' % vm)
    c('s51 = log2(e), s54 = D^-0.5, s52 = score bias of entries before the sequence start')
    a('s_mov_b32 s%d, %s' % (S_C, f32(math.log2(math.e))))
    a('s_mov_b32 s%d, %s' % (S_SCALE, f32(128.0 ** -0.5)))
    a('s_mov_b32 s%d, 0xffff0000' % S_HI)
    a('s_cmp_eq_u32 s%d, 0' % S_POS)
    a('s_cselect_b32 s%d, %s, 0' % (S_NEG, f32(-1e30)))
    c('s44 = step, s53 = landed count it needs, s48 = Q slot, s[45:47] = slots of X, Y, Z')
    a('s_sub_u32 s60, s%d, 1' % S_W)
    a('s_add_u32 s%d, s60, 2' % S_STEP)
    a('s_add_u32 s%d, s60, 9' % S_TH)
    a('s_lshl_b32 s%d, s60, 12' % S_QS)
    a('s_lshl_b32 s61, s60, 13')
    a('s_add_u32 s%d, s61, %d' % (S_X, KV0))
    a('v_lshl_add_u32 v%d, v0, 4, s%d' % (V_LIN, S_QS))
    a('s_add_u32 s60, s60, 12')
    a('s_mul_i32 s61, s60, s%d' % S_STR)
    a('s_add_u32 s%d, s%d, s61' % (S_QO, S_QO))

    a('L_round:')
    for x in (1, 2):
        a('s_add_u32 s%d, s%d, 8192' % (S_X + x, S_X + x - 1))
        a('s_cmp_eq_u32 s%d, %d' % (S_X + x, KVEND))
        a('s_cmov_b32 s%d, %d' % (S_X + x, KV0))
    for s in range(4):
        a('v_add_u32 v%d, s%d, v%d' % (A_Q + s, S_QS, C_K + s))
        for x in range(3):
            a('v_add_u32 v%d, s%d, v%d' % (A_K + 4 * x + s, S_X + x, C_K + s))
    for t in range(8):
        for x in range(3):
            a('v_add_u32 v%d, s%d, v%d' % (A_V + 8 * x + t, S_X + x, C_V + t))
    for t in range(4):
        a('v_add_u32 v%d, s%d, v%d' % (A_O + t, S_QS, C_O + t))
    c('score accumulators of X and Y start at the bias')
    a('s_cmp_lt_u32 s%d, 4' % S_STEP)
    a('s_cselect_b32 s60, s%d, 0' % S_NEG)
    a('s_cmp_lt_u32 s%d, 3' % S_STEP)
    a('s_cselect_b32 s61, s%d, 0' % S_NEG)
    for r in range(4):
        a('v_mov_b32 v%d, s60' % (V_S + r))
        a('v_mov_b32 v%d, s61' % (V_S + 4 + r))
    a('s_add_u32 s60, s%d, %d' % (S_STEP, NC))
    a('v_mov_b32 v13, s60')
    c('wait for Q and K')
    wait_landed('L_poll', 's%d' % S_TH, V_T0)

    lds_q = []

    def lds(text, tag):
        a(text)
        lds_q.append(tag)

    def lwait(tags):
        last = max(i for i, t in enumerate(lds_q) if t in tags)
        a('s_waitcnt lgkmcnt(%d)' % (len(lds_q) - 1 - last))

    def kread(s, x):
        if x < 0:
            lds('ds_read_b128 v[%d:%d], v%d' % (R_Q + 4 * s, R_Q + 4 * s + 3, A_Q + s), ('Q', s))
        else:
            lds('ds_read_b128 v[%d:%d], v%d' % (R_K + 16 * x + 4 * s, R_K + 16 * x + 4 * s + 3, A_K + 4 * x + s), ('K', s, x))

    def qk(s, x):
        d = 'v[%d:%d]' % (V_S + 4 * x, V_S + 4 * x + 3)
        cc = '0' if (s == 0 and x == 2) else d
        a('v_mfma_f32_16x16x32_bf16 %s, v[%d:%d], v[%d:%d], %s' % (
            d, R_K + 16 * x + 4 * s, R_K + 16 * x + 4 * s + 3, R_Q + 4 * s, R_Q + 4 * s + 3, cc))

    c('S^T = K Q^T: lane (m, g) register r holds key 4g + r, query m')
    XO = (0, 2, 1)
    pend = [(s, x) for s in range(4) for x in (-1,) + XO]
    for _ in range(12):
        kread(*pend.pop(0))
    for s in range(4):
        for x in XO:
            lwait([('Q', s), ('K', s, x)])
            qk(s, x)
            if pend:
                kread(*pend.pop(0))
                if pend and pend[0][1] == XO[0]:
                    kread(*pend.pop(0))
    SA, SB, SC = V_S, V_S + 4, V_S + 8
    a('s_add_u32 s%d, s%d, 4' % (S_TH, S_TH))
    a('ds_read_b32 v8, v%d' % V_FLAG)
    c('merge the complementary triangles of X and Z: 8 visible scores per lane')
    for r in range(4):
        a('v_cndmask_b32 v%d, v%d, v%d, s[%d:%d]' % (SA + r, SA + r, SC + r, S_MASK + 2 * r, S_MASK + 2 * r + 1))
    c('scores = bf16(bf16(q.k) * D^-0.5), the rounding points of the reference')
    for rep in range(2):
        for w in range(4):
            a('v_cvt_pk_bf16_f32 v%d, v%d, v%d' % (SA + 2 * w + 1, SA + 2 * w, SA + 2 * w + 1))
        for w in range(4):
            a('v_lshlrev_b32 v%d, 16, v%d' % (SA + 2 * w, SA + 2 * w + 1))
            a('v_and_b32 v%d, s%d, v%d' % (SA + 2 * w + 1, S_HI, SA + 2 * w + 1))
        if rep == 0:
            for r in range(8):
                a('v_mul_f32 v%d, s%d, v%d' % (SA + r, S_SCALE, SA + r))
    c('row maximum over the lane and the four lane groups')
    a('v_max3_f32 v%d, v%d, v%d, v%d' % (V_T2, SA, SA + 1, SA + 2))
    a('v_max3_f32 v%d, v%d, v%d, v%d' % (V_T3, SA + 3, SB, SB + 1))
    a('v_max3_f32 v%d, v%d, v%d, v%d' % (V_T2, V_T2, SB + 2, SB + 3))

    def xreduce(op, fill):
        a('%s v%d, v%d, v%d' % (op, V_T0, V_T2, V_T3))
        a('%s v%d, v%d, v%d' % (op, V_T1, V_T2, V_T3))
        fill()
        a('v_permlane32_swap_b32 v%d, v%d' % (V_T0, V_T1))
        a('%s v%d, v%d, v%d' % (op, V_T2, V_T0, V_T1))
        a('%s v%d, v%d, v%d' % (op, V_T3, V_T0, V_T1))
        fill()
        a('v_permlane16_swap_b32 v%d, v%d' % (V_T2, V_T3))
        a('%s v%d, v%d, v%d' % (op, V_T0, V_T2, V_T3))

    xreduce('v_max_f32', lambda: None)
    c('exp(score - max)')
    a('v_mul_f32 v%d, s%d, v%d' % (V_T0, S_C, V_T0))
    for r in range(8):
        a('v_fma_f32 v%d, v%d, s%d, -v%d' % (SA + r, SA + r, S_C, V_T0))
    for r in range(8):
        a('v_exp_f32 v%d, v%d' % (SA + r, SA + r))
        if r == 3:
            a('v_add_f32 v%d, v%d, v%d' % (V_T2, SA, SA + 1))
        if r == 4:
            a('v_add_f32 v%d, v%d, v%d' % (V_T3, SA + 2, SA + 3))
        if r == 6:
            a('v_add_f32 v%d, v%d, v%d' % (V_T2, V_T2, SA + 4))
            a('v_add_f32 v%d, v%d, v%d' % (V_T3, V_T3, SA + 5))
    c('wait for V')
    a('L_poll2:')
    a('s_waitcnt lgkmcnt(0)')
    a('v_cmp_le_i32 vcc, s%d, v8' % S_TH)
    a('s_cbranch_vccnz L_poll2_x')
    a('ds_read_b32 v8, v%d' % V_FLAG)
    a('s_branch L_poll2')
    a('L_poll2_x:')
    del lds_q[:]
    vreads = [(t, 2) for t in range(4)] + [(t, x) for t in range(4) for x in (0, 1)] + \
             [(t, 2) for t in range(4, 8)] + [(t, x) for t in range(4, 8) for x in (0, 1)]

    def vread(n):
        for _ in range(n):
            t, x = vreads.pop(0)
            lds('ds_read_b64_tr_b16 v[%d:%d], v%d offset:4096' % (
                R_V + 6 * t + 2 * x, R_V + 6 * t + 2 * x + 1, A_V + 8 * x + t), ('V', t, x))

    c('V^T fragments by transposing reads, row sum, P = bf16(exp / sum) split back into X, Y, Z')
    vread(8)
    a('v_add_f32 v%d, v%d, v%d' % (V_T2, V_T2, SA + 6))
    a('v_add_f32 v%d, v%d, v%d' % (V_T3, V_T3, SA + 7))
    xreduce('v_add_f32', lambda: vread(2))
    a('v_rcp_f32 v%d, v%d' % (V_T0, V_T0))
    PA, PB, PC = V_P, V_P + 2, V_P + 4
    lwait([('V', 3, 2)])
    vread(2)
    for r in range(4):
        a('v_mul_f32 v%d, v%d, v%d' % (SA + r, SA + r, V_T0))
    vread(2)
    for w in range(2):
        a('v_cvt_pk_bf16_f32 v%d, v%d, v%d' % (PA + w, SA + 2 * w, SA + 2 * w + 1))
    for w, vm in ((0, V_M0), (1, V_M1)):
        a('v_and_b32 v%d, v%d, v%d' % (PC + w, PA + w, vm))

    def pv16(t):
        a('v_mfma_f32_16x16x16_bf16 v[%d:%d], v[%d:%d], v[%d:%d], 0' % (
            V_O + 4 * t, V_O + 4 * t + 3, R_V + 6 * t + 4, R_V + 6 * t + 5, PC, PC + 1))

    def pv32(t):
        a('v_mfma_f32_16x16x32_bf16 v[%d:%d], v[%d:%d], v[%d:%d], v[%d:%d]' % (
            V_O + 4 * t, V_O + 4 * t + 3, R_V + 6 * t, R_V + 6 * t + 3, PA, PA + 3, V_O + 4 * t, V_O + 4 * t + 3))

    def cvt(t):
        a('v_cvt_pk_bf16_f32 v%d, v%d, v%d' % (R_OUT + 2 * t, V_O + 4 * t, V_O + 4 * t + 1))
        a('v_cvt_pk_bf16_f32 v%d, v%d, v%d' % (R_OUT + 2 * t + 1, V_O + 4 * t + 2, V_O + 4 * t + 3))

    def owr(t):
        a('ds_write_b64 v%d, v[%d:%d] offset:%d' % (A_O + (t & 3), R_OUT + 2 * t, R_OUT + 2 * t + 1, 128 * (t >> 2)))

    c('O^T = V^T P^T: K=16 MFMA for Z, K=32 MFMA for X and Y; lane (m, g) holds d = 16t + 4g + r of query m')
    a('v_mul_f32 v%d, v%d, v%d' % (SB, SB, V_T0))
    a('v_mul_f32 v%d, v%d, v%d' % (SB + 1, SB + 1, V_T0))
    pv16(0)
    lwait([('V', 2, 1)])
    vread(2)
    a('v_mul_f32 v%d, v%d, v%d' % (SB + 2, SB + 2, V_T0))
    a('v_mul_f32 v%d, v%d, v%d' % (SB + 3, SB + 3, V_T0))
    pv16(1)
    vread(2)
    for w in range(2):
        a('v_cvt_pk_bf16_f32 v%d, v%d, v%d' % (PB + w, SB + 2 * w, SB + 2 * w + 1))
    pv16(2)
    vread(2)
    for w in range(2):
        a('v_xor_b32 v%d, v%d, v%d' % (PA + w, PA + w, PC + w))
    pv16(3)
    vread(2)
    assert not vreads
    lwait([('V', 7, 2)])
    pv32(0); pv16(4); pv32(1); pv16(5); pv32(2); pv16(6); pv32(3); pv16(7)
    a('s_waitcnt lgkmcnt(0)')
    a('s_addk_i32 s%d, %d' % (S_QS, NC * 4096))
    c('bf16 output tile replaces the Q tile in LDS')
    cvt(0); pv32(4); owr(0)
    cvt(1); pv32(5); owr(1)
    cvt(2); pv32(6); owr(2)
    cvt(3); pv32(7); owr(3)
    for t in range(4, 8):
        cvt(t); owr(t)
    a('ds_write_b32 v15, v13')
    a('s_add_u32 s%d, s%d, %d' % (S_X, S_X, NC * 8192))
    a('s_cmp_ge_u32 s%d, %d' % (S_X, KVEND))
    a('s_cselect_b32 s60, %d, 0' % (NSLOT * 8192))
    a('s_sub_u32 s%d, s%d, s60' % (S_X, S_X))
    a('s_add_u32 s%d, s%d, 8' % (S_TH, S_TH))
    a('s_add_u32 s%d, s%d, %d' % (S_STEP, S_STEP, NC))
    a('s_cmp_lt_u32 s%d, 18' % S_STEP)
    a('s_cbranch_scc1 L_round')
    c('each consumer stores its last tile itself')
    for n in range(4):
        a('ds_read_b128 v[%d:%d], v%d offset:%d' % (R_K + 4 * n, R_K + 4 * n + 3, V_LIN, 49152 + 1024 * n))
    for n in range(4):
        a('s_waitcnt lgkmcnt(%d)' % (3 - n))
        a('buffer_store_dwordx4 v[%d:%d], v%d, %s, s%d offen offset:%d%s' % (
            R_K + 4 * n, R_K + 4 * n + 3, V_ST0 + (n & 1), srd(S_O), S_QO, 1024 * n, ST))
    a('L_end:')
    a('s_endpgm')
    s, info = finish(a, NWG, 64 * (NC + 2), LDS, comment=OVERVIEW)
    s = s.replace('.p2align 8\n.type',
                  '; unreachable filler: places the entry point at the start of a 4 KiB page\n'
                  '.p2align 12\n.fill %d, 4, %s\n.p2align 8\n.type' % (0xd00 // 4, ENDPGM))
    return s, info


if __name__ == '__main__':
    kw = {}
    for x in sys.argv[2:]:
        k, v = x.split('=')
        kw[k] = int(v)
    s, info = gen(**kw)
    open(sys.argv[1], 'w').write(s)
    print(sys.argv[1], info)
```

```python
import sys
import math
import struct
from asmlib import Asm, finish

NBYTES = 32 * 2048 * 128 * 2
ENDPGM = '0xbf810000'

OVERVIEW = """
Sliding-window (w=32) causal attention, one workgroup per 256 query rows (16 tiles of 16 rows).
  wave 0     loader    streams K/V/Q tiles HBM -> LDS with LDS-DMA, publishes how much has landed
  waves 1-4  consumers S^T = K Q^T, softmax, O^T = V^T P^T on MFMA, output tile staged in LDS
  wave 5     storer    keeps the first 12 output tiles in registers, writes them after the reads
Query tile T needs key tiles T-2, T-1, T. "Step" s = 2..17 uses K/V entries s-2, s-1, s (X, Y, Z).
Even blocks walk their rows upwards, odd blocks downwards, so neighbours fetch shared tiles together.
Load order: K0 V0 K1 V1, then 4 rounds of (4 Q tiles, 4 K tiles, 4 V tiles): 52 tiles of 4 KiB.
Inside a chunk, tiles (0, 2) and then (1, 3) are interleaved in 2 KiB pieces: tiles two apart live on
different IO dies, so every request window covers both.
LDS: [0, 64K) Q / output tiles, [64K, 144K) ring of 10 (K, V) slots, then the flag words:
  flag[0] = groups of four requests landed (0..52), flag[1..4] = next unfinished step of each consumer.
Tiles are stored row-major with the 16-byte chunk index XOR-swizzled by the row (conflict-free reads).
The whole kernel fits one 4 KiB code page, the reach of the instruction prefetcher.
"""


def f32(x):
    return '0x%08x' % struct.unpack('<I', struct.pack('<f', x))[0]


def gen(D=36, De=29, topen=48, trig=48):
    a = Asm()
    c = lambda t: a('; ' + t)
    NWG, NC, NSLOT = 256, 4, 10
    KV0 = 65536
    KVEND = KV0 + NSLOT * 8192
    FLAG = KVEND + 12
    LDS = KVEND + 256
    RW, RWE = D - 4, De - 4
    assert RW % 8 == 0
    OFF = RW // 4
    S_Q, S_K, S_V, S_O = 12, 16, 20, 24
    srd = lambda b: 's[%d:%d]' % (b, b + 3)
    S_W, S_STR, S_KVO, S_QO, S_POS = 3, 37, 38, 39, 40
    V_FLAG = 1
    LD, ST = ' nt', ' sc1 nt'

    def wait_landed(lab, what, reg=8):
        a('%s:' % lab)
        a('ds_read_b32 v%d, v%d' % (reg, V_FLAG))
        a('s_waitcnt lgkmcnt(0)')
        a('v_cmp_gt_i32 vcc, %s, v%d' % (what, reg))
        a('s_cbranch_vccnz %s' % lab)

    def wait_steps(lab, step):
        a('%s:' % lab)
        a('ds_read_b128 v[8:11], v%d offset:4' % V_FLAG)
        a('s_waitcnt lgkmcnt(0)')
        a('v_min3_i32 v8, v8, v9, v10')
        a('v_min_i32 v8, v8, v11')
        a('v_cmp_ge_i32 vcc, %d, v8' % step)
        a('s_cbranch_vccnz %s' % lab)

    c('---- common prologue: pointers go straight into the SRD base words ----')
    a('s_load_dwordx2 s[%d:%d], s[0:1], 8' % (S_K, S_K + 1))
    a('s_load_dwordx2 s[%d:%d], s[0:1], 16' % (S_V, S_V + 1))
    a('s_load_dwordx2 s[%d:%d], s[0:1], 0' % (S_Q, S_Q + 1))
    a('s_load_dwordx2 s[%d:%d], s[0:1], 24' % (S_O, S_O + 1))
    a('s_cmp_ge_u32 s2, %d' % NWG)
    a('s_cbranch_scc1 L_end')
    c('s3 = wave, v0 = lane; flag[wave] = wave + 1')
    a('v_lshrrev_b32 v5, 6, v0')
    a('v_and_b32 v0, 63, v0')
    a('v_readfirstlane_b32 s%d, v5' % S_W)
    a('v_mov_b32 v%d, %d' % (V_FLAG, FLAG))
    a('v_lshl_add_u32 v15, v5, 2, v%d' % V_FLAG)
    a('v_add_u32 v5, 1, v5')
    a('ds_write_b32 v15, v5')
    c('block = 8 * head + position, bits [x2 x1 i4 x0 i3 i2 i1 i0] with x = wg & 7, i = wg >> 3:')
    c('workgroups 8 apart get whole heads, spread over the HBM stacks (speed only)')
    a('s_bfe_u32 s60, s2, 0x40003')
    a('s_and_b32 s61, s2, 1')
    a('s_lshl4_add_u32 s60, s61, s60')
    a('s_lshr_b32 s61, s2, 7')
    a('s_and_b32 s2, s2, 6')
    a('s_or_b32 s2, s2, s61')
    a('s_lshl_b32 s2, s2, 5')
    a('s_or_b32 s2, s2, s60')
    a('s_lshl_b32 s%d, s2, 16' % S_QO)
    c('upwards: entry e = tile e-2, step s = tile s-2; downwards: entry e = tile 15-e, step s = tile 17-s')
    c('s37 = tile stride, s38 = offset of entry 0, s39 = offset of step 2, s[42:43] = downwards mask')
    a('s_movk_i32 s%d, 4096' % S_STR)
    a('s_movk_i32 s61, -8192')
    a('s_and_b32 s60, s2, 1')
    a('s_cmovk_i32 s%d, -4096' % S_STR)
    a('s_cselect_b32 s60, %d, 0' % (15 * 4096))
    a('s_cselect_b32 s61, s60, s61')
    a('s_cselect_b64 s[42:43], -1, 0')
    a('s_add_u32 s%d, s%d, s61' % (S_KVO, S_QO))
    a('s_add_u32 s%d, s%d, s60' % (S_QO, S_QO))
    c('v6 = g = lane >> 4, v7 = m = lane & 15')
    a('v_lshrrev_b32 v6, 4, v0')
    a('v_and_b32 v7, 15, v0')
    a('s_mov_b32 s%d, %d' % (S_Q + 2, NBYTES))
    a('s_mov_b32 s%d, 0x20000' % (S_Q + 3))
    a('s_mov_b64 s[%d:%d], s[%d:%d]' % (S_O + 2, S_O + 3, S_Q + 2, S_Q + 3))
    c('LDS-DMA source offsets for even / odd 4-row groups: row g, chunk m ^ 2 * (row & 7)')
    a('v_lshlrev_b32 v5, 1, v6')
    a('v_xor_b32 v5, v5, v7')
    a('v_lshlrev_b32 v5, 4, v5')
    a('v_lshl_add_u32 v2, v6, 8, v5')
    a('v_xor_b32 v3, 128, v2')
    c('first block of a head: entries 0 and 1 lie before the sequence, an empty SRD zero-fills them')
    a('s_add_u32 s45, s%d, s%d' % (S_KVO, S_STR))
    a('s_and_b32 s%d, s2, 7' % S_POS)
    a('s_cselect_b32 s44, s%d, 0' % S_KVO)
    a('s_cselect_b32 s45, s45, 0')
    a('s_cselect_b32 s%d, s%d, 0' % (S_K + 2, S_Q + 2))
    a('s_mov_b32 s%d, 0x20000' % (S_K + 3))
    a('s_mov_b64 s[%d:%d], s[%d:%d]' % (S_V + 2, S_V + 3, S_K + 2, S_K + 3))
    a('s_mov_b32 m0, %d' % KV0)
    a('s_cmp_lg_u32 s%d, 0' % S_W)
    a('s_waitcnt lgkmcnt(0)')
    a('s_cbranch_scc1 L_other')

    c('=================== loader ===================')

    def dma(i, r, so):
        a('buffer_load_dwordx4 v%d, %s, s%d offen offset:%d%s lds' % (2 + (i & 1), srd(r), so, i * 1024, LD))

    S_N, S_STEPL, S_OPEN, S_T = 52, 53, 54, 55
    c('entries 0 and 1')
    fill = ['s_setprio 3', 's_mov_b32 s46, s%d' % S_QO, 's_mov_b32 s47, 0']
    for n in range(4):
        for i in range(4):
            dma(i, S_V if n & 1 else S_K, 44 + (n >> 1))
        if n < 3:
            a('s_addk_i32 m0, 4096')
            a(fill[n])
    c('(memory offset, LDS address) of the current / next / third array: s[46:47], s[48:49], s[50:51]')
    c('s52 = tiles issued, s53 = LDS stride, v4 = published count')
    a('s_lshl1_add_u32 s48, s%d, s%d' % (S_STR, S_KVO))
    a('s_mov_b32 s50, s48')
    a('s_mov_b32 s49, %d' % (KV0 + 2 * 8192))
    a('s_add_u32 s51, s49, 4096')
    a('s_mov_b32 s%d, 4' % S_N)
    a('s_movk_i32 s%d, 4096' % S_STEPL)
    c('prefetch depth: %d requests in flight; %d on even XCDs until tile %d, because odd XCDs get' % (D, De, topen))
    c('the smaller share of a saturated memory system at equal depth (speed only)')
    a('s_getreg_b32 s%d, hwreg(HW_REG_XCC_ID, 0, 1)' % S_OPEN)
    a('s_cmp_eq_u32 s%d, 0' % S_OPEN)
    a('s_cselect_b32 s%d, %d, 0' % (S_OPEN, topen))
    a('v_mov_b32 v4, %d' % (2 - OFF))
    a('s_barrier')

    def window(lab):
        a('s_waitcnt vmcnt(%d)' % RW)
        a('s_cmp_ge_u32 s%d, s%d' % (S_N, S_OPEN))
        a('s_cbranch_scc1 %s' % lab)
        a('s_waitcnt vmcnt(%d)' % RWE)
        a('%s:' % lab)

    c('two tiles per pass: tile t at (s46, s47), tile t + 2 at (s59, s58)')
    a('L_ld:')
    a('s_mov_b32 m0, s47')
    a('s_lshl1_add_u32 s58, s%d, s47' % S_STEPL)
    a('s_lshl1_add_u32 s59, s%d, s46' % S_STR)
    for h in range(2):
        window('L_nw%d' % h)
        if h == 0:
            c('all but the youngest %d groups have landed' % OFF)
            a('v_add_u32 v4, 2, v4')
            a('ds_write_b32 v%d, v4' % V_FLAG)
        dma(2 * h, S_Q, 46)
        dma(2 * h + 1, S_Q, 46)
        a('s_mov_b32 m0, s58')
        if h == 0:
            a('ds_read_b128 v[8:11], v%d offset:4' % V_FLAG)
        else:
            a('s_add_u32 s%d, s%d, 2' % (S_N, S_N))
        dma(2 * h, S_Q, 59)
        dma(2 * h + 1, S_Q, 59)
        if h == 0:
            a('s_mov_b32 m0, s47')
    a('s_add_u32 s46, s46, s%d' % S_STR)
    a('s_add_u32 s47, s47, s%d' % S_STEPL)
    a('s_and_b32 s60, s%d, 3' % S_N)
    a('s_cbranch_scc1 L_ld')
    c('chunk of four tiles done: advance, wrap the ring, rotate Q -> K -> V')
    a('s_lshl1_add_u32 s46, s%d, s46' % S_STR)
    a('s_lshl1_add_u32 s47, s%d, s47' % S_STEPL)
    a('s_cmp_ge_u32 s47, %d' % KVEND)
    a('s_cselect_b32 s60, %d, 0' % (NSLOT * 8192))
    a('s_sub_u32 s47, s47, s60')
    for x, y, z in ((S_Q, S_K, S_V), (46, 48, 50)):
        a('s_mov_b64 s[60:61], s[%d:%d]' % (x, x + 1))
        a('s_mov_b64 s[%d:%d], s[%d:%d]' % (x, x + 1, y, y + 1))
        a('s_mov_b64 s[%d:%d], s[%d:%d]' % (y, y + 1, z, z + 1))
        a('s_mov_b64 s[%d:%d], s[60:61]' % (z, z + 1))
    a('s_movk_i32 s%d, 4096' % S_STEPL)
    a('s_cmp_ge_u32 s47, %d' % KV0)
    a('s_cmovk_i32 s%d, 8192' % S_STEPL)
    c('ring slots are reused from tile 32 (steps <= 5 must be done) and from tile 44 (steps <= 9)')
    a('s_cmp_ge_u32 s%d, 44' % S_N)
    a('s_cselect_b32 s%d, 9, 5' % S_T)
    a('s_cmp_lt_u32 s%d, 32' % S_N)
    a('s_cmov_b32 s%d, 0' % S_T)
    a('s_cmp_eq_u32 s%d, 52' % S_N)
    a('s_cbranch_scc1 L_drain')
    a('L_free:')
    a('s_waitcnt lgkmcnt(0)')
    a('v_min3_i32 v8, v8, v9, v10')
    a('v_min_i32 v8, v8, v11')
    a('v_cmp_lt_i32 vcc, s%d, v8' % S_T)
    a('s_cbranch_vccnz L_ld')
    a('ds_read_b128 v[8:11], v%d offset:4' % V_FLAG)
    a('s_branch L_free')
    c('publish the last K and V tile pairs as they land')
    a('L_drain:')
    assert trig % 2 == 0
    for left in (6, 4, 2, 0):
        a('v_mov_b32 v4, %d' % (52 - left))
        a('s_waitcnt vmcnt(%d)' % (4 * left))
        a('ds_write_b32 v%d, v4' % V_FLAG)
    a('s_endpgm')

    V_LIN, V_ST0, V_ST1 = 2, 3, 4
    a('L_other:')
    a('s_barrier')
    c('output store offsets for even / odd 4-row groups: row g, chunk m ^ (row & 7)')
    a('v_xor_b32 v5, v7, v6')
    a('v_lshlrev_b32 v5, 4, v5')
    a('v_lshl_add_u32 v%d, v6, 8, v5' % V_ST0)
    a('v_xor_b32 v%d, 64, v%d' % (V_ST1, V_ST0))
    a('s_cmp_le_u32 s%d, %d' % (S_W, NC))
    a('s_cbranch_scc1 L_consumer')

    c('=================== storer: steps 2..13 ===================')
    a('v_lshlrev_b32 v%d, 4, v0' % V_LIN)

    def sread(r):
        c('output tiles of steps %d..%d' % (4 * r + 2, 4 * r + 5))
        wait_steps('L_sr%d' % r, 5 + 4 * r)
        for n in range(16 * r, 16 * r + 16):
            if n % 16 == 14:
                a('s_waitcnt lgkmcnt(6)')
            a('ds_read_b128 v[%d:%d], v%d offset:%d' % (16 + 4 * n, 19 + 4 * n, V_LIN, 1024 * n))

    sread(0)
    sread(1)
    c('DRAM serves reads and writes best in separate phases: write once only the last V chunk is in flight')
    wait_landed('L_strig', trig)
    for n in range(48):
        if n == 32:
            sread(2)
        if n in (40, 44):
            a('s_waitcnt lgkmcnt(%d)' % (44 - n))
        a('buffer_store_dwordx4 v[%d:%d], v%d, %s, s%d offen offset:%d%s' % (
            16 + 4 * n, 19 + 4 * n, V_ST0 + (n & 1), srd(S_O), S_QO, 1024 * (n & 3), ST))
        if n & 3 == 3 and n < 47:
            a('s_add_u32 s%d, s%d, s%d' % (S_QO, S_QO, S_STR))
    a('s_endpgm')

    c('=================== consumer w: steps w+1, w+5, w+9, w+13 ===================')
    a('L_consumer:')
    S_STEP, S_X, S_QS, S_C, S_NEG, S_TH, S_SCALE, S_HI = 44, 45, 48, 51, 52, 53, 54, 55
    S_MASK = 28
    V_M0, V_M1, V_T0, V_T1, V_T2, V_T3 = 5, 6, 10, 11, 12, 14
    C_K, C_V, C_O = 16, 20, 28
    A_Q, A_K, A_V, A_O = 32, 36, 48, 72
    R_Q, R_K, R_V = 76, 92, 140
    V_S, V_P, V_O = 188, 200, 208
    R_OUT = R_Q
    c('K/Q fragment offsets: row m, chunk (4s + g) ^ 2 * (m & 7)')
    a('v_and_b32 v13, 7, v7')
    a('v_lshlrev_b32 v5, 1, v13')
    a('v_xor_b32 v5, v5, v6')
    a('v_lshlrev_b32 v5, 4, v5')
    a('v_lshl_add_u32 v%d, v7, 8, v5' % C_K)
    a('v_xor_b32 v%d, 64, v%d' % (C_K + 1, C_K))
    a('v_xor_b32 v%d, 128, v%d' % (C_K + 2, C_K))
    a('v_xor_b32 v%d, 64, v%d' % (C_K + 3, C_K + 2))
    c('V transpose-read offsets: row lane >> 2, 32-byte group t ^ (row & 7), 8-byte piece lane & 3')
    a('v_lshrrev_b32 v14, 2, v0')
    a('v_and_b32 v5, 7, v14')
    a('v_lshlrev_b32 v5, 5, v5')
    a('v_lshl_add_u32 v5, v14, 8, v5')
    a('v_and_b32 v14, 3, v0')
    a('v_lshl_add_u32 v%d, v14, 3, v5' % C_V)
    a('v_xor_b32 v%d, 128, v%d' % (C_V + 4, C_V))
    for t in (0, 4):
        a('v_xor_b32 v%d, 64, v%d' % (C_V + t + 2, C_V + t))
    for t in (0, 2, 4, 6):
        a('v_xor_b32 v%d, 32, v%d' % (C_V + t + 1, C_V + t))
    c('output staging offsets: row m, chunk (2t + (g >> 1)) ^ (m & 7), half g & 1')
    a('v_lshrrev_b32 v5, 1, v6')
    a('v_xor_b32 v5, v5, v13')
    a('v_lshlrev_b32 v5, 4, v5')
    a('v_lshl_add_u32 v5, v7, 8, v5')
    a('v_and_b32 v14, 1, v6')
    a('v_lshl_add_u32 v%d, v14, 3, v5' % C_O)
    a('v_xor_b32 v%d, 64, v%d' % (C_O + 2, C_O))
    for t in (0, 2):
        a('v_xor_b32 v%d, 32, v%d' % (C_O + t + 1, C_O + t))
    c('window masks: key 4g + r of entry Z is visible to query m iff (4g + r <= m) xor downwards,')
    c('otherwise the same key position of entry X is visible; entry Y is always visible')
    a('v_lshlrev_b32 v13, 2, v6')
    a('v_sub_u32 v13, v7, v13')
    for r in range(4):
        a('v_cmp_le_i32 vcc, %d, v13' % r)
        a('s_xor_b64 s[%d:%d], vcc, s[42:43]' % (S_MASK + 2 * r, S_MASK + 2 * r + 1))
    a('v_mov_b32 v13, 0xffff')
    for w, vm in ((0, V_M0), (1, V_M1)):
        a('v_cndmask_b32 v10, 0, v13, s[%d:%d]' % (S_MASK + 4 * w, S_MASK + 4 * w + 1))
        a('v_cndmask_b32 v14, 0, v13, s[%d:%d]' % (S_MASK + 4 * w + 2, S_MASK + 4 * w + 3))
        a('v_lshl_or_b32 v%d, v14, 16, v10' % vm)
    c('s51 = log2(e), s54 = D^-0.5, s52 = score bias of entries before the sequence start')
    a('s_mov_b32 s%d, %s' % (S_C, f32(math.log2(math.e))))
    a('s_mov_b32 s%d, %s' % (S_SCALE, f32(128.0 ** -0.5)))
    a('s_mov_b32 s%d, 0xffff0000' % S_HI)
    a('s_cmp_eq_u32 s%d, 0' % S_POS)
    a('s_cselect_b32 s%d, %s, 0' % (S_NEG, f32(-1e30)))
    c('s44 = step, s53 = landed count it needs, s48 = Q slot, s[45:47] = slots of X, Y, Z')
    a('s_sub_u32 s60, s%d, 1' % S_W)
    a('s_add_u32 s%d, s60, 2' % S_STEP)
    a('s_cmp_eq_u32 s60, 0')
    a('s_cselect_b32 s%d, 10, 12' % S_TH)
    a('s_lshl_b32 s%d, s60, 12' % S_QS)
    a('s_lshl_b32 s61, s60, 13')
    a('s_add_u32 s%d, s61, %d' % (S_X, KV0))
    a('v_lshl_add_u32 v%d, v0, 4, s%d' % (V_LIN, S_QS))
    a('s_add_u32 s60, s60, 12')
    a('s_mul_i32 s61, s60, s%d' % S_STR)
    a('s_add_u32 s%d, s%d, s61' % (S_QO, S_QO))

    a('L_round:')
    for x in (1, 2):
        a('s_add_u32 s%d, s%d, 8192' % (S_X + x, S_X + x - 1))
        a('s_cmp_eq_u32 s%d, %d' % (S_X + x, KVEND))
        a('s_cmov_b32 s%d, %d' % (S_X + x, KV0))
    for s in range(4):
        a('v_add_u32 v%d, s%d, v%d' % (A_Q + s, S_QS, C_K + s))
        for x in range(3):
            a('v_add_u32 v%d, s%d, v%d' % (A_K + 4 * x + s, S_X + x, C_K + s))
    for t in range(8):
        for x in range(3):
            a('v_add_u32 v%d, s%d, v%d' % (A_V + 8 * x + t, S_X + x, C_V + t))
    for t in range(4):
        a('v_add_u32 v%d, s%d, v%d' % (A_O + t, S_QS, C_O + t))
    c('score accumulators of X and Y start at the bias')
    a('s_cmp_lt_u32 s%d, 4' % S_STEP)
    a('s_cselect_b32 s60, s%d, 0' % S_NEG)
    a('s_cmp_lt_u32 s%d, 3' % S_STEP)
    a('s_cselect_b32 s61, s%d, 0' % S_NEG)
    for r in range(4):
        a('v_mov_b32 v%d, s60' % (V_S + r))
        a('v_mov_b32 v%d, s61' % (V_S + 4 + r))
    a('s_add_u32 s60, s%d, %d' % (S_STEP, NC))
    a('v_mov_b32 v13, s60')
    c('wait for Q and K')
    wait_landed('L_poll', 's%d' % S_TH, V_T0)

    lds_q = []

    def lds(text, tag):
        a(text)
        lds_q.append(tag)

    def lwait(tags):
        last = max(i for i, t in enumerate(lds_q) if t in tags)
        a('s_waitcnt lgkmcnt(%d)' % (len(lds_q) - 1 - last))

    def kread(s, x):
        if x < 0:
            lds('ds_read_b128 v[%d:%d], v%d' % (R_Q + 4 * s, R_Q + 4 * s + 3, A_Q + s), ('Q', s))
        else:
            lds('ds_read_b128 v[%d:%d], v%d' % (R_K + 16 * x + 4 * s, R_K + 16 * x + 4 * s + 3, A_K + 4 * x + s), ('K', s, x))

    def qk(s, x):
        d = 'v[%d:%d]' % (V_S + 4 * x, V_S + 4 * x + 3)
        cc = '0' if (s == 0 and x == 2) else d
        a('v_mfma_f32_16x16x32_bf16 %s, v[%d:%d], v[%d:%d], %s' % (
            d, R_K + 16 * x + 4 * s, R_K + 16 * x + 4 * s + 3, R_Q + 4 * s, R_Q + 4 * s + 3, cc))

    c('S^T = K Q^T: lane (m, g) register r holds key 4g + r, query m')
    XO = (0, 2, 1)
    pend = [(s, x) for s in range(4) for x in (-1,) + XO]
    for _ in range(12):
        kread(*pend.pop(0))
    for s in range(4):
        for x in XO:
            lwait([('Q', s), ('K', s, x)])
            qk(s, x)
            if pend:
                kread(*pend.pop(0))
                if pend and pend[0][1] == XO[0]:
                    kread(*pend.pop(0))
    SA, SB, SC = V_S, V_S + 4, V_S + 8
    a('s_add_u32 s%d, s%d, 4' % (S_TH, S_TH))
    a('ds_read_b32 v8, v%d' % V_FLAG)
    c('merge the complementary triangles of X and Z: 8 visible scores per lane')
    for r in range(4):
        a('v_cndmask_b32 v%d, v%d, v%d, s[%d:%d]' % (SA + r, SA + r, SC + r, S_MASK + 2 * r, S_MASK + 2 * r + 1))
    c('scores = bf16(bf16(q.k) * D^-0.5), the rounding points of the reference')
    for rep in range(2):
        for w in range(4):
            a('v_cvt_pk_bf16_f32 v%d, v%d, v%d' % (SA + 2 * w + 1, SA + 2 * w, SA + 2 * w + 1))
        for w in range(4):
            a('v_lshlrev_b32 v%d, 16, v%d' % (SA + 2 * w, SA + 2 * w + 1))
            a('v_and_b32 v%d, s%d, v%d' % (SA + 2 * w + 1, S_HI, SA + 2 * w + 1))
        if rep == 0:
            for r in range(8):
                a('v_mul_f32 v%d, s%d, v%d' % (SA + r, S_SCALE, SA + r))
    c('row maximum over the lane and the four lane groups')
    a('v_max3_f32 v%d, v%d, v%d, v%d' % (V_T2, SA, SA + 1, SA + 2))
    a('v_max3_f32 v%d, v%d, v%d, v%d' % (V_T3, SA + 3, SB, SB + 1))
    a('v_max3_f32 v%d, v%d, v%d, v%d' % (V_T2, V_T2, SB + 2, SB + 3))

    def xreduce(op, fill):
        a('%s v%d, v%d, v%d' % (op, V_T0, V_T2, V_T3))
        a('%s v%d, v%d, v%d' % (op, V_T1, V_T2, V_T3))
        fill()
        a('v_permlane32_swap_b32 v%d, v%d' % (V_T0, V_T1))
        a('%s v%d, v%d, v%d' % (op, V_T2, V_T0, V_T1))
        a('%s v%d, v%d, v%d' % (op, V_T3, V_T0, V_T1))
        fill()
        a('v_permlane16_swap_b32 v%d, v%d' % (V_T2, V_T3))
        a('%s v%d, v%d, v%d' % (op, V_T0, V_T2, V_T3))

    xreduce('v_max_f32', lambda: None)
    c('exp(score - max)')
    a('v_mul_f32 v%d, s%d, v%d' % (V_T0, S_C, V_T0))
    for r in range(8):
        a('v_fma_f32 v%d, v%d, s%d, -v%d' % (SA + r, SA + r, S_C, V_T0))
    for r in range(8):
        a('v_exp_f32 v%d, v%d' % (SA + r, SA + r))
        if r == 3:
            a('v_add_f32 v%d, v%d, v%d' % (V_T2, SA, SA + 1))
        if r == 4:
            a('v_add_f32 v%d, v%d, v%d' % (V_T3, SA + 2, SA + 3))
        if r == 6:
            a('v_add_f32 v%d, v%d, v%d' % (V_T2, V_T2, SA + 4))
            a('v_add_f32 v%d, v%d, v%d' % (V_T3, V_T3, SA + 5))
    c('wait for V')
    a('L_poll2:')
    a('s_waitcnt lgkmcnt(0)')
    a('v_cmp_le_i32 vcc, s%d, v8' % S_TH)
    a('s_cbranch_vccnz L_poll2_x')
    a('ds_read_b32 v8, v%d' % V_FLAG)
    a('s_branch L_poll2')
    a('L_poll2_x:')
    del lds_q[:]
    vreads = [(t, 2) for t in range(4)] + [(t, x) for t in range(4) for x in (0, 1)] + \
             [(t, 2) for t in range(4, 8)] + [(t, x) for t in range(4, 8) for x in (0, 1)]

    def vread(n):
        for _ in range(n):
            t, x = vreads.pop(0)
            lds('ds_read_b64_tr_b16 v[%d:%d], v%d offset:4096' % (
                R_V + 6 * t + 2 * x, R_V + 6 * t + 2 * x + 1, A_V + 8 * x + t), ('V', t, x))

    c('V^T fragments by transposing reads, row sum, P = bf16(exp / sum) split back into X, Y, Z')
    vread(8)
    a('v_add_f32 v%d, v%d, v%d' % (V_T2, V_T2, SA + 6))
    a('v_add_f32 v%d, v%d, v%d' % (V_T3, V_T3, SA + 7))
    xreduce('v_add_f32', lambda: vread(2))
    a('v_rcp_f32 v%d, v%d' % (V_T0, V_T0))
    PA, PB, PC = V_P, V_P + 2, V_P + 4
    lwait([('V', 3, 2)])
    vread(2)
    for r in range(4):
        a('v_mul_f32 v%d, v%d, v%d' % (SA + r, SA + r, V_T0))
    vread(2)
    for w in range(2):
        a('v_cvt_pk_bf16_f32 v%d, v%d, v%d' % (PA + w, SA + 2 * w, SA + 2 * w + 1))
    for w, vm in ((0, V_M0), (1, V_M1)):
        a('v_and_b32 v%d, v%d, v%d' % (PC + w, PA + w, vm))

    def pv16(t):
        a('v_mfma_f32_16x16x16_bf16 v[%d:%d], v[%d:%d], v[%d:%d], 0' % (
            V_O + 4 * t, V_O + 4 * t + 3, R_V + 6 * t + 4, R_V + 6 * t + 5, PC, PC + 1))

    def pv32(t):
        a('v_mfma_f32_16x16x32_bf16 v[%d:%d], v[%d:%d], v[%d:%d], v[%d:%d]' % (
            V_O + 4 * t, V_O + 4 * t + 3, R_V + 6 * t, R_V + 6 * t + 3, PA, PA + 3, V_O + 4 * t, V_O + 4 * t + 3))

    def cvt(t):
        a('v_cvt_pk_bf16_f32 v%d, v%d, v%d' % (R_OUT + 2 * t, V_O + 4 * t, V_O + 4 * t + 1))
        a('v_cvt_pk_bf16_f32 v%d, v%d, v%d' % (R_OUT + 2 * t + 1, V_O + 4 * t + 2, V_O + 4 * t + 3))

    def owr(t):
        a('ds_write_b64 v%d, v[%d:%d] offset:%d' % (A_O + (t & 3), R_OUT + 2 * t, R_OUT + 2 * t + 1, 128 * (t >> 2)))

    c('O^T = V^T P^T: K=16 MFMA for Z, K=32 MFMA for X and Y; lane (m, g) holds d = 16t + 4g + r of query m')
    a('v_mul_f32 v%d, v%d, v%d' % (SB, SB, V_T0))
    a('v_mul_f32 v%d, v%d, v%d' % (SB + 1, SB + 1, V_T0))
    pv16(0)
    lwait([('V', 2, 1)])
    vread(2)
    a('v_mul_f32 v%d, v%d, v%d' % (SB + 2, SB + 2, V_T0))
    a('v_mul_f32 v%d, v%d, v%d' % (SB + 3, SB + 3, V_T0))
    pv16(1)
    vread(2)
    for w in range(2):
        a('v_cvt_pk_bf16_f32 v%d, v%d, v%d' % (PB + w, SB + 2 * w, SB + 2 * w + 1))
    pv16(2)
    vread(2)
    for w in range(2):
        a('v_xor_b32 v%d, v%d, v%d' % (PA + w, PA + w, PC + w))
    pv16(3)
    vread(2)
    assert not vreads
    lwait([('V', 7, 2)])
    pv32(0); pv16(4); pv32(1); pv16(5); pv32(2); pv16(6); pv32(3); pv16(7)
    a('s_waitcnt lgkmcnt(0)')
    a('s_addk_i32 s%d, %d' % (S_QS, NC * 4096))
    c('bf16 output tile replaces the Q tile in LDS')
    cvt(0); pv32(4); owr(0)
    cvt(1); pv32(5); owr(1)
    cvt(2); pv32(6); owr(2)
    cvt(3); pv32(7); owr(3)
    for t in range(4, 8):
        cvt(t); owr(t)
    a('ds_write_b32 v15, v13')
    a('s_add_u32 s%d, s%d, %d' % (S_X, S_X, NC * 8192))
    a('s_cmp_ge_u32 s%d, %d' % (S_X, KVEND))
    a('s_cselect_b32 s60, %d, 0' % (NSLOT * 8192))
    a('s_sub_u32 s%d, s%d, s60' % (S_X, S_X))
    a('s_add_u32 s%d, s%d, 8' % (S_TH, S_TH))
    a('s_add_u32 s%d, s%d, %d' % (S_STEP, S_STEP, NC))
    a('s_cmp_lt_u32 s%d, 18' % S_STEP)
    a('s_cbranch_scc1 L_round')
    c('each consumer stores its last tile itself')
    for n in range(4):
        a('ds_read_b128 v[%d:%d], v%d offset:%d' % (R_K + 4 * n, R_K + 4 * n + 3, V_LIN, 49152 + 1024 * n))
    for n in range(4):
        a('s_waitcnt lgkmcnt(%d)' % (3 - n))
        a('buffer_store_dwordx4 v[%d:%d], v%d, %s, s%d offen offset:%d%s' % (
            R_K + 4 * n, R_K + 4 * n + 3, V_ST0 + (n & 1), srd(S_O), S_QO, 1024 * n, ST))
    a('L_end:')
    a('s_endpgm')
    s, info = finish(a, NWG, 64 * (NC + 2), LDS, comment=OVERVIEW)
    s = s.replace('.p2align 8\n.type',
                  '; unreachable filler: with the 768 bytes of entry stubs the harness inserts here, the entry point\n; lands at the start of a 4 KiB page\n'
                  '.p2align 12\n.fill %d, 4, %s\n.p2align 8\n.type' % (0xd00 // 4, ENDPGM))
    return s, info


if __name__ == '__main__':
    kw = {}
    for x in sys.argv[2:]:
        k, v = x.split('=')
        kw[k] = int(v)
    s, info = gen(**kw)
    open(sys.argv[1], 'w').write(s)
    print(sys.argv[1], info)
```
